```python
import torch

def _softmax(x, axis=-1):
    return torch.softmax(x, dim=axis)
def _gelu(x):
    return torch.nn.functional.gelu(x, approximate="tanh")
def _silu(x):
    return torch.nn.functional.silu(x)
def _sigmoid(x):
    return torch.sigmoid(x)
def _layernorm(x, axis=-1, eps=1e-5):
    m = x.mean(dim=axis, keepdim=True)
    v = x.var(dim=axis, keepdim=True, unbiased=False)
    return (x - m) / torch.sqrt(v + eps)
def _scatter_add(tgt, idx, src, axis=0):
    return tgt.clone().index_add_(axis, idx, src)
def _segment_sum(src, seg, n):
    out = torch.zeros((n,) + src.shape[1:], dtype=src.dtype)
    return out.index_add_(0, seg, src)
def _pad(x, pw):
    flat = tuple(v for pair in reversed(pw) for v in pair)
    return torch.nn.functional.pad(x, flat)

kernel_name = 'concat_heads__gqa_block_cached__mha_block_cached__decode'

def setup_inputs():

    _w = (lambda a: (lambda t: t.to(torch.bfloat16) if t.is_floating_point() else t)(torch.as_tensor(a)))
    def _A_setup():
        B, Sq, D = 4, 1, 448
        Hq, Hkv, Sk, Dh = 16, 8, 16384, 256
        assert Hq % Hkv == 0, (Hq, Hkv)
        return {
            "x": _w((lambda *s: torch.randn(*s, dtype=torch.bfloat16) * 0.8)(B, Sq, D)),
            "k_cache": _w((lambda *s: torch.randn(*s, dtype=torch.bfloat16) * 0.8)(B, Hkv, Sk, Dh)),
            "v_cache": _w((lambda *s: torch.randn(*s, dtype=torch.bfloat16) * 0.05)(B, Hkv, Sk, Dh)),
            "wq": _w((lambda *s: torch.randn(*s, dtype=torch.bfloat16) * 0.8)(D, Hq * Dh) * (D ** -0.5)),
            "wo": _w((lambda *s: torch.randn(*s, dtype=torch.bfloat16) * 0.05)(Hq * Dh, D) * ((Hq * Dh) ** -0.5)),
        }
    _A_in = _A_setup()

    def _B_setup():
        B, Sq, D = 4, 1, 448
        H, Sk, Dh = 16, 16384, 256
        return {
            "x": _w((lambda *s: torch.randn(*s, dtype=torch.bfloat16) * 0.8)(B, Sq, D)),
            "k_cache": _w((lambda *s: torch.randn(*s, dtype=torch.bfloat16) * 0.8)(B, H, Sk, Dh)),
            "v_cache": _w((lambda *s: torch.randn(*s, dtype=torch.bfloat16) * 0.05)(B, H, Sk, Dh)),
            "wq": _w((lambda *s: torch.randn(*s, dtype=torch.bfloat16) * 0.8)(D, H * Dh) * (D ** -0.5)),
            "wo": _w((lambda *s: torch.randn(*s, dtype=torch.bfloat16) * 0.05)(H * Dh, D) * ((H * Dh) ** -0.5)),
        }
    _B_in = _B_setup()

    return {
        "A_x": _A_in["x"],
        "A_k_cache": _A_in["k_cache"],
        "A_v_cache": _A_in["v_cache"],
        "A_wq": _A_in["wq"],
        "A_wo": _A_in["wo"],
        "B_x": _B_in["x"],
        "B_k_cache": _B_in["k_cache"],
        "B_v_cache": _B_in["v_cache"],
        "B_wq": _B_in["wq"],
        "B_wo": _B_in["wo"],
    }

def reference(A_x, A_k_cache, A_v_cache, A_wq, A_wo, B_x, B_k_cache, B_v_cache, B_wq, B_wo):
    def _A_ref(x, k_cache, v_cache, wq, wo):
        B, Sq, D = x.shape
        Hq, Dh = 16, 256
        Hkv = k_cache.shape[1]
        rep = Hq // Hkv
        q = (lambda x, *d: x.permute(*d))((x @ wq).reshape(B, Sq, Hq, Dh), 0, 2, 1, 3)
        k = (lambda x, n, axis: torch.repeat_interleave(x, n, dim=axis))(k_cache, rep, axis=1)
        v = (lambda x, n, axis: torch.repeat_interleave(x, n, dim=axis))(v_cache, rep, axis=1)
        scores = torch.einsum("bhqd,bhkd->bhqk", q, k) * (Dh ** -0.5)
        p = _softmax(scores, axis=-1)
        o = torch.einsum("bhqk,bhkd->bhqd", p, v)
        return (lambda x, *d: x.permute(*d))(o, 0, 2, 1, 3).reshape(B, Sq, Hq * Dh) @ wo

    def _B_ref(x, k_cache, v_cache, wq, wo):
        B, Sq, D = x.shape
        H, Dh = 16, 256
        q = (lambda x, *d: x.permute(*d))((x @ wq).reshape(B, Sq, H, Dh), 0, 2, 1, 3)
        scores = torch.einsum("bhqd,bhkd->bhqk", q, k_cache) * (Dh ** -0.5)
        p = _softmax(scores, axis=-1)
        o = torch.einsum("bhqk,bhkd->bhqd", p, v_cache)
        return (lambda x, *d: x.permute(*d))(o, 0, 2, 1, 3).reshape(B, Sq, H * Dh) @ wo

    a = _A_ref(A_x, A_k_cache, A_v_cache, A_wq, A_wo)
    b = _B_ref(B_x, B_k_cache, B_v_cache, B_wq, B_wo)
    return torch.concatenate([a, b], axis=-1)
```

```python
import sys, struct, math
KN='concat_heads__gqa_block_cached__mha_block_cached__decode'
def f2h(x): return "0x%08x"%struct.unpack('<I',struct.pack('<f',x))[0]

WS_EPOCH=0x0
WS_QG=0x1000
WS_STAT=0x22000
WS_PART=0x40000
WS_Y=0x140000
WS_STAMP=0x300000
WS_SIZE=0x400000
L_WST=0x0000
L_QC=0x7000
L_FL=0x7800
L_ST=0xD800
L_CNT=0xD900
L_QUEUE=0xDA00
L_OB=0xDC00
L_FB=0xE000
LDS_SIZE=0xE200
SCALE=math.log2(math.e)/16.0

class G:
    def __init__(s): s.L=[]
    def __call__(s,txt):
        for l in txt.strip('\n').split('\n'): s.L.append(l)
    def text(s): return "\n".join(s.L)+"\n"

def opt(o,k,d):
    v=o.get(k,d)
    return type(d)(v) if not isinstance(d,bool) else (str(v).lower() in('1','true','yes'))

def load_tags(g, sWS, sT, sTB, tmp):
    g(f"""
  s_load_dword s{sT}, s[{sWS}:{sWS+1}], {WS_EPOCH}
  s_waitcnt lgkmcnt(0)
  s_add_u32 s{sT}, s{sT}, 1
  s_and_b32 s{tmp}, s{sT}, 0xff
  s_add_u32 s{sTB}, s{tmp}, 0x35
  s_and_b32 s{sTB}, s{sTB}, 0xff
  s_lshl_b32 s{sTB}, s{sTB}, 8
  s_or_b32 s{sTB}, s{sTB}, s{tmp}
  s_add_u32 s{tmp+1}, s{tmp}, 0x6b
  s_and_b32 s{tmp+1}, s{tmp+1}, 0xff
  s_lshl_b32 s{tmp+1}, s{tmp+1}, 16
  s_or_b32 s{sTB}, s{sTB}, s{tmp+1}
  s_add_u32 s{tmp+1}, s{tmp}, 0xa1
  s_lshl_b32 s{tmp+1}, s{tmp+1}, 24
  s_or_b32 s{sTB}, s{sTB}, s{tmp+1}
""")

def spin_guard(g, sCnt, lbl_fail, limit=2000000):
    g(f"""
  s_add_u32 s{sCnt}, s{sCnt}, 1
  s_cmp_gt_u32 s{sCnt}, {limit}
  s_cbranch_scc1 {lbl_fail}
""")

def emit_qproj(g, u, sWS, sT, lbl):
    g(f"""
  s_lshr_b32 s44, s2, 7
  s_mul_i32 s45, s44, 40
  s_add_u32 s46, s0, s45
  s_addc_u32 s47, s1, 0
  s_load_dwordx2 s[48:49], s[46:47], 0     ; x
  s_load_dwordx2 s[52:53], s[46:47], 24    ; wq
  v_lshrrev_b32 v1, 2, v0
  v_lshlrev_b32 v1, 13, v1            ; (l>>2)*8192
  v_and_b32 v2, 3, v0
  v_lshlrev_b32 v3, 4, v2             ; (l&3)*16
  v_add_u32 v1, v1, v3
  v_mul_u32_u24 v4, 896, v2           ; (l&3)*896
  v_lshrrev_b32 v5, 4, v0             ; g
  v_lshlrev_b32 v6, 4, v5             ; g*16
  v_add_u32 v4, v4, v6
  s_and_b32 s45, s2, 127
  s_lshl_b32 s45, s45, 6
  s_waitcnt lgkmcnt(0)
  s_and_b32 s49, s49, 0xffff
  s_mov_b32 s50, 3584
  s_mov_b32 s51, 0x20000
  s_and_b32 s53, s53, 0xffff
  s_mov_b32 s54, 3670016
  s_mov_b32 s55, 0x20000
  s_mov_b32 m0, {L_WST}
  s_nop 0
""")
    for ld in range(28):
        g(f"  buffer_load_dwordx4 v1, s[52:55], s45 offen nt lds")
        if ld<27:
            g(f"  s_add_u32 s45, s45, {16*8192}\n  s_add_u32 m0, m0, 1024\n  s_nop 0")
    XA=16
    for s in range(14):
        g(f"  buffer_load_dwordx4 v[{XA+4*s}:{XA+4*s+3}], v4, s[48:51], 0 offen offset:{s*64}")
    g(f"""
  v_lshrrev_b32 v6, 2, v0
  v_and_b32 v6, 3, v6
  v_lshl_add_u32 v6, v5, 3, v6        ; 8g + r
  v_lshlrev_b32 v6, 6, v6
  v_lshl_add_u32 v6, v2, 3, v6
  v_add_u32 v6, {L_WST}, v6
  s_waitcnt vmcnt(0)
""")
    TB=72
    first=True
    for batch in range(2):
        for ss in range(7):
            s=batch*7+ss
            for cb in range(2):
                r=TB+8*ss+4*cb
                g(f"  ds_read_b64_tr_b16 v[{r}:{r+1}], v6 offset:{s*2048+cb*32}")
                g(f"  ds_read_b64_tr_b16 v[{r+2}:{r+3}], v6 offset:{s*2048+cb*32+256}")
        g("  s_waitcnt lgkmcnt(0)")
        for ss in range(7):
            s=batch*7+ss
            for cb in range(2):
                r=TB+8*ss+4*cb; d=8+4*cb
                c = "0" if s==0 else f"v[{d}:{d+3}]"
                g(f"  v_mfma_f32_16x16x32_bf16 v[{d}:{d+3}], v[{XA+4*s}:{XA+4*s+3}], v[{r}:{r+3}], {c}")
    g(f"""
  s_nop 7
  v_cmp_eq_u32 vcc, 1, v5
  v_cmp_eq_u32 s[56:57], 2, v5
  v_cmp_eq_u32 s[58:59], 3, v5
  s_nop 1
  v_cndmask_b32 v8, v8, v9, vcc
  v_cndmask_b32 v12, v12, v13, vcc
  v_cndmask_b32 v8, v8, v10, s[56:57]
  v_cndmask_b32 v12, v12, v14, s[56:57]
  v_cndmask_b32 v8, v8, v11, s[58:59]
  v_cndmask_b32 v12, v12, v15, s[58:59]
  v_and_b32 v7, 1, v0                 ; parity
  v_cmp_eq_u32 vcc, 0, v7
  v_mov_b32 v9, 0
  v_mov_b32 v13, 0
  s_nop 1
  v_mov_b32_dpp v9, v8 row_shl:1 row_mask:0xf bank_mask:0xf     ; val0[n+1]
  v_mov_b32_dpp v13, v12 row_shr:1 row_mask:0xf bank_mask:0xf   ; val1[n-1]
  s_nop 1
  v_cndmask_b32 v10, v13, v8, vcc
  v_cndmask_b32 v11, v12, v9, vcc
  v_cvt_pk_bf16_f32 v10, v10, v11
  v_mov_b32 v11, s{sT}
  s_lshr_b32 s44, s2, 7
  s_lshl_b32 s44, s44, 16             ; p*4*16*1024
  s_lshr_b32 s45, s2, 3
  s_and_b32 s45, s45, 15
  s_lshl_b32 s45, s45, 10             ; hq*1024
  s_add_u32 s44, s44, s45
  s_and_b32 s45, s2, 7
  s_lshl_b32 s45, s45, 7              ; ds*16*8
  s_add_u32 s44, s44, s45
  s_add_u32 s44, s44, {WS_QG}
  v_lshlrev_b32 v12, 14, v5           ; b*16*1024
  v_lshlrev_b32 v13, 6, v7            ; cb*8*8
  v_add_u32 v12, v12, v13
  v_and_b32 v13, 15, v0
  v_lshrrev_b32 v13, 1, v13
  v_lshl_add_u32 v12, v13, 3, v12
  v_add_u32 v12, s44, v12
  global_store_dwordx2 v12, v[10:11], s[{sWS}:{sWS+1}] sc1
""")

def emit_qgather(g, u, sWS, sT, sG, lblfail):
    g(f"""
  s_lshl_b32 s44, s{sG}, 11           ; 2g*1024
  s_add_u32 s44, s44, {WS_QG}
  v_lshlrev_b32 v1, 4, v0
  v_add_u32 v1, s44, v1               ; A vectors (p=0)
  v_add_u32 v2, 0x10000, v1           ; B vectors (p=1)
  s_mov_b32 s45, 0
L_qg_poll_{u}:
  global_load_dwordx4 v[8:11], v2, s[{sWS}:{sWS+1}] sc1
  global_load_dwordx4 v[12:15], v2, s[{sWS}:{sWS+1}] offset:1024 sc1
  global_load_dwordx4 v[16:19], v1, s[{sWS}:{sWS+1}] sc1
  global_load_dwordx4 v[20:23], v1, s[{sWS}:{sWS+1}] offset:1024 sc1
  s_waitcnt vmcnt(0)
  v_xor_b32 v9, s{sT}, v9
  v_xor_b32 v11, s{sT}, v11
  v_xor_b32 v13, s{sT}, v13
  v_xor_b32 v15, s{sT}, v15
  v_xor_b32 v17, s{sT}, v17
  v_xor_b32 v19, s{sT}, v19
  v_xor_b32 v21, s{sT}, v21
  v_xor_b32 v23, s{sT}, v23
  v_or3_b32 v9, v9, v11, v13
  v_or3_b32 v15, v15, v17, v19
  v_or3_b32 v9, v9, v21, v23
  v_or_b32 v9, v9, v15
  v_cmp_ne_u32 vcc, 0, v9
  s_cbranch_vccz L_qg_ok_{u}
""")
    spin_guard(g,45,lblfail)
    g(f"""
  s_sleep 2
  s_branch L_qg_poll_{u}
L_qg_ok_{u}:
  v_lshlrev_b32 v3, 3, v0
  v_add_u32 v3, {L_QC}, v3
  v_mov_b32 v9, v10
  v_mov_b32 v13, v14
  v_mov_b32 v17, v18
  v_mov_b32 v21, v22
  ds_write_b64 v3, v[8:9]
  ds_write_b64 v3, v[12:13] offset:512
  ds_write_b64 v3, v[16:17] offset:1024
  ds_write_b64 v3, v[20:21] offset:1536
""")

def emit_wo_stage(g, u):
    g(f"""
  s_load_dwordx2 s[48:49], s[0:1], 32
  s_load_dwordx2 s[52:53], s[0:1], 72
  s_lshr_b32 s44, s2, 2               ; h*4+dq
  s_mul_i32 s44, s44, {64*896}
  s_and_b32 s45, s2, 3
  s_mul_i32 s45, s45, 224
  s_add_u32 s44, s44, s45
  ; per lane: c = lane ; row = c/14, chunk = c%14
  v_mul_u32_u24 v2, 4682, v0          ; c*4682 >> 16 = c/14 for c<64
  v_lshrrev_b32 v2, 16, v2            ; row
  v_mul_u32_u24 v3, 14, v2
  v_sub_u32 v3, v0, v3                ; chunk
  s_waitcnt lgkmcnt(0)
  s_and_b32 s49, s49, 0xffff
  s_mov_b32 s50, 3670016
  s_mov_b32 s51, 0x20000
  s_and_b32 s53, s53, 0xffff
  s_mov_b32 s54, 3670016
  s_mov_b32 s55, 0x20000
""")
    for ld in range(14):
        g(f"""
  v_mul_u32_u24 v4, 896, v2
  v_lshl_add_u32 v4, v3, 4, v4
  s_mov_b32 m0, {L_WST+ld*1024}
  s_nop 0
  buffer_load_dwordx4 v4, s[48:51], s44 offen nt lds
  s_mov_b32 m0, {L_WST+14336+ld*1024}
  s_nop 0
  buffer_load_dwordx4 v4, s[52:55], s44 offen nt lds""")
        if ld<13:
            g(f"""
  v_add_u32 v3, 8, v3
  v_add_u32 v2, 4, v2
  v_cmp_le_u32 vcc, 14, v3
  v_subrev_u32 v5, 14, v3
  v_add_u32 v6, 1, v2
  v_cndmask_b32 v3, v3, v5, vcc
  v_cndmask_b32 v2, v2, v6, vcc""")

sW=3; sG=4; sJ=5; sT=6; sTB=7
sK=8
sV=12
sKA=16; sVA=18; sKB=20; sVB=22; sWS=24; sDBG=26; sOUT=28
sOFF=30; sCNT=31; sPH=32; sNXT=33; sKN=34; sTRIG=35; sSKIP=36; sCPH=37
sC=38; sSLO=39; sSHI=40
sTMP=44
sERR=60
vOK=1; vOV=2; vM=3; vMC=4; vL=5; vLANE=6; vX=7
vS=8; vT=12; vP=20; vB=24; vACC=40; vV=[72,104]
NARCH=136
aK=[0,32]; aQ=64
NACC=96

def chunk_table(o):
    tab=o.get('tab','dyn')
    if tab=='static': return 32, []
    if tab=='dyn': return 12, [(8,8),(8,5),(8,3),(8,2),(16,1)]
    a,b=tab.split(':'); lst=[tuple(int(x) for x in t.split('x')) for t in b.split(',')] if b else []
    return int(a), lst

def emit_k_loads(g,buf,pol):
    for j in range(8):
        r=aK[buf]+4*j
        g(f"  buffer_load_dwordx4 a[{r}:{r+3}], v{vOK}, s[{sK}:{sK+3}], s{sOFF} offen offset:{j*64} {pol}")
def emit_v_loads(g,buf,pol):
    for r8 in range(8):
        r=vV[buf]+4*r8
        g(f"  buffer_load_dwordx4 v[{r}:{r+3}], v{vOV}, s[{sV}:{sV+3}], s{sOFF} offen offset:{r8*512} {pol}")

def set_srd_head(g, sKp, sVp, sIdx):
    g(f"""
  s_lshl_b32 s{sTMP}, s{sIdx}, 23
  s_lshr_b32 s{sTMP+1}, s{sIdx}, 9
  s_add_u32 s{sK}, s{sKp}, s{sTMP}
  s_addc_u32 s{sK+1}, s{sKp+1}, s{sTMP+1}
  s_and_b32 s{sK+1}, s{sK+1}, 0xffff
  s_add_u32 s{sV}, s{sVp}, s{sTMP}
  s_addc_u32 s{sV+1}, s{sVp+1}, s{sTMP+1}
  s_and_b32 s{sV+1}, s{sV+1}, 0xffff
  s_mov_b32 s{sK+2}, 0x800000
  s_mov_b32 s{sV+2}, 0x800000
  s_mov_b32 s{sK+3}, 0x20000
  s_mov_b32 s{sV+3}, 0x20000
""")

def emit_advance(g,o,u):
    size0,tab=chunk_table(o)
    g(f"""
  s_cmp_eq_u32 s{sPH}, 2
  s_cbranch_scc1 L_adv_dyn_{u}
  s_add_u32 s{sPH}, s{sPH}, 1
  s_mov_b32 s{sNXT}, 1
  s_cmp_eq_u32 s{sPH}, 2
  s_cbranch_scc1 L_adv_p2_{u}
  s_lshl_b32 s{sTMP+2}, s{sG}, 1
  s_add_u32 s{sTMP+2}, s{sTMP+2}, 1
""")
    set_srd_head(g,sKB,sVB,sTMP+2)
    g(f"""
  s_lshl_b32 s{sOFF}, s{sJ}, 20
  s_lshl_b32 s{sTMP}, s{sW}, 18
  s_add_u32 s{sOFF}, s{sOFF}, s{sTMP}
  s_mov_b32 s{sCNT}, 32
  s_branch L_adv_done_{u}
L_adv_p2_{u}:
""")
    set_srd_head(g,sKA,sVA,sG)
    g(f"""
  ; first chunk static: start unit = j*size0, per wave size0 tiles
  s_mul_i32 s{sOFF}, s{sJ}, {size0*64*512}
  s_mul_i32 s{sTMP}, s{sW}, {size0*16*512}
  s_add_u32 s{sOFF}, s{sOFF}, s{sTMP}
  s_mov_b32 s{sCNT}, {size0}
  s_mov_b32 s{sKN}, 1
  s_mov_b32 s{sTRIG}, 3
  s_branch L_adv_done_{u}
L_adv_dyn_{u}:
  s_lshl_b32 s{sTMP}, s{sKN}, 2
  s_add_u32 s{sTMP}, s{sTMP}, {L_QUEUE}
  v_mov_b32 v{vX}, s{sTMP}
  s_mov_b32 s{sTMP+2}, 0
L_adv_poll_{u}:
  ds_read_b32 v{vT}, v{vX}
  s_waitcnt lgkmcnt(0)
  v_readfirstlane_b32 s{sTMP+1}, v{vT}
  s_nop 0
  s_cmp_eq_u32 s{sTMP+1}, -1
  s_cbranch_scc0 L_adv_got_{u}
""")
    spin_guard(g,sTMP+2,"L_fail")
    g(f"""
  s_sleep 1
  s_branch L_adv_poll_{u}
L_adv_got_{u}:
  s_add_u32 s{sKN}, s{sKN}, 1
  s_cmp_eq_u32 s{sTMP+1}, -2
  s_cbranch_scc1 L_adv_end_{u}
  s_and_b32 s{sCNT}, s{sTMP+1}, 0xff
  s_lshr_b32 s{sOFF}, s{sTMP+1}, 8
  s_lshl_b32 s{sOFF}, s{sOFF}, 15
  s_mul_i32 s{sTMP}, s{sW}, s{sCNT}
  s_lshl_b32 s{sTMP}, s{sTMP}, 13
  s_add_u32 s{sOFF}, s{sOFF}, s{sTMP}
  s_branch L_adv_done_{u}
L_adv_end_{u}:
  s_mov_b32 s{sNXT}, 2
  s_mov_b32 s{sK+2}, 0
  s_mov_b32 s{sV+2}, 0
  s_mov_b32 s{sCNT}, 0x10000
  s_mov_b32 s{sTRIG}, 0
  s_mov_b32 s{sOFF}, 0
L_adv_done_{u}:
""")

def emit_body(g,o,b):
    pol=o.get('pol','nt'); vearly=opt(o,'vearly',False)
    nb=b^1; u=f"b{b}"
    g(f"L_body_{u}:")
    g(f"  s_waitcnt vmcnt(8)")
    for j in range(8):
        c="0" if j==0 else f"v[{vS}:{vS+3}]"
        g(f"  v_mfma_f32_16x16x32_bf16 v[{vS}:{vS+3}], a[{aK[b]+4*j}:{aK[b]+4*j+3}], a[{aQ+4*j}:{aQ+4*j+3}], {c}")
    g(f"""
  s_cmp_eq_u32 s{sSKIP}, 0
  s_cbranch_scc0 L_nokld_{u}
  s_cmp_eq_u32 s{sCNT}, 0
  s_cbranch_scc0 L_kld_{u}""")
    emit_advance(g,o,u)
    g(f"L_kld_{u}:")
    emit_k_loads(g,nb,pol)
    if vearly: emit_v_loads(g,nb,pol)
    g(f"L_nokld_{u}:")
    t=vT
    g(f"""
  s_nop 5
  v_max3_f32 v{t}, v{vS}, v{vS+1}, v{vS+2}
  v_max_f32 v{t}, v{t}, v{vS+3}
  v_mov_b32 v{t+1}, v{t}
  s_nop 1
  v_permlane16_swap_b32 v{t}, v{t+1}
  v_max_f32 v{t}, v{t}, v{t+1}
  v_mov_b32 v{t+1}, v{t}
  s_nop 1
  v_permlane32_swap_b32 v{t}, v{t+1}
  v_max_f32 v{t}, v{t}, v{t+1}
  v_cmp_gt_f32 vcc, v{t}, v{vM}
  s_cbranch_vccnz L_rare_{u}
L_back_{u}:
  v_fma_f32 v{t+2}, v{vS}, s{sC}, -v{vMC}
  v_fma_f32 v{t+3}, v{vS+1}, s{sC}, -v{vMC}
  v_fma_f32 v{t+4}, v{vS+2}, s{sC}, -v{vMC}
  v_fma_f32 v{t+5}, v{vS+3}, s{sC}, -v{vMC}
  v_exp_f32 v{t+2}, v{t+2}
  v_exp_f32 v{t+3}, v{t+3}
  v_exp_f32 v{t+4}, v{t+4}
  v_exp_f32 v{t+5}, v{t+5}
  v_add_f32 v{t+6}, v{t+2}, v{t+3}
  v_cvt_pk_bf16_f32 v{vP}, v{t+2}, v{t+3}
  v_add_f32 v{t+7}, v{t+4}, v{t+5}
  v_cvt_pk_bf16_f32 v{vP+1}, v{t+4}, v{t+5}
  v_add_f32 v{t+6}, v{t+6}, v{t+7}
  v_mov_b32 v{vP+2}, v{vP}
  v_mov_b32 v{vP+3}, v{vP+1}
  v_add_f32 v{vL}, v{vL}, v{t+6}
  s_nop 0
  v_permlane16_swap_b32 v{vP}, v{vP+2}
  v_permlane16_swap_b32 v{vP+1}, v{vP+3}
  s_waitcnt vmcnt({16 if vearly else 8})
""")
    for t2 in range(2):
        R=[vV[b]+4*(4*t2+rr) for rr in range(4)]
        for dw in range(4):
            g(f"  v_perm_b32 v{vB+4*dw}, v{R[1]+dw}, v{R[0]+dw}, s{sSLO}")
            g(f"  v_perm_b32 v{vB+4*dw+1}, v{R[3]+dw}, v{R[2]+dw}, s{sSLO}")
            g(f"  v_perm_b32 v{vB+4*dw+2}, v{R[1]+dw}, v{R[0]+dw}, s{sSHI}")
            g(f"  v_perm_b32 v{vB+4*dw+3}, v{R[3]+dw}, v{R[2]+dw}, s{sSHI}")
        for jj in range(8):
            a=vACC+4*jj
            g(f"  v_mfma_f32_4x4x4_16b_bf16 v[{a}:{a+3}], v[{vP+2*t2}:{vP+2*t2+1}], v[{vB+2*jj}:{vB+2*jj+1}], v[{a}:{a+3}]")
    g(f"""
  s_cmp_eq_u32 s{sSKIP}, 0
  s_cbranch_scc0 L_novld_{u}""")
    if not vearly: emit_v_loads(g,nb,pol)
    g(f"""
  s_add_u32 s{sOFF}, s{sOFF}, 8192
  s_sub_u32 s{sCNT}, s{sCNT}, 1
  s_cmp_lt_u32 s{sCNT}, s{sTRIG}
  s_cbranch_scc0 L_novld_{u}
  v_mov_b32 v{vX}, {L_CNT+12}
  v_mov_b32 v{vT}, s{sKN}
  ds_max_u32 v{vX}, v{vT}
L_novld_{u}:
  s_mov_b32 s{sSKIP}, 0
  s_cmp_eq_u32 s{sNXT}, 0
  s_cbranch_scc0 L_flush_{u}
""")
    if b==1: g("  s_branch L_body_b0")

def emit_rare(g,b):
    u=f"b{b}"; t=vT
    g(f"""
L_rare_{u}:
  v_max_f32 v{t+1}, v{t}, v{vM}
  v_sub_f32 v{t+2}, v{vM}, v{t+1}
  v_mul_f32 v{t+2}, s{sC}, v{t+2}
  v_exp_f32 v{t+2}, v{t+2}
  v_mov_b32 v{vM}, v{t+1}
  v_mul_f32 v{vMC}, s{sC}, v{t+1}
  v_mul_f32 v{vL}, v{vL}, v{t+2}
  s_nop 0
  v_mov_b32_dpp v{t+3}, v{t+2} quad_perm:[0,0,2,2] row_mask:0xf bank_mask:0xf
  v_mov_b32_dpp v{t+4}, v{t+2} quad_perm:[1,1,3,3] row_mask:0xf bank_mask:0xf
""")
    for jj in range(8):
        g(f"  v_mul_f32 v{vACC+4*jj}, v{vACC+4*jj}, v{t+3}")
        g(f"  v_mul_f32 v{vACC+4*jj+1}, v{vACC+4*jj+1}, v{t+4}")
    g(f"  s_branch L_back_{u}")

def tag_embed(g, regs, vTagv, sSel):
    for k,r in enumerate(regs):
        g(f"  s_mov_b32 s{sSel}, {hex(0x07060500|k)}\n  v_perm_b32 v{r}, v{r}, v{vTagv}, s{sSel}")

def emit_flush(g,o,b):
    u=f"b{b}"; t=vT
    g(f"""
L_flush_{u}:
  s_nop 4""")
    for jj in range(8):
        a=vACC+4*jj
        g(f"  v_permlane32_swap_b32 v{a}, v{a+1}")
    for jj in range(8):
        a=vACC+4*jj
        g(f"  v_add_f32 v{vB+jj}, v{a}, v{a+1}")
    g(f"""
  v_mov_b32 v{t}, v{vL}
  s_nop 1
  v_permlane16_swap_b32 v{vL}, v{t}
  v_add_f32 v{vL}, v{vL}, v{t}
  v_mov_b32 v{t}, v{vL}
  s_nop 1
  v_permlane32_swap_b32 v{vL}, v{t}
  v_add_f32 v{vL}, v{vL}, v{t}
  s_lshl_b32 s{sTMP}, s{sCPH}, 13
  s_lshl_b32 s{sTMP+1}, s{sW}, 11
  s_add_u32 s{sTMP}, s{sTMP}, s{sTMP+1}
  s_add_u32 s{sTMP}, s{sTMP}, {L_FL}
  v_lshlrev_b32 v{t}, 5, v{vLANE}
  v_add_u32 v{t}, s{sTMP}, v{t}
  ds_write_b128 v{t}, v[{vB}:{vB+3}]
  ds_write_b128 v{t}, v[{vB+4}:{vB+7}] offset:16
  s_lshl_b32 s{sTMP}, s{sCPH}, 6
  s_lshl_b32 s{sTMP+1}, s{sW}, 4
  s_add_u32 s{sTMP}, s{sTMP}, s{sTMP+1}
  s_add_u32 s{sTMP}, s{sTMP}, {L_ST}
  v_and_b32 v{t+1}, 1, v{vLANE}
  v_lshlrev_b32 v{t+1}, 3, v{t+1}
  v_add_u32 v{t+1}, s{sTMP}, v{t+1}
  v_mov_b32 v{t+2}, v{vMC}
  v_mov_b32 v{t+3}, v{vL}
  ds_write_b64 v{t+1}, v[{t+2}:{t+3}]
  s_waitcnt lgkmcnt(0)
  s_lshl_b32 s{sTMP}, s{sCPH}, 2
  s_add_u32 s{sTMP}, s{sTMP}, {L_CNT}
  v_mov_b32 v{t}, s{sTMP}
  v_mov_b32 v{t+1}, 1
  s_mov_b64 exec, 1
  ds_add_rtn_u32 v{t+2}, v{t}, v{t+1}
  s_mov_b64 exec, -1
  s_waitcnt lgkmcnt(0)
  v_readfirstlane_b32 s{sTMP}, v{t+2}
  s_nop 0
  s_cmp_eq_u32 s{sTMP}, 3
  s_cbranch_scc0 L_nomerge_{u}
""")
    g(f"""
  s_and_b32 s{sTMP+2}, s{sG}, 7
  s_lshl_b32 s{sTMP+2}, s{sTMP+2}, 1          ; hq0
  s_lshr_b32 s{sTMP+3}, s{sG}, 3              ; b
  s_cmp_eq_u32 s{sCPH}, 2
  s_cselect_b32 s{sTMP+4}, 0, 16              ; p*16
  s_cselect_b32 s{sTMP+5}, 0, s{sCPH}
  s_cselect_b32 s{sTMP+6}, 2, 1
  s_add_u32 s{sTMP+2}, s{sTMP+2}, s{sTMP+4}
  s_add_u32 s{sTMP+2}, s{sTMP+2}, s{sTMP+5}   ; p*16+hq
  s_lshl_b32 s{sTMP+2}, s{sTMP+2}, 2
  s_add_u32 s{sTMP+2}, s{sTMP+2}, s{sTMP+3}   ; *4 + b
  s_lshl_b32 s{sTMP+2}, s{sTMP+2}, 3
  s_add_u32 s{sTMP+2}, s{sTMP+2}, s{sJ}
  s_mov_b32 s{sTMP+7}, 0                      ; hh
  v_mov_b32 v{vX}, s{sTB}
L_merge_{u}:
  s_lshl_b32 s{sTMP}, s{sCPH}, 6
  s_lshl_b32 s{sTMP+1}, s{sTMP+7}, 3
  s_add_u32 s{sTMP}, s{sTMP}, s{sTMP+1}
  s_add_u32 s{sTMP}, s{sTMP}, {L_ST}
  v_mov_b32 v{t}, s{sTMP}
  ds_read_b64 v[{vB}:{vB+1}], v{t}
  ds_read_b64 v[{vB+2}:{vB+3}], v{t} offset:16
  ds_read_b64 v[{vB+4}:{vB+5}], v{t} offset:32
  ds_read_b64 v[{vB+6}:{vB+7}], v{t} offset:48
  s_lshl_b32 s{sTMP}, s{sCPH}, 13
  s_lshl_b32 s{sTMP+1}, s{sTMP+7}, 10
  s_add_u32 s{sTMP}, s{sTMP}, s{sTMP+1}
  s_add_u32 s{sTMP}, s{sTMP}, {L_FL}
  v_lshlrev_b32 v{t+1}, 4, v{vLANE}
  v_add_u32 v{t+1}, s{sTMP}, v{t+1}
  ds_read_b128 v[{vACC}:{vACC+3}], v{t+1}
  ds_read_b128 v[{vACC+4}:{vACC+7}], v{t+1} offset:2048
  ds_read_b128 v[{vACC+8}:{vACC+11}], v{t+1} offset:4096
  ds_read_b128 v[{vACC+12}:{vACC+15}], v{t+1} offset:6144
  s_waitcnt lgkmcnt(0)
  v_max3_f32 v{t+2}, v{vB}, v{vB+2}, v{vB+4}
  v_max_f32 v{t+2}, v{t+2}, v{vB+6}           ; M
  v_sub_f32 v{vB}, v{vB}, v{t+2}
  v_sub_f32 v{vB+2}, v{vB+2}, v{t+2}
  v_sub_f32 v{vB+4}, v{vB+4}, v{t+2}
  v_sub_f32 v{vB+6}, v{vB+6}, v{t+2}
  v_exp_f32 v{vB}, v{vB}
  v_exp_f32 v{vB+2}, v{vB+2}
  v_exp_f32 v{vB+4}, v{vB+4}
  v_exp_f32 v{vB+6}, v{vB+6}
  s_nop 0
  v_mul_f32 v{t+3}, v{vB}, v{vB+1}
  v_fmac_f32 v{t+3}, v{vB+2}, v{vB+3}
  v_fmac_f32 v{t+3}, v{vB+4}, v{vB+5}
  v_fmac_f32 v{t+3}, v{vB+6}, v{vB+7}         ; L
""")
    for k in range(4):
        g(f"""  v_mul_f32 v{vB+8+k}, v{vB}, v{vACC+k}
  v_fmac_f32 v{vB+8+k}, v{vB+2}, v{vACC+4+k}
  v_fmac_f32 v{vB+8+k}, v{vB+4}, v{vACC+8+k}
  v_fmac_f32 v{vB+8+k}, v{vB+6}, v{vACC+12+k}""")
    tag_embed(g,[vB+8,vB+9,vB+10,vB+11],vX,sTMP)
    g(f"""
  s_lshl_b32 s{sTMP}, s{sTMP+2}, 10
  s_add_u32 s{sTMP}, s{sTMP}, {WS_PART}
  v_lshlrev_b32 v{t}, 4, v{vLANE}
  v_add_u32 v{t}, s{sTMP}, v{t}
  global_store_dwordx4 v{t}, v[{vB+8}:{vB+11}], s[{sWS}:{sWS+1}] sc1
  v_mov_b32 v{vB+12}, v{t+2}
  v_mov_b32 v{vB+13}, v{t+3}
  v_mov_b32 v{vB+14}, s{sT}
  v_mov_b32 v{vB+15}, s{sT}
  s_lshl_b32 s{sTMP}, s{sTMP+2}, 4
  s_add_u32 s{sTMP}, s{sTMP}, {WS_STAT}
  v_mov_b32 v{t}, s{sTMP}
  s_mov_b64 exec, 1
  global_store_dwordx4 v{t}, v[{vB+12}:{vB+15}], s[{sWS}:{sWS+1}] sc1
  s_mov_b64 exec, -1
  s_add_u32 s{sTMP+7}, s{sTMP+7}, 1
  s_add_u32 s{sTMP+2}, s{sTMP+2}, 32
  s_cmp_lt_u32 s{sTMP+7}, s{sTMP+6}
  s_cbranch_scc1 L_merge_{u}
L_nomerge_{u}:
  s_cmp_eq_u32 s{sNXT}, 2
  s_cbranch_scc1 L_tail
  s_add_u32 s{sCPH}, s{sCPH}, 1
  s_mov_b32 s{sNXT}, 0
""")
    emit_reset_and_q(g)
    g(f"  s_branch L_body_b{b^1}")

def emit_reset_and_q(g):
    t=vT
    g(f"""
  v_and_b32 v{t}, 1, v{vLANE}
  s_cmp_eq_u32 s{sCPH}, 2
  s_cselect_b32 s{sTMP}, 512, 0
  v_mul_u32_u24 v{t}, s{sTMP}, v{t}
  s_lshl_b32 s{sTMP}, s{sCPH}, 9
  s_add_u32 s{sTMP}, s{sTMP}, {L_QC}
  v_add_u32 v{t}, s{sTMP}, v{t}
  v_lshrrev_b32 v{t+1}, 4, v{vLANE}
  v_lshl_add_u32 v{t}, v{t+1}, 4, v{t}
""")
    for j in range(8):
        g(f"  ds_read_b128 a[{aQ+4*j}:{aQ+4*j+3}], v{t} offset:{j*64}")
    g(f"""
  v_mov_b32 v{vM}, 0xff800000
  v_mov_b32 v{vMC}, 0xff800000
  v_mov_b32 v{vL}, 0""")
    for r in range(32): g(f"  v_mov_b32 v{vACC+r}, 0")
    g("  s_waitcnt lgkmcnt(0)")

def emit_role(g,o,p,u):
    t=vT; D0=24; D1=28; S0=32; S1=36
    g(f"""
  s_lshr_b32 s{sTMP}, s2, 4                   ; h
  s_add_u32 s{sTMP}, s{sTMP}, {p*16}
  s_lshl_b32 s{sTMP}, s{sTMP}, 2
  s_add_u32 s{sTMP}, s{sTMP}, s{sW}           ; (p*16+h)*4 + b
  s_lshl_b32 s{sTMP}, s{sTMP}, 3
  s_lshl_b32 s{sTMP+1}, s{sTMP}, 4
  s_add_u32 s{sTMP+1}, s{sTMP+1}, {WS_STAT}
  s_lshl_b32 s{sTMP+2}, s{sTMP}, 10
  s_add_u32 s{sTMP+2}, s{sTMP+2}, {WS_PART}
  s_lshr_b32 s{sTMP+3}, s2, 2
  s_and_b32 s{sTMP+3}, s{sTMP+3}, 3           ; dq
  s_lshl_b32 s{sTMP+3}, s{sTMP+3}, 8
  s_add_u32 s{sTMP+2}, s{sTMP+2}, s{sTMP+3}
  v_lshrrev_b32 v{t}, 4, v{vLANE}             ; grp
  v_and_b32 v{t+1}, 15, v{vLANE}
  v_lshlrev_b32 v{t+2}, 4, v{t}
  v_add_u32 v{t+2}, s{sTMP+1}, v{t+2}
  v_lshlrev_b32 v{t+3}, 10, v{t}
  v_lshl_add_u32 v{t+3}, v{t+1}, 4, v{t+3}
  v_add_u32 v{t+3}, s{sTMP+2}, v{t+3}
  v_add_u32 v{t+4}, 4096, v{t+3}              ; j=grp+4
  s_mov_b32 s{sTMP+4}, 0
  s_mov_b32 s{sTMP+5}, 0x0c0c0400
  s_mov_b32 s{sTMP+6}, 0x04000c0c
L_role_poll_{u}:
  global_load_dwordx4 v[{S0}:{S0+3}], v{t+2}, s[{sWS}:{sWS+1}] sc1
  global_load_dwordx4 v[{S1}:{S1+3}], v{t+2}, s[{sWS}:{sWS+1}] offset:64 sc1
  global_load_dwordx4 v[{D0}:{D0+3}], v{t+3}, s[{sWS}:{sWS+1}] sc1
  global_load_dwordx4 v[{D1}:{D1+3}], v{t+4}, s[{sWS}:{sWS+1}] sc1
  s_waitcnt vmcnt(0)
  v_perm_b32 v{t+5}, v{D0+1}, v{D0}, s{sTMP+5}      ; [b0(D0), b0(D0+1), 0, 0]
  v_perm_b32 v{t+6}, v{D0+3}, v{D0+2}, s{sTMP+6}    ; [0,0,b0(D0+2), b0(D0+3)]
  v_or_b32 v{t+5}, v{t+5}, v{t+6}
  v_perm_b32 v{t+6}, v{D1+1}, v{D1}, s{sTMP+5}
  v_perm_b32 v{t+7}, v{D1+3}, v{D1+2}, s{sTMP+6}
  v_or_b32 v{t+6}, v{t+6}, v{t+7}
  v_xor_b32 v{t+5}, s{sTB}, v{t+5}
  v_xor_b32 v{t+6}, s{sTB}, v{t+6}
  v_or_b32 v{t+5}, v{t+5}, v{t+6}
  v_xor_b32 v{t+6}, s{sT}, v{S0+2}
  v_xor_b32 v{t+7}, s{sT}, v{S1+2}
  v_or3_b32 v{t+5}, v{t+5}, v{t+6}, v{t+7}
  v_xor_b32 v{t+6}, s{sT}, v{S0+3}
  v_xor_b32 v{t+7}, s{sT}, v{S1+3}
  v_or3_b32 v{t+5}, v{t+5}, v{t+6}, v{t+7}
  v_cmp_ne_u32 vcc, 0, v{t+5}
  s_cbranch_vccz L_role_ok_{u}
""")
    spin_guard(g,sTMP+4,"L_fail")
    g(f"""
  s_sleep 1
  s_branch L_role_poll_{u}
L_role_ok_{u}:
  v_max_f32 v{t+5}, v{S0}, v{S1}
  v_mov_b32 v{t+6}, v{t+5}
  s_nop 1
  v_permlane16_swap_b32 v{t+5}, v{t+6}
  v_max_f32 v{t+5}, v{t+5}, v{t+6}
  v_mov_b32 v{t+6}, v{t+5}
  s_nop 1
  v_permlane32_swap_b32 v{t+5}, v{t+6}
  v_max_f32 v{t+5}, v{t+5}, v{t+6}            ; M
  v_sub_f32 v{S0}, v{S0}, v{t+5}
  v_sub_f32 v{S1}, v{S1}, v{t+5}
  v_exp_f32 v{S0}, v{S0}
  v_exp_f32 v{S1}, v{S1}
  s_nop 0
  v_mul_f32 v{t+5}, v{S0}, v{S0+1}
  v_fmac_f32 v{t+5}, v{S1}, v{S1+1}           ; partial L
""")
    for k in range(4):
        g(f"  v_mul_f32 v{D0+k}, v{S0}, v{D0+k}\n  v_fmac_f32 v{D0+k}, v{S1}, v{D1+k}")
    vals=[D0,D0+1,D0+2,D0+3,t+5]
    tmp=[D1,D1+1,D1+2,D1+3,t+6]
    for sw in ('v_permlane16_swap_b32','v_permlane32_swap_b32'):
        for v,w_ in zip(vals,tmp): g(f"  v_mov_b32 v{w_}, v{v}")
        g("  s_nop 1")
        for v,w_ in zip(vals,tmp): g(f"  {sw} v{v}, v{w_}")
        for v,w_ in zip(vals,tmp): g(f"  v_add_f32 v{v}, v{v}, v{w_}")
    g(f"""
  v_rcp_f32 v{t+5}, v{t+5}
  s_nop 0
  v_mul_f32 v{D0}, v{D0}, v{t+5}
  v_mul_f32 v{D0+1}, v{D0+1}, v{t+5}
  v_mul_f32 v{D0+2}, v{D0+2}, v{t+5}
  v_mul_f32 v{D0+3}, v{D0+3}, v{t+5}
  v_cvt_pk_bf16_f32 v{D0}, v{D0}, v{D0+1}
  v_cvt_pk_bf16_f32 v{D0+1}, v{D0+2}, v{D0+3}
  s_lshl_b32 s{sTMP}, s{sW}, 7
  s_add_u32 s{sTMP}, s{sTMP}, {L_OB+p*512}
  v_lshlrev_b32 v{t+1}, 3, v{t+1}
  v_add_u32 v{t+1}, s{sTMP}, v{t+1}
  ds_write_b64 v{t+1}, v[{D0}:{D0+1}]
  s_waitcnt lgkmcnt(0)
  s_barrier
  v_and_b32 v{t+1}, 3, v{vLANE}
  v_lshlrev_b32 v{t+2}, 7, v{t+1}
  v_lshl_add_u32 v{t+2}, v{t}, 4, v{t+2}
  v_add_u32 v{t+2}, {L_OB+p*512}, v{t+2}
  ds_read_b128 v[40:43], v{t+2}
  ds_read_b128 v[44:47], v{t+2} offset:64
  v_lshrrev_b32 v{t+3}, 2, v{vLANE}
  v_and_b32 v{t+3}, 3, v{t+3}
  v_lshl_add_u32 v{t+3}, v{t}, 3, v{t+3}
  v_mul_u32_u24 v{t+3}, 224, v{t+3}
  v_lshl_add_u32 v{t+3}, v{t+1}, 3, v{t+3}
  s_lshl_b32 s{sTMP}, s{sW}, 6
  s_add_u32 s{sTMP}, s{sTMP}, {L_WST+p*14336}
  v_add_u32 v{t+3}, s{sTMP}, v{t+3}
""")
    TBq=48
    for c in range(2):
        for s in range(2):
            r=TBq+8*c+4*s
            g(f"  ds_read_b64_tr_b16 v[{r}:{r+1}], v{t+3} offset:{c*32+s*32*224}")
            g(f"  ds_read_b64_tr_b16 v[{r+2}:{r+3}], v{t+3} offset:{c*32+s*32*224+4*224}")
    g("  s_waitcnt lgkmcnt(0)")
    for c in range(2):
        d=64+4*c
        g(f"  v_mfma_f32_16x16x32_bf16 v[{d}:{d+3}], v[40:43], v[{TBq+8*c}:{TBq+8*c+3}], 0")
    for c in range(2):
        d=64+4*c
        g(f"  v_mfma_f32_16x16x32_bf16 v[{d}:{d+3}], v[44:47], v[{TBq+8*c+4}:{TBq+8*c+7}], v[{d}:{d+3}]")
    g(f"""
  v_and_b32 v{t+4}, 1, v{t}
  v_cmp_eq_u32 vcc, 1, v{t+4}
  s_nop 6
  v_cndmask_b32 v64, v64, v68, vcc
  v_cndmask_b32 v65, v65, v69, vcc
  v_cndmask_b32 v66, v66, v70, vcc
  v_cndmask_b32 v67, v67, v71, vcc
  v_mov_b32 v{vX}, s{sTB}
""")
    tag_embed(g,[64,65,66,67],vX,sTMP)
    g(f"""
  s_and_b32 s{sTMP}, s2, 3
  s_add_u32 s{sTMP}, s{sTMP}, {p*4}
  s_lshl_b32 s{sTMP}, s{sTMP}, 6
  s_lshr_b32 s{sTMP+1}, s2, 2
  s_add_u32 s{sTMP}, s{sTMP}, s{sTMP+1}
  s_mul_i32 s{sTMP}, s{sTMP}, {112*16}
  s_lshl_b32 s{sTMP+1}, s{sW}, 9              ; 2w*16*16
  s_add_u32 s{sTMP}, s{sTMP}, s{sTMP+1}
  s_add_u32 s{sTMP}, s{sTMP}, {WS_Y}
  v_and_b32 v{t+5}, 15, v{vLANE}
  v_lshlrev_b32 v{t+5}, 4, v{t+5}
  v_lshl_add_u32 v{t+5}, v{t+4}, 8, v{t+5}    ; + (g&1)*256
  v_add_u32 v{t+5}, s{sTMP}, v{t+5}
  s_cmp_eq_u32 s{sW}, 3
  s_cselect_b32 s{sTMP+2}, 0xffff, -1
  s_mov_b32 s{sTMP+3}, 0
  s_mov_b64 exec, s[{sTMP+2}:{sTMP+3}]
  global_store_dwordx4 v{t+5}, v[64:67], s[{sWS}:{sWS+1}] sc1
  s_mov_b64 exec, -1
""")

def emit_final(g,o,u,update_epoch):
    t=vT
    g(f"""
  ; ---- finalizer f=s2<224 : p=f/112, r=f%112, cq=r/28, cc=(r%28)*4
  s_cmp_ge_u32 s2, 224
  s_cbranch_scc1 L_done
  s_cmp_ge_u32 s2, 112
  s_cselect_b32 s{sTMP}, 1, 0                 ; p
  s_mul_i32 s{sTMP+1}, s{sTMP}, 112
  s_sub_u32 s{sTMP+1}, s2, s{sTMP+1}          ; r
  s_mul_i32 s{sTMP+2}, s{sTMP+1}, 2341
  s_lshr_b32 s{sTMP+2}, s{sTMP+2}, 16         ; cq = r/28
  s_mul_i32 s{sTMP+3}, s{sTMP+2}, 28
  s_sub_u32 s{sTMP+3}, s{sTMP+1}, s{sTMP+3}
  s_lshl_b32 s{sTMP+3}, s{sTMP+3}, 2          ; cc
  s_lshl_b32 s{sTMP+4}, s{sTMP}, 2
  s_add_u32 s{sTMP+4}, s{sTMP+4}, s{sTMP+2}
  s_lshl_b32 s{sTMP+4}, s{sTMP+4}, 6
  s_lshl_b32 s{sTMP+5}, s{sW}, 4
  s_add_u32 s{sTMP+4}, s{sTMP+4}, s{sTMP+5}
  s_mul_i32 s{sTMP+4}, s{sTMP+4}, 1792
  s_lshl_b32 s{sTMP+5}, s{sTMP+3}, 4
  s_add_u32 s{sTMP+4}, s{sTMP+4}, s{sTMP+5}
  s_add_u32 s{sTMP+4}, s{sTMP+4}, {WS_Y}
  v_lshrrev_b32 v{t}, 2, v{vLANE}
  v_mul_u32_u24 v{t}, 1792, v{t}
  v_and_b32 v{t+1}, 3, v{vLANE}
  v_lshl_add_u32 v{t}, v{t+1}, 4, v{t}
  v_add_u32 v{t}, s{sTMP+4}, v{t}
  s_mov_b32 s{sTMP+7}, 0
  s_mov_b32 s{sTMP+5}, 0x0c0c0400
  s_mov_b32 s{sTMP+6}, 0x04000c0c
L_fin_poll_{u}:
  global_load_dwordx4 v[24:27], v{t}, s[{sWS}:{sWS+1}] sc1
  s_waitcnt vmcnt(0)
  v_perm_b32 v{t+2}, v25, v24, s{sTMP+5}
  v_perm_b32 v{t+3}, v27, v26, s{sTMP+6}
  v_or_b32 v{t+2}, v{t+2}, v{t+3}
  v_cmp_ne_u32 vcc, s{sTB}, v{t+2}
  s_cbranch_vccz L_fin_ok_{u}
""")
    spin_guard(g,sTMP+7,"L_fail")
    g(f"""
  s_sleep 1
  s_branch L_fin_poll_{u}
L_fin_ok_{u}:
""")
    for rr in (4,8):
        for k in range(4): g(f"  v_add_f32_dpp v{28+k}, v{24+k}, v{24+k} row_ror:{rr} row_mask:0xf bank_mask:0xf")
        for k in range(4): g(f"  v_mov_b32 v{24+k}, v{28+k}")
        g("  s_nop 1")
    for sw in ('v_permlane16_swap_b32','v_permlane32_swap_b32'):
        for k in range(4): g(f"  v_mov_b32 v{28+k}, v{24+k}")
        g("  s_nop 1")
        for k in range(4): g(f"  {sw} v{24+k}, v{28+k}")
        for k in range(4): g(f"  v_add_f32 v{24+k}, v{24+k}, v{28+k}")
    g(f"""
  s_lshl_b32 s{sTMP+4}, s{sW}, 6
  s_add_u32 s{sTMP+4}, s{sTMP+4}, {L_FB}
  v_lshlrev_b32 v{t+2}, 4, v{t+1}
  v_add_u32 v{t+2}, s{sTMP+4}, v{t+2}
  ds_write_b128 v{t+2}, v[24:27]
  s_waitcnt lgkmcnt(0)
  s_barrier
  s_cmp_eq_u32 s{sW}, 0
  s_cbranch_scc0 L_done
  v_lshrrev_b32 v{t+3}, 2, v{vLANE}
  v_and_b32 v{t+3}, 3, v{t+3}                 ; b
  v_lshlrev_b32 v{t+4}, 4, v{t+1}
  v_lshl_add_u32 v{t+4}, v{t+3}, 2, v{t+4}
  v_add_u32 v{t+4}, {L_FB}, v{t+4}
  ds_read_b32 v24, v{t+4}
  ds_read_b32 v25, v{t+4} offset:64
  ds_read_b32 v26, v{t+4} offset:128
  ds_read_b32 v27, v{t+4} offset:192
  s_waitcnt lgkmcnt(0)
  v_add_f32 v24, v24, v25
  v_add_f32 v26, v26, v27
  v_add_f32 v24, v24, v26
  v_cvt_pk_bf16_f32 v24, v24, v24
  s_mul_i32 s{sTMP+4}, s{sTMP}, 448
  s_mul_i32 s{sTMP+5}, s{sTMP+2}, 112
  s_add_u32 s{sTMP+4}, s{sTMP+4}, s{sTMP+5}
  s_add_u32 s{sTMP+4}, s{sTMP+4}, s{sTMP+3}
  s_lshl_b32 s{sTMP+4}, s{sTMP+4}, 1
  v_mul_u32_u24 v{t+4}, 1792, v{t+3}
  v_lshl_add_u32 v{t+4}, v{t+1}, 1, v{t+4}
  v_add_u32 v{t+4}, s{sTMP+4}, v{t+4}
  s_mov_b64 exec, 0xffff
  global_store_short v{t+4}, v24, s[{sOUT}:{sOUT+1}]
  s_mov_b64 exec, -1
""")
    if update_epoch:
        g(f"""
  s_cmp_eq_u32 s2, 0
  s_cbranch_scc0 L_done
  v_mov_b32 v24, s{sT}
  v_mov_b32 v25, {WS_EPOCH}
  s_mov_b64 exec, 1
  global_store_dword v25, v24, s[{sWS}:{sWS+1}] sc1
  s_mov_b64 exec, -1
""")

def kd(name,nv,nacc,nsg=96):
    acc=(nv+3)//4*4
    return f""".p2align 6
.amdhsa_kernel {name}
  .amdhsa_next_free_vgpr {acc+nacc if nacc else nv}
  .amdhsa_next_free_sgpr {nsg}
  .amdhsa_accum_offset {acc}
  .amdhsa_group_segment_fixed_size 0
  .amdhsa_kernarg_size 104
  .amdhsa_user_sgpr_count 2
  .amdhsa_user_sgpr_kernarg_segment_ptr 1
  .amdhsa_system_sgpr_workgroup_id_x 1
  .amdhsa_float_denorm_mode_32 3
.end_amdhsa_kernel
"""
def khead(name): return f".globl {name}\n.p2align 8\n.type {name},@function\n{name}:\n"

def load_ptrs(g):
    g(f"""
  s_load_dwordx2 s[{sKA}:{sKA+1}], s[0:1], 8
  s_load_dwordx2 s[{sVA}:{sVA+1}], s[0:1], 16
  s_load_dwordx2 s[{sKB}:{sKB+1}], s[0:1], 48
  s_load_dwordx2 s[{sVB}:{sVB+1}], s[0:1], 56
  s_load_dwordx2 s[{sOUT}:{sOUT+1}], s[0:1], 80
  s_load_dwordx2 s[{sDBG}:{sDBG+1}], s[0:1], 88
  s_load_dwordx2 s[{sWS}:{sWS+1}], s[0:1], 96
  v_lshrrev_b32 v1, 6, v0
  v_and_b32 v{vLANE}, 63, v0
  s_nop 0
  v_readfirstlane_b32 s{sW}, v1
  s_lshr_b32 s{sG}, s2, 3
  s_and_b32 s{sJ}, s2, 7
  s_waitcnt lgkmcnt(0)
""")

def fail_and_done(g,name):
    g(f"""
  s_branch L_done
L_fail:
  v_mov_b32 v24, 0xdead
  v_mov_b32 v25, 4
  s_mov_b64 exec, 1
  global_store_dword v25, v24, s[{sDBG}:{sDBG+1}]
  s_mov_b64 exec, -1
L_done:
  s_endpgm
""")

def uniq(txt,sfx):
    import re
    return re.sub(r'\b(L_[A-Za-z0-9_]+)',lambda m:m.group(1)+sfx,txt)

def k_qproj(o):
    g=G(); name='qproj_kernel'
    g("  s_cmp_ge_u32 s2, 256\n  s_cbranch_scc1 L_done")
    load_ptrs(g); g(f"  v_mov_b32 v0, v{vLANE}")
    load_tags(g,sWS,sT,sTB,sTMP)
    emit_qproj(g,'k1',sWS,sT,'q')
    g("  s_waitcnt vmcnt(0)")
    fail_and_done(g,name)
    return khead(name)+uniq(g.text(),'_k1'), kd(name,128,0), name

def k_main(o):
    g=G(); name=KN+'_kernel' if opt(o,'single',False) else 'main_kernel'
    fuseq=opt(o,'fuseq',False); fuset=opt(o,'fuset',False); pol=o.get('pol','nt')
    size0,tab=chunk_table(o)
    g("  s_cmp_ge_u32 s2, 256\n  s_cbranch_scc1 L_done")
    load_ptrs(g)
    g(f"""
  s_cmp_eq_u32 s{sW}, 4
  s_cbranch_scc1 L_aux
  v_and_b32 v{vOK}, 15, v{vLANE}
  v_lshlrev_b32 v{vOK}, 9, v{vOK}
  v_lshrrev_b32 v{vT}, 4, v{vLANE}
  v_lshl_add_u32 v{vOK}, v{vT}, 4, v{vOK}        ; (l&15)*512 + (l>>4)*16
  v_lshrrev_b32 v{vT}, 5, v{vLANE}
  v_lshlrev_b32 v{vT}, 12, v{vT}
  v_and_b32 v{vOV}, 31, v{vLANE}
  v_lshl_add_u32 v{vOV}, v{vOV}, 4, v{vT}        ; (l>>5)*4096 + (l&31)*16
  s_lshl_b32 s{sTMP+2}, s{sG}, 1
""")
    set_srd_head(g,sKB,sVB,sTMP+2)
    g(f"""
  s_lshl_b32 s{sOFF}, s{sJ}, 20
  s_lshl_b32 s{sTMP}, s{sW}, 18
  s_add_u32 s{sOFF}, s{sOFF}, s{sTMP}
""")
    emit_k_loads(g,0,pol); emit_v_loads(g,0,pol)
    g(f"  s_add_u32 s{sOFF}, s{sOFF}, 8192")
    emit_k_loads(g,1,pol); emit_v_loads(g,1,pol)
    g(f"""
  s_add_u32 s{sOFF}, s{sOFF}, 8192
  s_mov_b32 s{sCNT}, 30
  s_mov_b32 s{sPH}, 0
  s_mov_b32 s{sCPH}, 0
  s_mov_b32 s{sNXT}, 0
  s_mov_b32 s{sKN}, 0
  s_mov_b32 s{sTRIG}, 0
  s_mov_b32 s{sSKIP}, 1
  s_mov_b32 s{sC}, {f2h(SCALE)}
  s_mov_b32 s{sSLO}, 0x05040100
  s_mov_b32 s{sSHI}, 0x07060302
""")
    load_tags(g,sWS,sT,sTB,sTMP)
    g("  s_barrier")
    emit_reset_and_q(g)
    emit_body(g,o,0); emit_body(g,o,1)
    emit_rare(g,0); emit_rare(g,1)
    emit_flush(g,o,0); emit_flush(g,o,1)
    g("L_tail:")
    if fuset:
        g("  s_waitcnt vmcnt(0)")
        emit_role(g,o,1,'B'); emit_role(g,o,0,'A'); emit_final(g,o,'f',True)
        g("  s_waitcnt vmcnt(0)")
    else:
        g("  s_waitcnt vmcnt(0)")
    g("  s_branch L_done")
    g(f"""
L_aux:
  v_mov_b32 v0, v{vLANE}
""")
    load_tags(g,sWS,sT,sTB,sTMP)
    g(f"""
  v_lshlrev_b32 v1, 2, v0
  v_mov_b32 v2, 0
  v_add_u32 v3, {L_CNT}, v1
  s_mov_b64 exec, 0xffff
  ds_write_b32 v3, v2
  s_mov_b64 exec, -1
  v_mov_b32 v2, -1
  v_add_u32 v3, {L_QUEUE}, v1
  ds_write_b32 v3, v2
  ds_write_b32 v3, v2 offset:256
""")
    if fuseq:
        emit_qproj(g,'fq',sWS,sT,'q')
    emit_qgather(g,'m',sWS,sT,sG,"L_fail_aux")
    g("  s_waitcnt lgkmcnt(0)\n  s_barrier")
    if fuset: emit_wo_stage(g,'m')
    g(f"""
  s_mov_b32 s{sKN}, 1
  s_lshl_b32 s{sTMP+8}, s{sG}, 3
  v_mov_b32 v8, s{sTMP+8}
  v_mov_b32 v9, 1
  v_mov_b32 v10, {L_CNT+12}
L_sched:
  s_mov_b32 s{sTMP+9}, 0
L_sched_poll:
  ds_read_b32 v11, v10
  s_waitcnt lgkmcnt(0)
  v_readfirstlane_b32 s{sTMP}, v11
  s_nop 0
  s_cmp_ge_u32 s{sTMP}, s{sKN}
  s_cbranch_scc1 L_sched_go
""")
    spin_guard(g,sTMP+9,"L_fail_aux",limit=4000000)
    g(f"""
  s_sleep 4
  s_branch L_sched_poll
L_sched_go:
""")
    ndyn=sum(c for c,_ in tab)
    if ndyn==0:
        g(f"  s_mov_b32 s{sTMP+1}, -2")
    else:
        g(f"""
  s_mov_b64 exec, 1
  global_atomic_add v11, v8, v9, s[{sDBG}:{sDBG+1}] sc0 sc1
  s_mov_b64 exec, -1
  s_waitcnt vmcnt(0)
  v_readfirstlane_b32 s{sTMP}, v11
  s_mov_b32 s{sTMP+1}, -2
""")
        cbase=0; ubase=8*size0
        for n,(cnt,sz) in enumerate(tab):
            g(f"""
  s_cmp_lt_u32 s{sTMP}, {cbase+cnt}
  s_cbranch_scc0 L_tab_{n}
  s_sub_u32 s{sTMP+2}, s{sTMP}, {cbase}
  s_mul_i32 s{sTMP+2}, s{sTMP+2}, {sz}
  s_add_u32 s{sTMP+2}, s{sTMP+2}, {ubase}
  s_lshl_b32 s{sTMP+2}, s{sTMP+2}, 8
  s_or_b32 s{sTMP+1}, s{sTMP+2}, {sz}
  s_branch L_tab_done
L_tab_{n}:""")
            cbase+=cnt; ubase+=cnt*sz
        assert ubase==256,(ubase)
        g("L_tab_done:")
    g(f"""
  s_lshl_b32 s{sTMP+2}, s{sKN}, 2
  s_add_u32 s{sTMP+2}, s{sTMP+2}, {L_QUEUE}
  v_mov_b32 v12, s{sTMP+2}
  v_mov_b32 v13, s{sTMP+1}
  ds_write_b32 v12, v13
  s_add_u32 s{sKN}, s{sKN}, 1
  s_cmp_eq_u32 s{sTMP+1}, -2
  s_cbranch_scc0 L_sched
  s_waitcnt vmcnt(0) lgkmcnt(0)
  s_branch L_done
L_fail_aux:
  v_mov_b32 v24, 0xdeae
  v_mov_b32 v25, 12
  s_mov_b64 exec, 1
  global_store_dword v25, v24, s[{sDBG}:{sDBG+1}]
  s_mov_b64 exec, -1
""")
    fail_and_done(g,name)
    return khead(name)+uniq(g.text(),'_m'), kd(name,NARCH,NACC), name

def k_role(o):
    g=G(); name='role_kernel'
    g("  s_cmp_ge_u32 s2, 256\n  s_cbranch_scc1 L_done")
    load_ptrs(g)
    load_tags(g,sWS,sT,sTB,sTMP)
    g(f"  s_cmp_eq_u32 s{sW}, 0\n  s_cbranch_scc0 L_nostage\n  v_mov_b32 v0, v{vLANE}")
    emit_wo_stage(g,'r')
    g(f"  v_mov_b32 v{vLANE}, v0\n  s_waitcnt vmcnt(0)\nL_nostage:\n  s_barrier")
    emit_role(g,o,1,'B'); emit_role(g,o,0,'A')
    g("  s_waitcnt vmcnt(0)")
    fail_and_done(g,name)
    return khead(name)+uniq(g.text(),'_k3'), kd(name,NARCH,0), name

def k_final(o):
    g=G(); name='final_kernel'
    g("  s_cmp_ge_u32 s2, 256\n  s_cbranch_scc1 L_done")
    load_ptrs(g)
    load_tags(g,sWS,sT,sTB,sTMP)
    emit_final(g,o,'f',False)
    g("  s_waitcnt vmcnt(0)")
    fail_and_done(g,name)
    return khead(name)+uniq(g.text(),'_k4'), kd(name,NARCH,0), name

HEADER=open('cdna_kernels/'+KN+'.s.ref').read().split('; Override launch geometry')[0]

def build(o):
    fuseq=opt(o,'fuseq',False); fuset=opt(o,'fuset',False)
    single=fuseq and fuset
    o['single']=single
    ks=[]; launch=[]
    if not fuseq:
        ks.append(k_qproj(o)); launch.append(f"; @launch kernel=qproj_kernel grid=(256,1,1) block=(64,1,1) lds={LDS_SIZE}")
    m=k_main(o); ks.append(m)
    if single: launch.append(f"; @launch grid=(256,1,1) block=(320,1,1) lds={LDS_SIZE}")
    else: launch.append(f"; @launch kernel={m[2]} grid=(256,1,1) block=(320,1,1) lds={LDS_SIZE}")
    if not fuset:
        ks.append(k_role(o)); launch.append(f"; @launch kernel=role_kernel grid=(256,1,1) block=(256,1,1) lds={LDS_SIZE}")
        ks.append(k_final(o)); launch.append(f"; @launch kernel=final_kernel grid=(256,1,1) block=(256,1,1) lds={LDS_SIZE}")
    src=HEADER+"\n".join(launch)+'\n.amdgcn_target "amdgcn-amd-amdhsa--gfx950"\n.text\n'
    src+="".join(k[0] for k in ks)
    src+='.section .rodata,"a"\n'+"".join(k[1] for k in ks)
    if opt(o,'meta',False):
        src+=".amdgpu_metadata\n---\namdhsa.version: [1, 2]\namdhsa.kernels:\n"
        for k in ks:
            src+=f"  - .name: {k[2]}\n    .symbol: {k[2]}.kd\n    .kernarg_segment_size: 104\n    .kernarg_segment_align: 8\n    .group_segment_fixed_size: 0\n    .private_segment_fixed_size: 0\n    .wavefront_size: 64\n    .sgpr_count: 96\n    .vgpr_count: 256\n    .max_flat_workgroup_size: 320\n    .args:\n      - {{.name: kernargs, .size: 104, .offset: 0, .value_kind: by_value}}\n"
        src+="...\n.end_amdgpu_metadata\n"
    return src,launch

if __name__=='__main__':
    out=sys.argv[1]; o=dict(a.split('=',1) for a in sys.argv[2:])
    src,launch=build(o)
    open(out,'w').write(src)
    print("\n".join(launch))
```

```python
import sys, struct, math
KN='concat_heads__gqa_block_cached__mha_block_cached__decode'
def f2h(x): return "0x%08x"%struct.unpack('<I',struct.pack('<f',x))[0]

WS_EPOCH=0x0
WS_QG=0x1000
WS_STAT=0x22000
WS_PART=0x40000
WS_Y=0x140000
WS_CNT=0x240000
CNT_STRIDE=4352
WS_STAMP=0x300000
WS_SIZE=0x400000
L_WST=0x0000
L_QC=0x7000
L_FL=0x7800
L_ST=0xD800
L_CNT=0xD900
L_QUEUE=0xDA00
L_OB=0xDC00
L_FB=0xE000
LDS_SIZE=0xE200
SCALE=math.log2(math.e)/16.0

class G:
    def __init__(s): s.L=[]
    def __call__(s,txt):
        for l in txt.strip('\n').split('\n'): s.L.append(l)
    def text(s): return "\n".join(s.L)+"\n"

def opt(o,k,d):
    v=o.get(k,d)
    return type(d)(v) if not isinstance(d,bool) else (str(v).lower() in('1','true','yes'))

def load_tags(g, sWS, sT, sTB, tmp):
    g(f"""
  s_load_dword s{sT}, s[{sWS}:{sWS+1}], {WS_EPOCH}
  s_waitcnt lgkmcnt(0)
  s_add_u32 s{sT}, s{sT}, 1
  s_and_b32 s{tmp}, s{sT}, 0xff
  s_add_u32 s{sTB}, s{tmp}, 0x35
  s_and_b32 s{sTB}, s{sTB}, 0xff
  s_lshl_b32 s{sTB}, s{sTB}, 8
  s_or_b32 s{sTB}, s{sTB}, s{tmp}
  s_add_u32 s{tmp+1}, s{tmp}, 0x6b
  s_and_b32 s{tmp+1}, s{tmp+1}, 0xff
  s_lshl_b32 s{tmp+1}, s{tmp+1}, 16
  s_or_b32 s{sTB}, s{sTB}, s{tmp+1}
  s_add_u32 s{tmp+1}, s{tmp}, 0xa1
  s_lshl_b32 s{tmp+1}, s{tmp+1}, 24
  s_or_b32 s{sTB}, s{sTB}, s{tmp+1}
""")

STAMPS=False
sST=64
def stamp(g,idx,cond_phase=False):
    if not STAMPS: return
    g(f"  s_memrealtime s[80:81]\n  s_waitcnt lgkmcnt(0)\n  s_mov_b32 s{sST+idx}, s80")
def stamp_init(g):
    if not STAMPS: return
    for i in range(16): g(f"  s_mov_b32 s{sST+i}, 0")
def stamp_write(g,nwaves=5):
    if not STAMPS: return
    g(f"""
  s_getreg_b32 s{sST+15}, hwreg(HW_REG_XCC_ID)
  s_mul_i32 s80, s2, {nwaves}
  s_add_u32 s80, s80, s{sW}
  s_lshl_b32 s80, s80, 6
  s_add_u32 s80, s80, {WS_STAMP}
  v_mov_b32 v25, s80""")
    for q in range(4):
        for i in range(4): g(f"  v_mov_b32 v{28+i}, s{sST+4*q+i}")
        g(f"  s_mov_b64 exec, 1\n  global_store_dwordx4 v25, v[28:31], s[{sWS}:{sWS+1}] offset:{16*q}\n  s_mov_b64 exec, -1\n  s_nop 1")
    g("  s_waitcnt vmcnt(0)")

def spin_guard(g, sCnt, lbl_fail, limit=200000):
    g(f"""
  s_add_u32 s{sCnt}, s{sCnt}, 1
  s_cmp_gt_u32 s{sCnt}, {limit}
  s_cbranch_scc1 {lbl_fail}
""")

def emit_qproj(g, u, sWS, sT, lbl):
    g(f"""
  s_lshr_b32 s44, s2, 7
  s_mul_i32 s45, s44, 40
  s_add_u32 s46, s0, s45
  s_addc_u32 s47, s1, 0
  s_load_dwordx2 s[48:49], s[46:47], 0     ; x
  s_load_dwordx2 s[52:53], s[46:47], 24    ; wq
  v_lshrrev_b32 v1, 2, v0
  v_lshlrev_b32 v1, 13, v1            ; (l>>2)*8192
  v_and_b32 v2, 3, v0
  v_lshlrev_b32 v3, 4, v2             ; (l&3)*16
  v_add_u32 v1, v1, v3
  v_mul_u32_u24 v4, 896, v2           ; (l&3)*896
  v_lshrrev_b32 v5, 4, v0             ; g
  v_lshlrev_b32 v6, 4, v5             ; g*16
  v_add_u32 v4, v4, v6
  s_and_b32 s45, s2, 127
  s_lshl_b32 s45, s45, 6
  s_waitcnt lgkmcnt(0)
  s_and_b32 s49, s49, 0xffff
  s_mov_b32 s50, 3584
  s_mov_b32 s51, 0x20000
  s_and_b32 s53, s53, 0xffff
  s_mov_b32 s54, 3670016
  s_mov_b32 s55, 0x20000
  s_mov_b32 m0, {L_WST}
  s_nop 0
""")
    for ld in range(28):
        g(f"  buffer_load_dwordx4 v1, s[52:55], s45 offen nt lds")
        if ld<27:
            g(f"  s_add_u32 s45, s45, {16*8192}\n  s_add_u32 m0, m0, 1024\n  s_nop 0")
    XA=16
    for s in range(14):
        g(f"  buffer_load_dwordx4 v[{XA+4*s}:{XA+4*s+3}], v4, s[48:51], 0 offen offset:{s*64}")
    g(f"""
  v_lshrrev_b32 v6, 2, v0
  v_and_b32 v6, 3, v6
  v_lshl_add_u32 v6, v5, 3, v6        ; 8g + r
  v_lshlrev_b32 v6, 6, v6
  v_lshl_add_u32 v6, v2, 3, v6
  v_add_u32 v6, {L_WST}, v6
  s_waitcnt vmcnt(0)
""")
    TB=72
    first=True
    for batch in range(2):
        for ss in range(7):
            s=batch*7+ss
            for cb in range(2):
                r=TB+8*ss+4*cb
                g(f"  ds_read_b64_tr_b16 v[{r}:{r+1}], v6 offset:{s*2048+cb*32}")
                g(f"  ds_read_b64_tr_b16 v[{r+2}:{r+3}], v6 offset:{s*2048+cb*32+256}")
        g("  s_waitcnt lgkmcnt(0)")
        for ss in range(7):
            s=batch*7+ss
            for cb in range(2):
                r=TB+8*ss+4*cb; d=8+4*cb
                c = "0" if s==0 else f"v[{d}:{d+3}]"
                g(f"  v_mfma_f32_16x16x32_bf16 v[{d}:{d+3}], v[{XA+4*s}:{XA+4*s+3}], v[{r}:{r+3}], {c}")
    g(f"""
  s_nop 7
  v_cmp_eq_u32 vcc, 1, v5
  v_cmp_eq_u32 s[56:57], 2, v5
  v_cmp_eq_u32 s[58:59], 3, v5
  s_nop 1
  v_cndmask_b32 v8, v8, v9, vcc
  v_cndmask_b32 v12, v12, v13, vcc
  v_cndmask_b32 v8, v8, v10, s[56:57]
  v_cndmask_b32 v12, v12, v14, s[56:57]
  v_cndmask_b32 v8, v8, v11, s[58:59]
  v_cndmask_b32 v12, v12, v15, s[58:59]
  v_and_b32 v7, 1, v0                 ; parity
  v_cmp_eq_u32 vcc, 0, v7
  v_mov_b32 v9, 0
  v_mov_b32 v13, 0
  s_nop 1
  v_mov_b32_dpp v9, v8 row_shl:1 row_mask:0xf bank_mask:0xf     ; val0[n+1]
  v_mov_b32_dpp v13, v12 row_shr:1 row_mask:0xf bank_mask:0xf   ; val1[n-1]
  s_nop 1
  v_cndmask_b32 v10, v13, v8, vcc
  v_cndmask_b32 v11, v12, v9, vcc
  v_cvt_pk_bf16_f32 v10, v10, v11
  v_mov_b32 v11, s{sT}
  s_lshr_b32 s44, s2, 7
  s_lshl_b32 s44, s44, 16             ; p*4*16*1024
  s_lshr_b32 s45, s2, 3
  s_and_b32 s45, s45, 15
  s_lshl_b32 s45, s45, 10             ; hq*1024
  s_add_u32 s44, s44, s45
  s_and_b32 s45, s2, 7
  s_lshl_b32 s45, s45, 7              ; ds*16*8
  s_add_u32 s44, s44, s45
  s_add_u32 s44, s44, {WS_QG}
  v_lshlrev_b32 v12, 14, v5           ; b*16*1024
  v_lshlrev_b32 v13, 6, v7            ; cb*8*8
  v_add_u32 v12, v12, v13
  v_and_b32 v13, 15, v0
  v_lshrrev_b32 v13, 1, v13
  v_lshl_add_u32 v12, v13, 3, v12
  v_add_u32 v12, s44, v12
  global_store_dwordx2 v12, v[10:11], s[{sWS}:{sWS+1}] sc1
""")

def emit_qgather(g, u, sWS, sT, sG, lblfail):
    g(f"""
  s_lshl_b32 s44, s{sG}, 11           ; 2g*1024
  s_add_u32 s44, s44, {WS_QG}
  v_lshlrev_b32 v1, 4, v0
  v_add_u32 v1, s44, v1               ; A vectors (p=0)
  v_add_u32 v2, 0x10000, v1           ; B vectors (p=1)
  s_mov_b32 s45, 0
L_qg_poll_{u}:
  global_load_dwordx4 v[8:11], v2, s[{sWS}:{sWS+1}] sc1
  global_load_dwordx4 v[12:15], v2, s[{sWS}:{sWS+1}] offset:1024 sc1
  global_load_dwordx4 v[16:19], v1, s[{sWS}:{sWS+1}] sc1
  global_load_dwordx4 v[20:23], v1, s[{sWS}:{sWS+1}] offset:1024 sc1
  s_waitcnt vmcnt(0)
  v_xor_b32 v9, s{sT}, v9
  v_xor_b32 v11, s{sT}, v11
  v_xor_b32 v13, s{sT}, v13
  v_xor_b32 v15, s{sT}, v15
  v_xor_b32 v17, s{sT}, v17
  v_xor_b32 v19, s{sT}, v19
  v_xor_b32 v21, s{sT}, v21
  v_xor_b32 v23, s{sT}, v23
  v_or3_b32 v9, v9, v11, v13
  v_or3_b32 v15, v15, v17, v19
  v_or3_b32 v9, v9, v21, v23
  v_or_b32 v9, v9, v15
  v_cmp_ne_u32 vcc, 0, v9
  s_cbranch_vccz L_qg_ok_{u}
""")
    spin_guard(g,45,lblfail)
    g(f"""
  s_sleep 2
  s_branch L_qg_poll_{u}
L_qg_ok_{u}:
  v_lshlrev_b32 v3, 3, v0
  v_add_u32 v3, {L_QC}, v3
  v_mov_b32 v9, v10
  v_mov_b32 v13, v14
  v_mov_b32 v17, v18
  v_mov_b32 v21, v22
  ds_write_b64 v3, v[8:9]
  ds_write_b64 v3, v[12:13] offset:512
  ds_write_b64 v3, v[16:17] offset:1024
  ds_write_b64 v3, v[20:21] offset:1536
""")

def emit_wo_stage(g, u):
    g(f"""
  s_load_dwordx2 s[48:49], s[0:1], 32
  s_load_dwordx2 s[52:53], s[0:1], 72
  s_lshr_b32 s44, s2, 2               ; h*4+dq
  s_mul_i32 s44, s44, {64*896}
  s_and_b32 s45, s2, 3
  s_mul_i32 s45, s45, 224
  s_add_u32 s44, s44, s45
  ; per lane: c = lane ; row = c/14, chunk = c%14
  v_mul_u32_u24 v2, 4682, v0          ; c*4682 >> 16 = c/14 for c<64
  v_lshrrev_b32 v2, 16, v2            ; row
  v_mul_u32_u24 v3, 14, v2
  v_sub_u32 v3, v0, v3                ; chunk
  s_waitcnt lgkmcnt(0)
  s_and_b32 s49, s49, 0xffff
  s_mov_b32 s50, 3670016
  s_mov_b32 s51, 0x20000
  s_and_b32 s53, s53, 0xffff
  s_mov_b32 s54, 3670016
  s_mov_b32 s55, 0x20000
""")
    for ld in range(14):
        g(f"""
  v_mul_u32_u24 v4, 896, v2
  v_lshl_add_u32 v4, v3, 4, v4
  s_mov_b32 m0, {L_WST+ld*1024}
  s_nop 0
  buffer_load_dwordx4 v4, s[48:51], s44 offen nt lds
  s_mov_b32 m0, {L_WST+14336+ld*1024}
  s_nop 0
  buffer_load_dwordx4 v4, s[52:55], s44 offen nt lds""")
        if ld<13:
            g(f"""
  v_add_u32 v3, 8, v3
  v_add_u32 v2, 4, v2
  v_cmp_le_u32 vcc, 14, v3
  v_subrev_u32 v5, 14, v3
  v_add_u32 v6, 1, v2
  v_cndmask_b32 v3, v3, v5, vcc
  v_cndmask_b32 v2, v2, v6, vcc""")

sW=3; sG=4; sJ=5; sT=6; sTB=7
sK=8
sV=12
sKA=16; sVA=18; sKB=20; sVB=22; sWS=24; sDBG=26; sOUT=28
sOFF=30; sCNT=31; sPH=32; sNXT=33; sKN=34; sTRIG=35; sSKIP=36; sCPH=37
sC=38; sSLO=39; sSHI=40
sTMP=44
sERR=60
vOK=1; vOV=2; vM=3; vMC=4; vL=5; vLANE=6; vX=7
vS=8; vT=12; vP=20; vB=24; vACC=40; vV=[72,104]
NARCH=136
aK=[0,32]; aQ=64
NACC=96

def chunk_table(o):
    tab=o.get('tab','dyn')
    if tab=='static': return 32, []
    if tab=='dyn': return 12, [(8,8),(8,5),(8,3),(8,2),(16,1)]
    a,b=tab.split(':'); lst=[tuple(int(x) for x in t.split('x')) for t in b.split(',')] if b else []
    return int(a), lst

def emit_k_loads(g,buf,pol):
    for j in range(8):
        r=aK[buf]+4*j
        g(f"  buffer_load_dwordx4 a[{r}:{r+3}], v{vOK}, s[{sK}:{sK+3}], s{sOFF} offen offset:{j*64} {pol}")
def emit_v_loads(g,buf,pol):
    for r8 in range(8):
        r=vV[buf]+4*r8
        g(f"  buffer_load_dwordx4 v[{r}:{r+3}], v{vOV}, s[{sV}:{sV+3}], s{sOFF} offen offset:{r8*512} {pol}")

def set_srd_head(g, sKp, sVp, sIdx):
    g(f"""
  s_lshl_b32 s{sTMP}, s{sIdx}, 23
  s_lshr_b32 s{sTMP+1}, s{sIdx}, 9
  s_add_u32 s{sK}, s{sKp}, s{sTMP}
  s_addc_u32 s{sK+1}, s{sKp+1}, s{sTMP+1}
  s_and_b32 s{sK+1}, s{sK+1}, 0xffff
  s_add_u32 s{sV}, s{sVp}, s{sTMP}
  s_addc_u32 s{sV+1}, s{sVp+1}, s{sTMP+1}
  s_and_b32 s{sV+1}, s{sV+1}, 0xffff
  s_mov_b32 s{sK+2}, 0x800000
  s_mov_b32 s{sV+2}, 0x800000
  s_mov_b32 s{sK+3}, 0x20000
  s_mov_b32 s{sV+3}, 0x20000
""")

def emit_advance(g,o,u):
    size0,tab=chunk_table(o)
    g(f"""
  s_cmp_eq_u32 s{sPH}, 2
  s_cbranch_scc1 L_adv_dyn_{u}
  s_add_u32 s{sPH}, s{sPH}, 1
  s_mov_b32 s{sNXT}, 1
  s_cmp_eq_u32 s{sPH}, 2
  s_cbranch_scc1 L_adv_p2_{u}
  s_lshl_b32 s{sTMP+2}, s{sG}, 1
  s_add_u32 s{sTMP+2}, s{sTMP+2}, 1
""")
    set_srd_head(g,sKB,sVB,sTMP+2)
    g(f"""
  s_lshl_b32 s{sOFF}, s{sJ}, 20
  s_lshl_b32 s{sTMP}, s{sW}, 18
  s_add_u32 s{sOFF}, s{sOFF}, s{sTMP}
  s_mov_b32 s{sCNT}, 32
  s_branch L_adv_done_{u}
L_adv_p2_{u}:
""")
    set_srd_head(g,sKA,sVA,sG)
    g(f"""
  ; first chunk static: start unit = j*size0, per wave size0 tiles
  s_mul_i32 s{sOFF}, s{sJ}, {size0*64*512}
  s_mul_i32 s{sTMP}, s{sW}, {size0*16*512}
  s_add_u32 s{sOFF}, s{sOFF}, s{sTMP}
  s_mov_b32 s{sCNT}, {size0}
  s_mov_b32 s{sKN}, 1
  s_mov_b32 s{sTRIG}, 3
  s_branch L_adv_done_{u}
L_adv_dyn_{u}:
  s_lshl_b32 s{sTMP}, s{sKN}, 2
  s_add_u32 s{sTMP}, s{sTMP}, {L_QUEUE}
  v_mov_b32 v{vX}, s{sTMP}
  s_mov_b32 s{sTMP+2}, 0
L_adv_poll_{u}:
  ds_read_b32 v{vT}, v{vX}
  s_waitcnt lgkmcnt(0)
  v_readfirstlane_b32 s{sTMP+1}, v{vT}
  s_nop 0
  s_cmp_eq_u32 s{sTMP+1}, -1
  s_cbranch_scc0 L_adv_got_{u}
""")
    spin_guard(g,sTMP+2,"L_fail")
    if STAMPS: g(f"  s_add_u32 s{sST+11}, s{sST+11}, 1")
    g(f"""
  s_sleep 1
  s_branch L_adv_poll_{u}
L_adv_got_{u}:
  s_add_u32 s{sKN}, s{sKN}, 1
  s_cmp_eq_u32 s{sTMP+1}, -2
  s_cbranch_scc1 L_adv_end_{u}
  s_and_b32 s{sCNT}, s{sTMP+1}, 0xff
  s_lshr_b32 s{sOFF}, s{sTMP+1}, 8
  s_lshl_b32 s{sOFF}, s{sOFF}, 15
  s_mul_i32 s{sTMP}, s{sW}, s{sCNT}
  s_lshl_b32 s{sTMP}, s{sTMP}, 13
  s_add_u32 s{sOFF}, s{sOFF}, s{sTMP}
  s_branch L_adv_done_{u}
L_adv_end_{u}:
  s_mov_b32 s{sNXT}, 2
  s_mov_b32 s{sK+2}, 0
  s_mov_b32 s{sV+2}, 0
  s_mov_b32 s{sCNT}, 0x10000
  s_mov_b32 s{sTRIG}, 0
  s_mov_b32 s{sOFF}, 0
L_adv_done_{u}:
""")

def emit_body(g,o,b):
    pol=o.get('pol','nt'); vearly=opt(o,'vearly',False)
    nb=b^1; u=f"b{b}"
    g(f"L_body_{u}:")
    g(f"  s_waitcnt vmcnt(8)")
    for j in range(8):
        c="0" if j==0 else f"v[{vS}:{vS+3}]"
        g(f"  v_mfma_f32_16x16x32_bf16 v[{vS}:{vS+3}], a[{aK[b]+4*j}:{aK[b]+4*j+3}], a[{aQ+4*j}:{aQ+4*j+3}], {c}")
    g(f"""
  s_cmp_eq_u32 s{sSKIP}, 0
  s_cbranch_scc0 L_nokld_{u}
  s_cmp_eq_u32 s{sCNT}, 0
  s_cbranch_scc0 L_kld_{u}""")
    emit_advance(g,o,u)
    g(f"L_kld_{u}:")
    emit_k_loads(g,nb,pol)
    if vearly: emit_v_loads(g,nb,pol)
    g(f"L_nokld_{u}:")
    t=vT
    g(f"""
  s_nop 5
  v_max3_f32 v{t}, v{vS}, v{vS+1}, v{vS+2}
  v_max_f32 v{t}, v{t}, v{vS+3}
  v_mov_b32 v{t+1}, v{t}
  s_nop 1
  v_permlane16_swap_b32 v{t}, v{t+1}
  v_max_f32 v{t}, v{t}, v{t+1}
  v_mov_b32 v{t+1}, v{t}
  s_nop 1
  v_permlane32_swap_b32 v{t}, v{t+1}
  v_max_f32 v{t}, v{t}, v{t+1}
  v_cmp_gt_f32 vcc, v{t}, v{vM}
  s_cbranch_vccnz L_rare_{u}
L_back_{u}:
  v_fma_f32 v{t+2}, v{vS}, s{sC}, -v{vMC}
  v_fma_f32 v{t+3}, v{vS+1}, s{sC}, -v{vMC}
  v_fma_f32 v{t+4}, v{vS+2}, s{sC}, -v{vMC}
  v_fma_f32 v{t+5}, v{vS+3}, s{sC}, -v{vMC}
  v_exp_f32 v{t+2}, v{t+2}
  v_exp_f32 v{t+3}, v{t+3}
  v_exp_f32 v{t+4}, v{t+4}
  v_exp_f32 v{t+5}, v{t+5}
  v_add_f32 v{t+6}, v{t+2}, v{t+3}
  v_cvt_pk_bf16_f32 v{vP}, v{t+2}, v{t+3}
  v_add_f32 v{t+7}, v{t+4}, v{t+5}
  v_cvt_pk_bf16_f32 v{vP+1}, v{t+4}, v{t+5}
  v_add_f32 v{t+6}, v{t+6}, v{t+7}
  v_mov_b32 v{vP+2}, v{vP}
  v_mov_b32 v{vP+3}, v{vP+1}
  v_add_f32 v{vL}, v{vL}, v{t+6}
  s_nop 0
  v_permlane16_swap_b32 v{vP}, v{vP+2}
  v_permlane16_swap_b32 v{vP+1}, v{vP+3}
  s_waitcnt vmcnt({16 if vearly else 8})
""")
    for t2 in range(2):
        R=[vV[b]+4*(4*t2+rr) for rr in range(4)]
        for dw in range(4):
            g(f"  v_perm_b32 v{vB+4*dw}, v{R[1]+dw}, v{R[0]+dw}, s{sSLO}")
            g(f"  v_perm_b32 v{vB+4*dw+1}, v{R[3]+dw}, v{R[2]+dw}, s{sSLO}")
            g(f"  v_perm_b32 v{vB+4*dw+2}, v{R[1]+dw}, v{R[0]+dw}, s{sSHI}")
            g(f"  v_perm_b32 v{vB+4*dw+3}, v{R[3]+dw}, v{R[2]+dw}, s{sSHI}")
        for jj in range(8):
            a=vACC+4*jj
            g(f"  v_mfma_f32_4x4x4_16b_bf16 v[{a}:{a+3}], v[{vP+2*t2}:{vP+2*t2+1}], v[{vB+2*jj}:{vB+2*jj+1}], v[{a}:{a+3}]")
    g(f"""
  s_cmp_eq_u32 s{sSKIP}, 0
  s_cbranch_scc0 L_novld_{u}""")
    if not vearly: emit_v_loads(g,nb,pol)
    g(f"""
  s_add_u32 s{sOFF}, s{sOFF}, 8192
  s_sub_u32 s{sCNT}, s{sCNT}, 1
  s_cmp_lt_u32 s{sCNT}, s{sTRIG}
  s_cbranch_scc0 L_novld_{u}
  v_mov_b32 v{vX}, {L_CNT+12}
  v_mov_b32 v{vT}, s{sKN}
  ds_max_u32 v{vX}, v{vT}
L_novld_{u}:
  s_mov_b32 s{sSKIP}, 0
  s_cmp_eq_u32 s{sNXT}, 0
  s_cbranch_scc0 L_flush_{u}
""")
    if b==1: g("  s_branch L_body_b0")

def emit_rare(g,b):
    u=f"b{b}"; t=vT
    g(f"""
L_rare_{u}:
  v_max_f32 v{t+1}, v{t}, v{vM}
  v_sub_f32 v{t+2}, v{vM}, v{t+1}
  v_mul_f32 v{t+2}, s{sC}, v{t+2}
  v_exp_f32 v{t+2}, v{t+2}
  v_mov_b32 v{vM}, v{t+1}
  v_mul_f32 v{vMC}, s{sC}, v{t+1}
  v_mul_f32 v{vL}, v{vL}, v{t+2}
  s_nop 0
  v_mov_b32_dpp v{t+3}, v{t+2} quad_perm:[0,0,2,2] row_mask:0xf bank_mask:0xf
  v_mov_b32_dpp v{t+4}, v{t+2} quad_perm:[1,1,3,3] row_mask:0xf bank_mask:0xf
""")
    for jj in range(8):
        g(f"  v_mul_f32 v{vACC+4*jj}, v{vACC+4*jj}, v{t+3}")
        g(f"  v_mul_f32 v{vACC+4*jj+1}, v{vACC+4*jj+1}, v{t+4}")
    g(f"  s_branch L_back_{u}")

def tag_embed(g, regs, vTagv, sSel):
    for k,r in enumerate(regs):
        g(f"  s_mov_b32 s{sSel}, {hex(0x07060500|k)}\n  v_perm_b32 v{r}, v{r}, v{vTagv}, s{sSel}")

def emit_flush(g,o,b):
    u=f"b{b}"; t=vT
    g(f"""
L_flush_{u}:
  s_nop 4""")
    if STAMPS:
        g(f"  s_memrealtime s[80:81]\n  s_waitcnt lgkmcnt(0)\n  s_cmp_eq_u32 s{sCPH}, 0\n  s_cselect_b32 s{sST+3}, s80, s{sST+3}\n  s_cmp_eq_u32 s{sCPH}, 1\n  s_cselect_b32 s{sST+4}, s80, s{sST+4}\n  s_cmp_eq_u32 s{sCPH}, 2\n  s_cselect_b32 s{sST+5}, s80, s{sST+5}")
    for jj in range(8):
        a=vACC+4*jj
        g(f"  v_permlane32_swap_b32 v{a}, v{a+1}")
    for jj in range(8):
        a=vACC+4*jj
        g(f"  v_add_f32 v{vB+jj}, v{a}, v{a+1}")
    g(f"""
  v_mov_b32 v{t}, v{vL}
  s_nop 1
  v_permlane16_swap_b32 v{vL}, v{t}
  v_add_f32 v{vL}, v{vL}, v{t}
  v_mov_b32 v{t}, v{vL}
  s_nop 1
  v_permlane32_swap_b32 v{vL}, v{t}
  v_add_f32 v{vL}, v{vL}, v{t}
  s_lshl_b32 s{sTMP}, s{sCPH}, 13
  s_lshl_b32 s{sTMP+1}, s{sW}, 11
  s_add_u32 s{sTMP}, s{sTMP}, s{sTMP+1}
  s_add_u32 s{sTMP}, s{sTMP}, {L_FL}
  v_lshlrev_b32 v{t}, 5, v{vLANE}
  v_add_u32 v{t}, s{sTMP}, v{t}
  ds_write_b128 v{t}, v[{vB}:{vB+3}]
  ds_write_b128 v{t}, v[{vB+4}:{vB+7}] offset:16
  s_lshl_b32 s{sTMP}, s{sCPH}, 6
  s_lshl_b32 s{sTMP+1}, s{sW}, 4
  s_add_u32 s{sTMP}, s{sTMP}, s{sTMP+1}
  s_add_u32 s{sTMP}, s{sTMP}, {L_ST}
  v_and_b32 v{t+1}, 1, v{vLANE}
  v_lshlrev_b32 v{t+1}, 3, v{t+1}
  v_add_u32 v{t+1}, s{sTMP}, v{t+1}
  v_mov_b32 v{t+2}, v{vMC}
  v_mov_b32 v{t+3}, v{vL}
  ds_write_b64 v{t+1}, v[{t+2}:{t+3}]
  s_waitcnt lgkmcnt(0)
  s_lshl_b32 s{sTMP}, s{sCPH}, 2
  s_add_u32 s{sTMP}, s{sTMP}, {L_CNT}
  v_mov_b32 v{t}, s{sTMP}
  v_mov_b32 v{t+1}, 1
  s_mov_b64 exec, 1
  ds_add_rtn_u32 v{t+2}, v{t}, v{t+1}
  s_mov_b64 exec, -1
  s_waitcnt lgkmcnt(0)
  v_readfirstlane_b32 s{sTMP}, v{t+2}
  s_nop 0
  s_cmp_eq_u32 s{sTMP}, 3
  s_cbranch_scc0 L_nomerge_{u}
""")
    g(f"""
  s_and_b32 s{sTMP+2}, s{sG}, 7
  s_lshl_b32 s{sTMP+2}, s{sTMP+2}, 1          ; hq0
  s_lshr_b32 s{sTMP+3}, s{sG}, 3              ; b
  s_cmp_eq_u32 s{sCPH}, 2
  s_cselect_b32 s{sTMP+4}, 0, 16              ; p*16
  s_cselect_b32 s{sTMP+5}, 0, s{sCPH}
  s_cselect_b32 s{sTMP+6}, 2, 1
  s_add_u32 s{sTMP+2}, s{sTMP+2}, s{sTMP+4}
  s_add_u32 s{sTMP+2}, s{sTMP+2}, s{sTMP+5}   ; p*16+hq
  s_lshl_b32 s{sTMP+2}, s{sTMP+2}, 2
  s_add_u32 s{sTMP+2}, s{sTMP+2}, s{sTMP+3}   ; *4 + b
  s_lshl_b32 s{sTMP+2}, s{sTMP+2}, 3
  s_add_u32 s{sTMP+2}, s{sTMP+2}, s{sJ}
  s_mov_b32 s{sTMP+7}, 0                      ; hh
  v_mov_b32 v{vX}, s{sTB}
L_merge_{u}:
  s_lshl_b32 s{sTMP}, s{sCPH}, 6
  s_lshl_b32 s{sTMP+1}, s{sTMP+7}, 3
  s_add_u32 s{sTMP}, s{sTMP}, s{sTMP+1}
  s_add_u32 s{sTMP}, s{sTMP}, {L_ST}
  v_mov_b32 v{t}, s{sTMP}
  ds_read_b64 v[{vB}:{vB+1}], v{t}
  ds_read_b64 v[{vB+2}:{vB+3}], v{t} offset:16
  ds_read_b64 v[{vB+4}:{vB+5}], v{t} offset:32
  ds_read_b64 v[{vB+6}:{vB+7}], v{t} offset:48
  s_lshl_b32 s{sTMP}, s{sCPH}, 13
  s_lshl_b32 s{sTMP+1}, s{sTMP+7}, 10
  s_add_u32 s{sTMP}, s{sTMP}, s{sTMP+1}
  s_add_u32 s{sTMP}, s{sTMP}, {L_FL}
  v_lshlrev_b32 v{t+1}, 4, v{vLANE}
  v_add_u32 v{t+1}, s{sTMP}, v{t+1}
  ds_read_b128 v[{vACC}:{vACC+3}], v{t+1}
  ds_read_b128 v[{vACC+4}:{vACC+7}], v{t+1} offset:2048
  ds_read_b128 v[{vACC+8}:{vACC+11}], v{t+1} offset:4096
  ds_read_b128 v[{vACC+12}:{vACC+15}], v{t+1} offset:6144
  s_waitcnt lgkmcnt(0)
  v_max3_f32 v{t+2}, v{vB}, v{vB+2}, v{vB+4}
  v_max_f32 v{t+2}, v{t+2}, v{vB+6}           ; M
  v_sub_f32 v{vB}, v{vB}, v{t+2}
  v_sub_f32 v{vB+2}, v{vB+2}, v{t+2}
  v_sub_f32 v{vB+4}, v{vB+4}, v{t+2}
  v_sub_f32 v{vB+6}, v{vB+6}, v{t+2}
  v_exp_f32 v{vB}, v{vB}
  v_exp_f32 v{vB+2}, v{vB+2}
  v_exp_f32 v{vB+4}, v{vB+4}
  v_exp_f32 v{vB+6}, v{vB+6}
  s_nop 0
  v_mul_f32 v{t+3}, v{vB}, v{vB+1}
  v_fmac_f32 v{t+3}, v{vB+2}, v{vB+3}
  v_fmac_f32 v{t+3}, v{vB+4}, v{vB+5}
  v_fmac_f32 v{t+3}, v{vB+6}, v{vB+7}         ; L
""")
    for k in range(4):
        g(f"""  v_mul_f32 v{vB+8+k}, v{vB}, v{vACC+k}
  v_fmac_f32 v{vB+8+k}, v{vB+2}, v{vACC+4+k}
  v_fmac_f32 v{vB+8+k}, v{vB+4}, v{vACC+8+k}
  v_fmac_f32 v{vB+8+k}, v{vB+6}, v{vACC+12+k}""")
    tag_embed(g,[vB+8,vB+9,vB+10,vB+11],vX,sTMP)
    g(f"""
  s_lshl_b32 s{sTMP}, s{sTMP+2}, 10
  s_add_u32 s{sTMP}, s{sTMP}, {WS_PART}
  v_lshlrev_b32 v{t}, 4, v{vLANE}
  v_add_u32 v{t}, s{sTMP}, v{t}
  global_store_dwordx4 v{t}, v[{vB+8}:{vB+11}], s[{sWS}:{sWS+1}] sc1
  v_mov_b32 v{vB+12}, v{t+2}
  v_mov_b32 v{vB+13}, v{t+3}
  v_mov_b32 v{vB+14}, s{sT}
  v_mov_b32 v{vB+15}, s{sT}
  s_lshl_b32 s{sTMP}, s{sTMP+2}, 4
  s_add_u32 s{sTMP}, s{sTMP}, {WS_STAT}
  v_mov_b32 v{t}, s{sTMP}
  s_mov_b64 exec, 1
  global_store_dwordx4 v{t}, v[{vB+12}:{vB+15}], s[{sWS}:{sWS+1}] sc1
  s_mov_b64 exec, -1
  s_add_u32 s{sTMP+7}, s{sTMP+7}, 1
  s_add_u32 s{sTMP+2}, s{sTMP+2}, 32
  s_cmp_lt_u32 s{sTMP+7}, s{sTMP+6}
  s_cbranch_scc1 L_merge_{u}
L_nomerge_{u}:
  s_cmp_eq_u32 s{sNXT}, 2
  s_cbranch_scc1 L_tail
  s_add_u32 s{sCPH}, s{sCPH}, 1
  s_mov_b32 s{sNXT}, 0
""")
    emit_reset_and_q(g)
    g(f"  s_branch L_body_b{b^1}")

def emit_reset_and_q(g):
    t=vT
    g(f"""
  v_and_b32 v{t}, 1, v{vLANE}
  s_cmp_eq_u32 s{sCPH}, 2
  s_cselect_b32 s{sTMP}, 512, 0
  v_mul_u32_u24 v{t}, s{sTMP}, v{t}
  s_lshl_b32 s{sTMP}, s{sCPH}, 9
  s_add_u32 s{sTMP}, s{sTMP}, {L_QC}
  v_add_u32 v{t}, s{sTMP}, v{t}
  v_lshrrev_b32 v{t+1}, 4, v{vLANE}
  v_lshl_add_u32 v{t}, v{t+1}, 4, v{t}
""")
    for j in range(8):
        g(f"  ds_read_b128 a[{aQ+4*j}:{aQ+4*j+3}], v{t} offset:{j*64}")
    g(f"""
  v_mov_b32 v{vM}, 0xff800000
  v_mov_b32 v{vMC}, 0xff800000
  v_mov_b32 v{vL}, 0""")
    for r in range(32): g(f"  v_mov_b32 v{vACC+r}, 0")
    g("  s_waitcnt lgkmcnt(0)")

def emit_role(g,o,p,u):
    t=vT; D0=24; D1=28; S0=32; S1=36
    g(f"""
  s_lshr_b32 s{sTMP}, s2, 4                   ; h
  s_add_u32 s{sTMP}, s{sTMP}, {p*16}
  s_lshl_b32 s{sTMP}, s{sTMP}, 2
  s_add_u32 s{sTMP}, s{sTMP}, s{sW}           ; (p*16+h)*4 + b
  s_lshl_b32 s{sTMP}, s{sTMP}, 3
  s_lshl_b32 s{sTMP+1}, s{sTMP}, 4
  s_add_u32 s{sTMP+1}, s{sTMP+1}, {WS_STAT}
  s_lshl_b32 s{sTMP+2}, s{sTMP}, 10
  s_add_u32 s{sTMP+2}, s{sTMP+2}, {WS_PART}
  s_lshr_b32 s{sTMP+3}, s2, 2
  s_and_b32 s{sTMP+3}, s{sTMP+3}, 3           ; dq
  s_lshl_b32 s{sTMP+3}, s{sTMP+3}, 8
  s_add_u32 s{sTMP+2}, s{sTMP+2}, s{sTMP+3}
  v_lshrrev_b32 v{t}, 4, v{vLANE}             ; grp
  v_and_b32 v{t+1}, 15, v{vLANE}
  v_lshlrev_b32 v{t+2}, 4, v{t}
  v_add_u32 v{t+2}, s{sTMP+1}, v{t+2}
  v_lshlrev_b32 v{t+3}, 10, v{t}
  v_lshl_add_u32 v{t+3}, v{t+1}, 4, v{t+3}
  v_add_u32 v{t+3}, s{sTMP+2}, v{t+3}
  v_add_u32 v{t+4}, 4096, v{t+3}              ; j=grp+4
  s_mov_b32 s{sTMP+4}, 0
  s_mov_b32 s{sTMP+5}, 0x0c0c0400
  s_mov_b32 s{sTMP+6}, 0x04000c0c
L_role_poll_{u}:
  global_load_dwordx4 v[{S0}:{S0+3}], v{t+2}, s[{sWS}:{sWS+1}] sc1
  global_load_dwordx4 v[{S1}:{S1+3}], v{t+2}, s[{sWS}:{sWS+1}] offset:64 sc1
  global_load_dwordx4 v[{D0}:{D0+3}], v{t+3}, s[{sWS}:{sWS+1}] sc1
  global_load_dwordx4 v[{D1}:{D1+3}], v{t+4}, s[{sWS}:{sWS+1}] sc1
  s_waitcnt vmcnt(0)
  v_perm_b32 v{t+5}, v{D0+1}, v{D0}, s{sTMP+5}      ; [b0(D0), b0(D0+1), 0, 0]
  v_perm_b32 v{t+6}, v{D0+3}, v{D0+2}, s{sTMP+6}    ; [0,0,b0(D0+2), b0(D0+3)]
  v_or_b32 v{t+5}, v{t+5}, v{t+6}
  v_perm_b32 v{t+6}, v{D1+1}, v{D1}, s{sTMP+5}
  v_perm_b32 v{t+7}, v{D1+3}, v{D1+2}, s{sTMP+6}
  v_or_b32 v{t+6}, v{t+6}, v{t+7}
  v_xor_b32 v{t+5}, s{sTB}, v{t+5}
  v_xor_b32 v{t+6}, s{sTB}, v{t+6}
  v_or_b32 v{t+5}, v{t+5}, v{t+6}
  v_xor_b32 v{t+6}, s{sT}, v{S0+2}
  v_xor_b32 v{t+7}, s{sT}, v{S1+2}
  v_or3_b32 v{t+5}, v{t+5}, v{t+6}, v{t+7}
  v_xor_b32 v{t+6}, s{sT}, v{S0+3}
  v_xor_b32 v{t+7}, s{sT}, v{S1+3}
  v_or3_b32 v{t+5}, v{t+5}, v{t+6}, v{t+7}
  v_cmp_ne_u32 vcc, 0, v{t+5}
  s_cbranch_vccz L_role_ok_{u}
""")
    spin_guard(g,sTMP+4,"L_fail")
    g(f"""
  s_sleep 1
  s_branch L_role_poll_{u}
L_role_ok_{u}:
  v_max_f32 v{t+5}, v{S0}, v{S1}
  v_mov_b32 v{t+6}, v{t+5}
  s_nop 1
  v_permlane16_swap_b32 v{t+5}, v{t+6}
  v_max_f32 v{t+5}, v{t+5}, v{t+6}
  v_mov_b32 v{t+6}, v{t+5}
  s_nop 1
  v_permlane32_swap_b32 v{t+5}, v{t+6}
  v_max_f32 v{t+5}, v{t+5}, v{t+6}            ; M
  v_sub_f32 v{S0}, v{S0}, v{t+5}
  v_sub_f32 v{S1}, v{S1}, v{t+5}
  v_exp_f32 v{S0}, v{S0}
  v_exp_f32 v{S1}, v{S1}
  s_nop 0
  v_mul_f32 v{t+5}, v{S0}, v{S0+1}
  v_fmac_f32 v{t+5}, v{S1}, v{S1+1}           ; partial L
""")
    for k in range(4):
        g(f"  v_mul_f32 v{D0+k}, v{S0}, v{D0+k}\n  v_fmac_f32 v{D0+k}, v{S1}, v{D1+k}")
    vals=[D0,D0+1,D0+2,D0+3,t+5]
    tmp=[D1,D1+1,D1+2,D1+3,t+6]
    for sw in ('v_permlane16_swap_b32','v_permlane32_swap_b32'):
        for v,w_ in zip(vals,tmp): g(f"  v_mov_b32 v{w_}, v{v}")
        g("  s_nop 1")
        for v,w_ in zip(vals,tmp): g(f"  {sw} v{v}, v{w_}")
        for v,w_ in zip(vals,tmp): g(f"  v_add_f32 v{v}, v{v}, v{w_}")
    g(f"""
  v_rcp_f32 v{t+5}, v{t+5}
  s_nop 0
  v_mul_f32 v{D0}, v{D0}, v{t+5}
  v_mul_f32 v{D0+1}, v{D0+1}, v{t+5}
  v_mul_f32 v{D0+2}, v{D0+2}, v{t+5}
  v_mul_f32 v{D0+3}, v{D0+3}, v{t+5}
  v_cvt_pk_bf16_f32 v{D0}, v{D0}, v{D0+1}
  v_cvt_pk_bf16_f32 v{D0+1}, v{D0+2}, v{D0+3}
  s_lshl_b32 s{sTMP}, s{sW}, 7
  s_add_u32 s{sTMP}, s{sTMP}, {L_OB+p*512}
  v_lshlrev_b32 v{t+1}, 3, v{t+1}
  v_add_u32 v{t+1}, s{sTMP}, v{t+1}
  ds_write_b64 v{t+1}, v[{D0}:{D0+1}]
  s_waitcnt lgkmcnt(0)
  s_barrier
  v_and_b32 v{t+1}, 3, v{vLANE}
  v_lshlrev_b32 v{t+2}, 7, v{t+1}
  v_lshl_add_u32 v{t+2}, v{t}, 4, v{t+2}
  v_add_u32 v{t+2}, {L_OB+p*512}, v{t+2}
  ds_read_b128 v[40:43], v{t+2}
  ds_read_b128 v[44:47], v{t+2} offset:64
  v_lshrrev_b32 v{t+3}, 2, v{vLANE}
  v_and_b32 v{t+3}, 3, v{t+3}
  v_lshl_add_u32 v{t+3}, v{t}, 3, v{t+3}
  v_mul_u32_u24 v{t+3}, 224, v{t+3}
  v_lshl_add_u32 v{t+3}, v{t+1}, 3, v{t+3}
  s_lshl_b32 s{sTMP}, s{sW}, 6
  s_add_u32 s{sTMP}, s{sTMP}, {L_WST+p*14336}
  v_add_u32 v{t+3}, s{sTMP}, v{t+3}
""")
    TBq=48
    for c in range(2):
        for s in range(2):
            r=TBq+8*c+4*s
            g(f"  ds_read_b64_tr_b16 v[{r}:{r+1}], v{t+3} offset:{c*32+s*32*224}")
            g(f"  ds_read_b64_tr_b16 v[{r+2}:{r+3}], v{t+3} offset:{c*32+s*32*224+4*224}")
    g("  s_waitcnt lgkmcnt(0)")
    for c in range(2):
        d=64+4*c
        g(f"  v_mfma_f32_16x16x32_bf16 v[{d}:{d+3}], v[40:43], v[{TBq+8*c}:{TBq+8*c+3}], 0")
    for c in range(2):
        d=64+4*c
        g(f"  v_mfma_f32_16x16x32_bf16 v[{d}:{d+3}], v[44:47], v[{TBq+8*c+4}:{TBq+8*c+7}], v[{d}:{d+3}]")
    g(f"""
  v_and_b32 v{t+4}, 1, v{t}
  v_cmp_eq_u32 vcc, 1, v{t+4}
  s_nop 6
  v_cndmask_b32 v64, v64, v68, vcc
  v_cndmask_b32 v65, v65, v69, vcc
  v_cndmask_b32 v66, v66, v70, vcc
  v_cndmask_b32 v67, v67, v71, vcc
  v_mov_b32 v{vX}, s{sTB}
""")
    tag_embed(g,[64,65,66,67],vX,sTMP)
    g(f"""
  s_and_b32 s{sTMP}, s2, 3
  s_add_u32 s{sTMP}, s{sTMP}, {p*4}
  s_lshl_b32 s{sTMP}, s{sTMP}, 6
  s_lshr_b32 s{sTMP+1}, s2, 2
  s_add_u32 s{sTMP}, s{sTMP}, s{sTMP+1}
  s_mul_i32 s{sTMP}, s{sTMP}, {112*16}
  s_lshl_b32 s{sTMP+1}, s{sW}, 9              ; 2w*16*16
  s_add_u32 s{sTMP}, s{sTMP}, s{sTMP+1}
  s_add_u32 s{sTMP}, s{sTMP}, {WS_Y}
  v_and_b32 v{t+5}, 15, v{vLANE}
  v_lshlrev_b32 v{t+5}, 4, v{t+5}
  v_lshl_add_u32 v{t+5}, v{t+4}, 8, v{t+5}    ; + (g&1)*256
  v_add_u32 v{t+5}, s{sTMP}, v{t+5}
  s_cmp_eq_u32 s{sW}, 3
  s_cselect_b32 s{sTMP+2}, 0xffff, -1
  s_mov_b32 s{sTMP+3}, 0
  s_mov_b64 exec, s[{sTMP+2}:{sTMP+3}]
  global_store_dwordx4 v{t+5}, v[64:67], s[{sWS}:{sWS+1}] sc1
  s_mov_b64 exec, -1
""")

def emit_final(g,o,u,update_epoch):
    t=vT
    g(f"""
  ; ---- finalizer f=s2<224 : p=f/112, r=f%112, cq=r/28, cc=(r%28)*4
  s_cmp_ge_u32 s2, 224
  s_cbranch_scc1 L_done
  s_cmp_ge_u32 s2, 112
  s_cselect_b32 s{sTMP}, 1, 0                 ; p
  s_mul_i32 s{sTMP+1}, s{sTMP}, 112
  s_sub_u32 s{sTMP+1}, s2, s{sTMP+1}          ; r
  s_mul_i32 s{sTMP+2}, s{sTMP+1}, 2341
  s_lshr_b32 s{sTMP+2}, s{sTMP+2}, 16         ; cq = r/28
  s_mul_i32 s{sTMP+3}, s{sTMP+2}, 28
  s_sub_u32 s{sTMP+3}, s{sTMP+1}, s{sTMP+3}
  s_lshl_b32 s{sTMP+3}, s{sTMP+3}, 2          ; cc
  s_lshl_b32 s{sTMP+4}, s{sTMP}, 2
  s_add_u32 s{sTMP+4}, s{sTMP+4}, s{sTMP+2}
  s_lshl_b32 s{sTMP+4}, s{sTMP+4}, 6
  s_lshl_b32 s{sTMP+5}, s{sW}, 4
  s_add_u32 s{sTMP+4}, s{sTMP+4}, s{sTMP+5}
  s_mul_i32 s{sTMP+4}, s{sTMP+4}, 1792
  s_lshl_b32 s{sTMP+5}, s{sTMP+3}, 4
  s_add_u32 s{sTMP+4}, s{sTMP+4}, s{sTMP+5}
  s_add_u32 s{sTMP+4}, s{sTMP+4}, {WS_Y}
  v_lshrrev_b32 v{t}, 2, v{vLANE}
  v_mul_u32_u24 v{t}, 1792, v{t}
  v_and_b32 v{t+1}, 3, v{vLANE}
  v_lshl_add_u32 v{t}, v{t+1}, 4, v{t}
  v_add_u32 v{t}, s{sTMP+4}, v{t}
  s_mov_b32 s{sTMP+7}, 0
  s_mov_b32 s{sTMP+5}, 0x0c0c0400
  s_mov_b32 s{sTMP+6}, 0x04000c0c
L_fin_poll_{u}:
  global_load_dwordx4 v[24:27], v{t}, s[{sWS}:{sWS+1}] sc1
  s_waitcnt vmcnt(0)
  v_perm_b32 v{t+2}, v25, v24, s{sTMP+5}
  v_perm_b32 v{t+3}, v27, v26, s{sTMP+6}
  v_or_b32 v{t+2}, v{t+2}, v{t+3}
  v_cmp_ne_u32 vcc, s{sTB}, v{t+2}
  s_cbranch_vccz L_fin_ok_{u}
""")
    spin_guard(g,sTMP+7,"L_fail")
    g(f"""
  s_sleep 1
  s_branch L_fin_poll_{u}
L_fin_ok_{u}:
""")
    for rr in (4,8):
        for k in range(4): g(f"  v_add_f32_dpp v{28+k}, v{24+k}, v{24+k} row_ror:{rr} row_mask:0xf bank_mask:0xf")
        for k in range(4): g(f"  v_mov_b32 v{24+k}, v{28+k}")
        g("  s_nop 1")
    for sw in ('v_permlane16_swap_b32','v_permlane32_swap_b32'):
        for k in range(4): g(f"  v_mov_b32 v{28+k}, v{24+k}")
        g("  s_nop 1")
        for k in range(4): g(f"  {sw} v{24+k}, v{28+k}")
        for k in range(4): g(f"  v_add_f32 v{24+k}, v{24+k}, v{28+k}")
    g(f"""
  s_lshl_b32 s{sTMP+4}, s{sW}, 6
  s_add_u32 s{sTMP+4}, s{sTMP+4}, {L_FB}
  v_lshlrev_b32 v{t+2}, 4, v{t+1}
  v_add_u32 v{t+2}, s{sTMP+4}, v{t+2}
  ds_write_b128 v{t+2}, v[24:27]
  s_waitcnt lgkmcnt(0)
  s_barrier
  s_cmp_eq_u32 s{sW}, 0
  s_cbranch_scc0 L_done
  v_lshrrev_b32 v{t+3}, 2, v{vLANE}
  v_and_b32 v{t+3}, 3, v{t+3}                 ; b
  v_lshlrev_b32 v{t+4}, 4, v{t+1}
  v_lshl_add_u32 v{t+4}, v{t+3}, 2, v{t+4}
  v_add_u32 v{t+4}, {L_FB}, v{t+4}
  ds_read_b32 v24, v{t+4}
  ds_read_b32 v25, v{t+4} offset:64
  ds_read_b32 v26, v{t+4} offset:128
  ds_read_b32 v27, v{t+4} offset:192
  s_waitcnt lgkmcnt(0)
  v_add_f32 v24, v24, v25
  v_add_f32 v26, v26, v27
  v_add_f32 v24, v24, v26
  v_cvt_pk_bf16_f32 v24, v24, v24
  s_mul_i32 s{sTMP+4}, s{sTMP}, 448
  s_mul_i32 s{sTMP+5}, s{sTMP+2}, 112
  s_add_u32 s{sTMP+4}, s{sTMP+4}, s{sTMP+5}
  s_add_u32 s{sTMP+4}, s{sTMP+4}, s{sTMP+3}
  s_lshl_b32 s{sTMP+4}, s{sTMP+4}, 1
  v_mul_u32_u24 v{t+4}, 1792, v{t+3}
  v_lshl_add_u32 v{t+4}, v{t+1}, 1, v{t+4}
  v_add_u32 v{t+4}, s{sTMP+4}, v{t+4}
  s_mov_b64 exec, 0xffff
  global_store_short v{t+4}, v24, s[{sOUT}:{sOUT+1}]
  s_mov_b64 exec, -1
""")
    if update_epoch:
        g(f"""
  s_cmp_eq_u32 s2, 0
  s_cbranch_scc0 L_done
  v_mov_b32 v24, s{sT}
  v_mov_b32 v25, {WS_EPOCH}
  s_mov_b64 exec, 1
  global_store_dword v25, v24, s[{sWS}:{sWS+1}] sc1
  s_mov_b64 exec, -1
""")

def kd(name,nv,nacc,nsg=96):
    acc=(nv+3)//4*4
    return f""".p2align 6
.amdhsa_kernel {name}
  .amdhsa_next_free_vgpr {acc+nacc if nacc else nv}
  .amdhsa_next_free_sgpr {nsg}
  .amdhsa_accum_offset {acc}
  .amdhsa_group_segment_fixed_size 0
  .amdhsa_kernarg_size 104
  .amdhsa_user_sgpr_count 2
  .amdhsa_user_sgpr_kernarg_segment_ptr 1
  .amdhsa_system_sgpr_workgroup_id_x 1
  .amdhsa_float_denorm_mode_32 3
.end_amdhsa_kernel
"""
def khead(name): return f".globl {name}\n.p2align 8\n.type {name},@function\n{name}:\n"

def load_ptrs(g):
    g(f"""
  s_load_dwordx2 s[{sKA}:{sKA+1}], s[0:1], 8
  s_load_dwordx2 s[{sVA}:{sVA+1}], s[0:1], 16
  s_load_dwordx2 s[{sKB}:{sKB+1}], s[0:1], 48
  s_load_dwordx2 s[{sVB}:{sVB+1}], s[0:1], 56
  s_load_dwordx2 s[{sOUT}:{sOUT+1}], s[0:1], 80
  s_load_dwordx2 s[{sDBG}:{sDBG+1}], s[0:1], 88
  s_load_dwordx2 s[{sWS}:{sWS+1}], s[0:1], 96
  v_lshrrev_b32 v1, 6, v0
  v_and_b32 v{vLANE}, 63, v0
  s_nop 0
  v_readfirstlane_b32 s{sW}, v1
  s_lshr_b32 s{sG}, s2, 3
  s_and_b32 s{sJ}, s2, 7
  s_waitcnt lgkmcnt(0)
""")

def fail_and_done(g,name,stamps=False):
    if stamps and STAMPS:
        g(f"""
  s_branch L_done
L_fail:
  v_mov_b32 v24, 0xdead
  v_mov_b32 v25, 4
  s_mov_b64 exec, 1
  global_store_dword v25, v24, s[{sDBG}:{sDBG+1}]
  s_mov_b64 exec, -1
  s_endpgm
L_done:""")
        stamp(g,9)
        g(f"  s_mov_b32 s{sST+10}, s{sKN}")
        stamp_write(g)
        g("L_exit:\n  s_endpgm")
        return
    g(f"""
  s_branch L_done
L_fail:
  v_mov_b32 v24, 0xdead
  v_mov_b32 v25, 4
  s_mov_b64 exec, 1
  global_store_dword v25, v24, s[{sDBG}:{sDBG+1}]
  s_mov_b64 exec, -1
L_done:
L_exit:
  s_endpgm
""")

def uniq(txt,sfx):
    import re
    return re.sub(r'\b(L_[A-Za-z0-9_]+)',lambda m:m.group(1)+sfx,txt)

def k_qproj(o):
    g=G(); name='qproj_kernel'
    g("  s_cmp_ge_u32 s2, 256\n  s_cbranch_scc1 L_exit")
    load_ptrs(g); g(f"  v_mov_b32 v0, v{vLANE}")
    load_tags(g,sWS,sT,sTB,sTMP)
    emit_qproj(g,'k1',sWS,sT,'q')
    g("  s_waitcnt vmcnt(0)")
    fail_and_done(g,name)
    return khead(name)+uniq(g.text(),'_k1'), kd(name,128,0), name

def k_main(o):
    g=G(); name=KN+'_kernel' if opt(o,'single',False) else 'main_kernel'
    fuseq=opt(o,'fuseq',False); fuset=opt(o,'fuset',False); pol=o.get('pol','nt')
    size0,tab=chunk_table(o)
    g("  s_cmp_ge_u32 s2, 256\n  s_cbranch_scc1 L_exit")
    load_ptrs(g)
    stamp_init(g); stamp(g,0)
    g(f"""
  s_cmp_eq_u32 s{sW}, 4
  s_cbranch_scc1 L_aux
  v_and_b32 v{vOK}, 15, v{vLANE}
  v_lshlrev_b32 v{vOK}, 9, v{vOK}
  v_lshrrev_b32 v{vT}, 4, v{vLANE}
  v_lshl_add_u32 v{vOK}, v{vT}, 4, v{vOK}        ; (l&15)*512 + (l>>4)*16
  v_lshrrev_b32 v{vT}, 5, v{vLANE}
  v_lshlrev_b32 v{vT}, 12, v{vT}
  v_and_b32 v{vOV}, 31, v{vLANE}
  v_lshl_add_u32 v{vOV}, v{vOV}, 4, v{vT}        ; (l>>5)*4096 + (l&31)*16
  s_lshl_b32 s{sTMP+2}, s{sG}, 1
""")
    set_srd_head(g,sKB,sVB,sTMP+2)
    g(f"""
  s_lshl_b32 s{sOFF}, s{sJ}, 20
  s_lshl_b32 s{sTMP}, s{sW}, 18
  s_add_u32 s{sOFF}, s{sOFF}, s{sTMP}
""")
    emit_k_loads(g,0,pol); emit_v_loads(g,0,pol)
    g(f"  s_add_u32 s{sOFF}, s{sOFF}, 8192")
    emit_k_loads(g,1,pol); emit_v_loads(g,1,pol)
    g(f"""
  s_add_u32 s{sOFF}, s{sOFF}, 8192
  s_mov_b32 s{sCNT}, 30
  s_mov_b32 s{sPH}, 0
  s_mov_b32 s{sCPH}, 0
  s_mov_b32 s{sNXT}, 0
  s_mov_b32 s{sKN}, 0
  s_mov_b32 s{sTRIG}, 0
  s_mov_b32 s{sSKIP}, 1
  s_mov_b32 s{sC}, {f2h(SCALE)}
  s_mov_b32 s{sSLO}, 0x05040100
  s_mov_b32 s{sSHI}, 0x07060302
""")
    load_tags(g,sWS,sT,sTB,sTMP)
    stamp(g,1)
    g("  s_barrier")
    emit_reset_and_q(g)
    stamp(g,2)
    emit_body(g,o,0); emit_body(g,o,1)
    emit_rare(g,0); emit_rare(g,1)
    emit_flush(g,o,0); emit_flush(g,o,1)
    g("L_tail:")
    stamp(g,6)
    if fuset:
        g("  s_waitcnt vmcnt(0)")
        emit_role(g,o,1,'B'); stamp(g,7); emit_role(g,o,0,'A'); stamp(g,8); emit_final(g,o,'f',True)
        g("  s_waitcnt vmcnt(0)")
    else:
        g("  s_waitcnt vmcnt(0)")
    g("  s_branch L_done")
    g(f"""
L_aux:
  v_mov_b32 v0, v{vLANE}
""")
    if opt(o,'prio',True): g("  s_setprio 3")
    load_tags(g,sWS,sT,sTB,sTMP)
    usecnt = sum(c for c,_ in tab)>0 and not opt(o,'rr',False)
    if usecnt: g(f"""
  s_cmp_eq_u32 s{sJ}, 0
  s_cbranch_scc0 L_noinit
  s_mul_i32 s{sTMP}, s{sG}, {CNT_STRIDE}
  s_add_u32 s{sTMP}, s{sTMP}, {WS_CNT}
  v_mov_b32 v1, s{sTMP}
  v_mov_b32 v2, 0
  v_mov_b32 v3, s{sT}
  s_mov_b64 exec, 1
  global_store_dwordx2 v1, v[2:3], s[{sWS}:{sWS+1}] sc1
  s_mov_b64 exec, -1
L_noinit:
""")
    g(f"""
  v_lshlrev_b32 v1, 2, v0
  v_mov_b32 v2, 0
  v_add_u32 v3, {L_CNT}, v1
  s_mov_b64 exec, 0xffff
  ds_write_b32 v3, v2
  s_mov_b64 exec, -1
  v_mov_b32 v2, -1
  v_add_u32 v3, {L_QUEUE}, v1
  ds_write_b32 v3, v2
  ds_write_b32 v3, v2 offset:256
""")
    stamp(g,1)
    if fuseq:
        emit_qproj(g,'fq',sWS,sT,'q')
    stamp(g,2)
    emit_qgather(g,'m',sWS,sT,sG,"L_fail_aux")
    stamp(g,3)
    g("  s_waitcnt lgkmcnt(0)\n  s_barrier")
    if fuset: emit_wo_stage(g,'m')
    g(f"""
  s_mov_b32 s{sKN}, 1
  s_mul_i32 s{sTMP+8}, s{sG}, {CNT_STRIDE}
  s_add_u32 s{sTMP+8}, s{sTMP+8}, {WS_CNT}
  v_mov_b32 v8, s{sTMP+8}
  v_mov_b32 v9, 1
  v_mov_b32 v10, {L_CNT+12}
""")
    if usecnt:
      g(f"""
  s_mov_b32 s{sTMP+9}, 0
L_cinit:
  global_load_dwordx2 v[14:15], v8, s[{sWS}:{sWS+1}] sc1
  s_waitcnt vmcnt(0)
  v_readfirstlane_b32 s{sTMP}, v15
  s_nop 0
  s_cmp_eq_u32 s{sTMP}, s{sT}
  s_cbranch_scc1 L_cinit_ok
""")
      spin_guard(g,sTMP+9,"L_fail_aux")
      g(f"""
  s_sleep 8
  s_branch L_cinit
L_cinit_ok:
""")
    g(f"""
L_sched:
  s_mov_b32 s{sTMP+9}, 0
L_sched_poll:
  ds_read_b32 v11, v10
  s_waitcnt lgkmcnt(0)
  v_readfirstlane_b32 s{sTMP}, v11
  s_nop 0
  s_cmp_ge_u32 s{sTMP}, s{sKN}
  s_cbranch_scc1 L_sched_go
""")
    spin_guard(g,sTMP+9,"L_fail_aux",limit=1000000)
    g(f"""
  s_sleep 4
  s_branch L_sched_poll
L_sched_go:
""")
    ndyn=sum(c for c,_ in tab)
    if ndyn==0:
        g(f"  s_mov_b32 s{sTMP+1}, -2")
    else:
        if opt(o,'rr',False):
            g(f"  s_sub_u32 s{sTMP}, s{sKN}, 1\n  s_lshl_b32 s{sTMP}, s{sTMP}, 3\n  s_add_u32 s{sTMP}, s{sTMP}, s{sJ}\n  s_mov_b32 s{sTMP+1}, -2")
        else:
            g(f"""
  s_mov_b64 exec, 1
  global_atomic_add v11, v8, v9, s[{sWS}:{sWS+1}] sc0 sc1
  s_mov_b64 exec, -1
  s_waitcnt vmcnt(0)
  v_readfirstlane_b32 s{sTMP}, v11
  s_mov_b32 s{sTMP+1}, -2
""")
        cbase=0; ubase=8*size0
        for n,(cnt,sz) in enumerate(tab):
            g(f"""
  s_cmp_lt_u32 s{sTMP}, {cbase+cnt}
  s_cbranch_scc0 L_tab_{n}
  s_sub_u32 s{sTMP+2}, s{sTMP}, {cbase}
  s_mul_i32 s{sTMP+2}, s{sTMP+2}, {sz}
  s_add_u32 s{sTMP+2}, s{sTMP+2}, {ubase}
  s_lshl_b32 s{sTMP+2}, s{sTMP+2}, 8
  s_or_b32 s{sTMP+1}, s{sTMP+2}, {sz}
  s_branch L_tab_done
L_tab_{n}:""")
            cbase+=cnt; ubase+=cnt*sz
        assert ubase==256,(ubase)
        g("L_tab_done:")
    g(f"""
  s_lshl_b32 s{sTMP+2}, s{sKN}, 2
  s_add_u32 s{sTMP+2}, s{sTMP+2}, {L_QUEUE}
  v_mov_b32 v12, s{sTMP+2}
  v_mov_b32 v13, s{sTMP+1}
  ds_write_b32 v12, v13
  s_add_u32 s{sKN}, s{sKN}, 1
  s_cmp_eq_u32 s{sTMP+1}, -2
  s_cbranch_scc0 L_sched
  s_waitcnt vmcnt(0) lgkmcnt(0)
  s_branch L_done
L_fail_aux:
  v_mov_b32 v24, 0xdeae
  v_mov_b32 v25, 12
  s_mov_b64 exec, 1
  global_store_dword v25, v24, s[{sDBG}:{sDBG+1}]
  s_mov_b64 exec, -1
""")
    fail_and_done(g,name,True)
    return khead(name)+uniq(g.text(),'_m'), kd(name,NARCH,NACC), name

def k_role(o):
    g=G(); name='role_kernel'
    g("  s_cmp_ge_u32 s2, 256\n  s_cbranch_scc1 L_exit")
    load_ptrs(g)
    load_tags(g,sWS,sT,sTB,sTMP)
    g(f"  s_cmp_eq_u32 s{sW}, 0\n  s_cbranch_scc0 L_nostage\n  v_mov_b32 v0, v{vLANE}")
    emit_wo_stage(g,'r')
    g(f"  v_mov_b32 v{vLANE}, v0\n  s_waitcnt vmcnt(0)\nL_nostage:\n  s_barrier")
    emit_role(g,o,1,'B'); emit_role(g,o,0,'A')
    g("  s_waitcnt vmcnt(0)")
    fail_and_done(g,name)
    return khead(name)+uniq(g.text(),'_k3'), kd(name,NARCH,0), name

def k_final(o):
    g=G(); name='final_kernel'
    g("  s_cmp_ge_u32 s2, 256\n  s_cbranch_scc1 L_exit")
    load_ptrs(g)
    load_tags(g,sWS,sT,sTB,sTMP)
    emit_final(g,o,'f',False)
    g("  s_waitcnt vmcnt(0)")
    fail_and_done(g,name)
    return khead(name)+uniq(g.text(),'_k4'), kd(name,NARCH,0), name

HEADER=open('cdna_kernels/'+KN+'.s.ref').read().split('; Override launch geometry')[0]

def build(o):
    global STAMPS
    STAMPS=opt(o,'stamps',False)
    fuseq=opt(o,'fuseq',False); fuset=opt(o,'fuset',False)
    single=fuseq and fuset
    o['single']=single
    ks=[]; launch=[]
    if not fuseq:
        ks.append(k_qproj(o)); launch.append(f"; @launch kernel=qproj_kernel grid=(256,1,1) block=(64,1,1) lds={LDS_SIZE}")
    m=k_main(o); ks.append(m)
    if single: launch.append(f"; @launch grid=(256,1,1) block=(320,1,1) lds={LDS_SIZE}")
    else: launch.append(f"; @launch kernel={m[2]} grid=(256,1,1) block=(320,1,1) lds={LDS_SIZE}")
    if not fuset:
        ks.append(k_role(o)); launch.append(f"; @launch kernel=role_kernel grid=(256,1,1) block=(256,1,1) lds={LDS_SIZE}")
        ks.append(k_final(o)); launch.append(f"; @launch kernel=final_kernel grid=(256,1,1) block=(256,1,1) lds={LDS_SIZE}")
    src=HEADER+"\n".join(launch)+'\n.amdgcn_target "amdgcn-amd-amdhsa--gfx950"\n.text\n'
    src+="".join(k[0] for k in ks)
    src+='.section .rodata,"a"\n'+"".join(k[1] for k in ks)
    if opt(o,'meta',False):
        src+=".amdgpu_metadata\n---\namdhsa.version: [1, 2]\namdhsa.kernels:\n"
        for k in ks:
            src+=f"  - .name: {k[2]}\n    .symbol: {k[2]}.kd\n    .kernarg_segment_size: 104\n    .kernarg_segment_align: 8\n    .group_segment_fixed_size: 0\n    .private_segment_fixed_size: 0\n    .wavefront_size: 64\n    .sgpr_count: 96\n    .vgpr_count: 256\n    .max_flat_workgroup_size: 320\n    .args:\n      - {{.name: kernargs, .size: 104, .offset: 0, .value_kind: by_value}}\n"
        src+="...\n.end_amdgpu_metadata\n"
    return src,launch

if __name__=='__main__':
    out=sys.argv[1]; o=dict(a.split('=',1) for a in sys.argv[2:])
    src,launch=build(o)
    open(out,'w').write(src)
    print("\n".join(launch))
```

```python
import sys, struct, math
KN='concat_heads__gqa_block_cached__mha_block_cached__decode'
def f2h(x): return "0x%08x"%struct.unpack('<I',struct.pack('<f',x))[0]

WS_EPOCH=0x0
WS_QG=0x1000
WS_STAT=0x22000
WS_PART=0x40000
WS_Y=0x140000
WS_CNT=0x240000
CNT_STRIDE=4352
WS_STAMP=0x300000
WS_SIZE=0x400000
L_WST=0x0000
L_QC=0x7000
L_FL=0x7800
L_ST=0xD800
L_CNT=0xD900
L_QUEUE=0xDA00
L_OB=0xDC00
L_FB=0xE000
LDS_SIZE=0xE200
SCALE=math.log2(math.e)/16.0

class G:
    def __init__(s): s.L=[]
    def __call__(s,txt):
        for l in txt.strip('\n').split('\n'): s.L.append(l)
    def text(s): return "\n".join(s.L)+"\n"

def opt(o,k,d):
    v=o.get(k,d)
    return type(d)(v) if not isinstance(d,bool) else (str(v).lower() in('1','true','yes'))

def load_tags(g, sWS, sT, sTB, tmp):
    g(f"""
  s_load_dword s{sT}, s[{sWS}:{sWS+1}], {WS_EPOCH}
  s_waitcnt lgkmcnt(0)
  s_add_u32 s{sT}, s{sT}, 1
  s_and_b32 s{tmp}, s{sT}, 0xff
  s_add_u32 s{sTB}, s{tmp}, 0x35
  s_and_b32 s{sTB}, s{sTB}, 0xff
  s_lshl_b32 s{sTB}, s{sTB}, 8
  s_or_b32 s{sTB}, s{sTB}, s{tmp}
  s_add_u32 s{tmp+1}, s{tmp}, 0x6b
  s_and_b32 s{tmp+1}, s{tmp+1}, 0xff
  s_lshl_b32 s{tmp+1}, s{tmp+1}, 16
  s_or_b32 s{sTB}, s{sTB}, s{tmp+1}
  s_add_u32 s{tmp+1}, s{tmp}, 0xa1
  s_lshl_b32 s{tmp+1}, s{tmp+1}, 24
  s_or_b32 s{sTB}, s{sTB}, s{tmp+1}
""")

STAMPS=False
WQPOL='nt'
WQTEST=0
sST=64
def stamp(g,idx,cond_phase=False):
    if not STAMPS: return
    g(f"  s_memrealtime s[80:81]\n  s_waitcnt lgkmcnt(0)\n  s_mov_b32 s{sST+idx}, s80")
def stamp_init(g):
    if not STAMPS: return
    for i in range(16): g(f"  s_mov_b32 s{sST+i}, 0")
def stamp_write(g,nwaves=5):
    if not STAMPS: return
    g(f"""
  s_getreg_b32 s{sST+15}, hwreg(HW_REG_XCC_ID)
  s_mul_i32 s80, s2, {nwaves}
  s_add_u32 s80, s80, s{sW}
  s_lshl_b32 s80, s80, 6
  s_add_u32 s80, s80, {WS_STAMP}
  v_mov_b32 v25, s80""")
    for q in range(4):
        for i in range(4): g(f"  v_mov_b32 v{28+i}, s{sST+4*q+i}")
        g(f"  s_mov_b64 exec, 1\n  global_store_dwordx4 v25, v[28:31], s[{sWS}:{sWS+1}] offset:{16*q}\n  s_mov_b64 exec, -1\n  s_nop 1")
    g("  s_waitcnt vmcnt(0)")

def spin_guard(g, sCnt, lbl_fail, limit=200000):
    g(f"""
  s_add_u32 s{sCnt}, s{sCnt}, 1
  s_cmp_gt_u32 s{sCnt}, {limit}
  s_cbranch_scc1 {lbl_fail}
""")

def emit_qproj_ptrs(g):
    g(f"""
  s_lshr_b32 s44, s2, 7
  s_mul_i32 s45, s44, 40
  s_add_u32 s46, s0, s45
  s_addc_u32 s47, s1, 0
  s_load_dwordx2 s[48:49], s[46:47], 0     ; x
  s_load_dwordx2 s[52:53], s[46:47], 24    ; wq
""")
def emit_qproj(g, u, sWS, sT, lbl):
    emit_qproj_ptrs(g); g("  s_waitcnt lgkmcnt(0)")
    emit_qproj_issue(g); emit_qproj_compute(g,u,sWS,sT)
def emit_qproj_issue(g):
    g(f"""
  v_lshrrev_b32 v1, 2, v0
  v_lshlrev_b32 v1, 13, v1            ; (l>>2)*8192
  v_and_b32 v2, 3, v0
  v_lshlrev_b32 v3, 4, v2             ; (l&3)*16
  v_add_u32 v1, v1, v3
  v_mul_u32_u24 v4, 896, v2           ; (l&3)*896
  v_lshrrev_b32 v5, 4, v0             ; g
  v_lshlrev_b32 v6, 4, v5             ; g*16
  v_add_u32 v4, v4, v6
  s_and_b32 s45, s2, 127
  s_lshl_b32 s45, s45, 6
  s_and_b32 s49, s49, 0xffff
  s_mov_b32 s50, 3584
  s_mov_b32 s51, 0x20000
  s_and_b32 s53, s53, 0xffff
  s_mov_b32 s54, 3670016
  s_mov_b32 s55, 0x20000
  s_mov_b32 m0, {L_WST}
  s_nop 0
""")
    XA=16
    if WQTEST==1:
        g("  v_lshlrev_b32 v1, 4, v0\n  s_and_b32 s45, s2, 127\n  s_mul_i32 s45, s45, 28672")
    if WQTEST==2:
        g("  v_lshrrev_b32 v1, 5, v0\n  v_lshlrev_b32 v1, 13, v1\n  v_and_b32 v7, 31, v0\n  v_lshl_add_u32 v1, v7, 4, v1\n  s_and_b32 s45, s2, 7\n  s_mul_i32 s45, s45, 458752\n  s_lshr_b32 s44, s2, 3\n  s_and_b32 s44, s44, 15\n  s_lshl_b32 s44, s44, 9\n  s_add_u32 s45, s45, s44")
    for s_ in range(14):
        g(f"  buffer_load_dwordx4 v[{XA+4*s_}:{XA+4*s_+3}], v4, s[48:51], 0 offen offset:{s_*64}")
    for ld in range(28):
        g(f"  buffer_load_dwordx4 v1, s[52:55], s45 offen {WQPOL} lds")
        if ld<27:
            g(f"  s_add_u32 s45, s45, {[16*8192,1024,2*8192][WQTEST]}\n  s_add_u32 m0, m0, 1024\n  s_nop 0")
    stamp(g,7)
def emit_qproj_compute(g,u,sWS,sT):
    XA=16
    g(f"""
  v_lshrrev_b32 v6, 2, v0
  v_and_b32 v6, 3, v6
  v_lshl_add_u32 v6, v5, 3, v6        ; 8g + r
  v_lshlrev_b32 v6, 6, v6
  v_lshl_add_u32 v6, v2, 3, v6
  v_add_u32 v6, {L_WST}, v6
  s_waitcnt vmcnt(0)
""")
    stamp(g,4)
    TB=72
    first=True
    for batch in range(2):
        for ss in range(7):
            s=batch*7+ss
            for cb in range(2):
                r=TB+8*ss+4*cb
                g(f"  ds_read_b64_tr_b16 v[{r}:{r+1}], v6 offset:{s*2048+cb*32}")
                g(f"  ds_read_b64_tr_b16 v[{r+2}:{r+3}], v6 offset:{s*2048+cb*32+256}")
        g("  s_waitcnt lgkmcnt(0)")
        for ss in range(7):
            s=batch*7+ss
            for cb in range(2):
                r=TB+8*ss+4*cb; d=8+4*cb
                c = "0" if s==0 else f"v[{d}:{d+3}]"
                g(f"  v_mfma_f32_16x16x32_bf16 v[{d}:{d+3}], v[{XA+4*s}:{XA+4*s+3}], v[{r}:{r+3}], {c}")
    g(f"""
  s_nop 7
  v_cmp_eq_u32 vcc, 1, v5
  v_cmp_eq_u32 s[56:57], 2, v5
  v_cmp_eq_u32 s[58:59], 3, v5
  s_nop 1
  v_cndmask_b32 v8, v8, v9, vcc
  v_cndmask_b32 v12, v12, v13, vcc
  v_cndmask_b32 v8, v8, v10, s[56:57]
  v_cndmask_b32 v12, v12, v14, s[56:57]
  v_cndmask_b32 v8, v8, v11, s[58:59]
  v_cndmask_b32 v12, v12, v15, s[58:59]
  v_and_b32 v7, 1, v0                 ; parity
  v_cmp_eq_u32 vcc, 0, v7
  v_mov_b32 v9, 0
  v_mov_b32 v13, 0
  s_nop 1
  v_mov_b32_dpp v9, v8 row_shl:1 row_mask:0xf bank_mask:0xf     ; val0[n+1]
  v_mov_b32_dpp v13, v12 row_shr:1 row_mask:0xf bank_mask:0xf   ; val1[n-1]
  s_nop 1
  v_cndmask_b32 v10, v13, v8, vcc
  v_cndmask_b32 v11, v12, v9, vcc
  v_cvt_pk_bf16_f32 v10, v10, v11
  v_mov_b32 v11, s{sT}
  s_lshr_b32 s44, s2, 7
  s_lshl_b32 s44, s44, 16             ; p*4*16*1024
  s_lshr_b32 s45, s2, 3
  s_and_b32 s45, s45, 15
  s_lshl_b32 s45, s45, 10             ; hq*1024
  s_add_u32 s44, s44, s45
  s_and_b32 s45, s2, 7
  s_lshl_b32 s45, s45, 7              ; ds*16*8
  s_add_u32 s44, s44, s45
  s_add_u32 s44, s44, {WS_QG}
  v_lshlrev_b32 v12, 14, v5           ; b*16*1024
  v_lshlrev_b32 v13, 6, v7            ; cb*8*8
  v_add_u32 v12, v12, v13
  v_and_b32 v13, 15, v0
  v_lshrrev_b32 v13, 1, v13
  v_lshl_add_u32 v12, v13, 3, v12
  v_add_u32 v12, s44, v12
  global_store_dwordx2 v12, v[10:11], s[{sWS}:{sWS+1}] sc1
""")

def emit_qgather(g, u, sWS, sT, sG, lblfail):
    g(f"""
  s_lshl_b32 s44, s{sG}, 11           ; 2g*1024
  s_add_u32 s44, s44, {WS_QG}
  v_lshlrev_b32 v1, 4, v0
  v_add_u32 v1, s44, v1               ; A vectors (p=0)
  v_add_u32 v2, 0x10000, v1           ; B vectors (p=1)
  s_mov_b32 s45, 0
L_qg_poll_{u}:
  global_load_dwordx4 v[8:11], v2, s[{sWS}:{sWS+1}] sc1
  global_load_dwordx4 v[12:15], v2, s[{sWS}:{sWS+1}] offset:1024 sc1
  global_load_dwordx4 v[16:19], v1, s[{sWS}:{sWS+1}] sc1
  global_load_dwordx4 v[20:23], v1, s[{sWS}:{sWS+1}] offset:1024 sc1
  s_waitcnt vmcnt(0)
""")
    if STAMPS:
        g(f"  s_add_u32 s{sST+5}, s{sST+5}, 1\n  s_cmp_eq_u32 s{sST+5}, 1\n  s_cbranch_scc0 L_qst_{u}")
        stamp(g,6)
        g(f"L_qst_{u}:")
    g(f"""
  v_xor_b32 v9, s{sT}, v9
  v_xor_b32 v11, s{sT}, v11
  v_xor_b32 v13, s{sT}, v13
  v_xor_b32 v15, s{sT}, v15
  v_xor_b32 v17, s{sT}, v17
  v_xor_b32 v19, s{sT}, v19
  v_xor_b32 v21, s{sT}, v21
  v_xor_b32 v23, s{sT}, v23
  v_or3_b32 v9, v9, v11, v13
  v_or3_b32 v15, v15, v17, v19
  v_or3_b32 v9, v9, v21, v23
  v_or_b32 v9, v9, v15
  v_cmp_ne_u32 vcc, 0, v9
  s_cbranch_vccz L_qg_ok_{u}
""")
    spin_guard(g,45,lblfail)
    g(f"""
  s_sleep 2
  s_branch L_qg_poll_{u}
L_qg_ok_{u}:
  v_lshlrev_b32 v3, 3, v0
  v_add_u32 v3, {L_QC}, v3
  v_mov_b32 v9, v10
  v_mov_b32 v13, v14
  v_mov_b32 v17, v18
  v_mov_b32 v21, v22
  ds_write_b64 v3, v[8:9]
  ds_write_b64 v3, v[12:13] offset:512
  ds_write_b64 v3, v[16:17] offset:1024
  ds_write_b64 v3, v[20:21] offset:1536
""")

def emit_wo_stage(g, u):
    g(f"""
  s_load_dwordx2 s[48:49], s[0:1], 32
  s_load_dwordx2 s[52:53], s[0:1], 72
  s_lshr_b32 s44, s2, 2               ; h*4+dq
  s_mul_i32 s44, s44, {64*896}
  s_and_b32 s45, s2, 3
  s_mul_i32 s45, s45, 224
  s_add_u32 s44, s44, s45
  ; per lane: c = lane ; row = c/14, chunk = c%14
  v_mul_u32_u24 v2, 4682, v0          ; c*4682 >> 16 = c/14 for c<64
  v_lshrrev_b32 v2, 16, v2            ; row
  v_mul_u32_u24 v3, 14, v2
  v_sub_u32 v3, v0, v3                ; chunk
  s_waitcnt lgkmcnt(0)
  s_and_b32 s49, s49, 0xffff
  s_mov_b32 s50, 3670016
  s_mov_b32 s51, 0x20000
  s_and_b32 s53, s53, 0xffff
  s_mov_b32 s54, 3670016
  s_mov_b32 s55, 0x20000
""")
    for ld in range(14):
        g(f"""
  v_mul_u32_u24 v4, 896, v2
  v_lshl_add_u32 v4, v3, 4, v4
  s_mov_b32 m0, {L_WST+ld*1024}
  s_nop 0
  buffer_load_dwordx4 v4, s[48:51], s44 offen nt lds
  s_mov_b32 m0, {L_WST+14336+ld*1024}
  s_nop 0
  buffer_load_dwordx4 v4, s[52:55], s44 offen nt lds""")
        if ld<13:
            g(f"""
  v_add_u32 v3, 8, v3
  v_add_u32 v2, 4, v2
  v_cmp_le_u32 vcc, 14, v3
  v_subrev_u32 v5, 14, v3
  v_add_u32 v6, 1, v2
  v_cndmask_b32 v3, v3, v5, vcc
  v_cndmask_b32 v2, v2, v6, vcc""")

sW=3; sG=4; sJ=5; sT=6; sTB=7
sK=8
sV=12
sKA=16; sVA=18; sKB=20; sVB=22; sWS=24; sDBG=26; sOUT=28
sOFF=30; sCNT=31; sPH=32; sNXT=33; sKN=34; sTRIG=35; sSKIP=36; sCPH=37
sC=38; sSLO=39; sSHI=40
sTMP=44
sERR=60
vOK=1; vOV=2; vM=3; vMC=4; vL=5; vLANE=6; vX=7
vS=8; vT=12; vP=20; vB=24; vACC=40; vV=[72,104]
NARCH=136
aK=[0,32]; aQ=64
NACC=96

def chunk_table(o):
    tab=o.get('tab','dyn')
    if tab=='static': return 32, []
    if tab=='dyn': return 12, [(8,8),(8,5),(8,3),(8,2),(16,1)]
    a,b=tab.split(':'); lst=[tuple(int(x) for x in t.split('x')) for t in b.split(',')] if b else []
    return int(a), lst

def emit_k_loads(g,buf,pol):
    for j in range(8):
        r=aK[buf]+4*j
        g(f"  buffer_load_dwordx4 a[{r}:{r+3}], v{vOK}, s[{sK}:{sK+3}], s{sOFF} offen offset:{j*64} {pol}")
def emit_v_loads(g,buf,pol):
    for r8 in range(8):
        r=vV[buf]+4*r8
        g(f"  buffer_load_dwordx4 v[{r}:{r+3}], v{vOV}, s[{sV}:{sV+3}], s{sOFF} offen offset:{r8*512} {pol}")

def set_srd_head(g, sKp, sVp, sIdx):
    g(f"""
  s_lshl_b32 s{sTMP}, s{sIdx}, 23
  s_lshr_b32 s{sTMP+1}, s{sIdx}, 9
  s_add_u32 s{sK}, s{sKp}, s{sTMP}
  s_addc_u32 s{sK+1}, s{sKp+1}, s{sTMP+1}
  s_and_b32 s{sK+1}, s{sK+1}, 0xffff
  s_add_u32 s{sV}, s{sVp}, s{sTMP}
  s_addc_u32 s{sV+1}, s{sVp+1}, s{sTMP+1}
  s_and_b32 s{sV+1}, s{sV+1}, 0xffff
  s_mov_b32 s{sK+2}, 0x800000
  s_mov_b32 s{sV+2}, 0x800000
  s_mov_b32 s{sK+3}, 0x20000
  s_mov_b32 s{sV+3}, 0x20000
""")

def emit_advance(g,o,u):
    size0,tab=chunk_table(o)
    g(f"""
  s_cmp_eq_u32 s{sPH}, 2
  s_cbranch_scc1 L_adv_dyn_{u}
  s_add_u32 s{sPH}, s{sPH}, 1
  s_mov_b32 s{sNXT}, 1
  s_cmp_eq_u32 s{sPH}, 2
  s_cbranch_scc1 L_adv_p2_{u}
  s_lshl_b32 s{sTMP+2}, s{sG}, 1
  s_add_u32 s{sTMP+2}, s{sTMP+2}, 1
""")
    set_srd_head(g,sKB,sVB,sTMP+2)
    g(f"""
  s_lshl_b32 s{sOFF}, s{sJ}, 20
  s_lshl_b32 s{sTMP}, s{sW}, 18
  s_add_u32 s{sOFF}, s{sOFF}, s{sTMP}
  s_mov_b32 s{sCNT}, 32
  s_branch L_adv_done_{u}
L_adv_p2_{u}:
""")
    set_srd_head(g,sKA,sVA,sG)
    g(f"""
  ; first chunk static: start unit = j*size0, per wave size0 tiles
  s_mul_i32 s{sOFF}, s{sJ}, {size0*64*512}
  s_mul_i32 s{sTMP}, s{sW}, {size0*16*512}
  s_add_u32 s{sOFF}, s{sOFF}, s{sTMP}
  s_mov_b32 s{sCNT}, {size0}
  s_mov_b32 s{sKN}, 1
  s_mov_b32 s{sTRIG}, 3
  s_branch L_adv_done_{u}
L_adv_dyn_{u}:
  s_lshl_b32 s{sTMP}, s{sKN}, 2
  s_add_u32 s{sTMP}, s{sTMP}, {L_QUEUE}
  v_mov_b32 v{vX}, s{sTMP}
  s_mov_b32 s{sTMP+2}, 0
L_adv_poll_{u}:
  ds_read_b32 v{vT}, v{vX}
  s_waitcnt lgkmcnt(0)
  v_readfirstlane_b32 s{sTMP+1}, v{vT}
  s_nop 0
  s_cmp_eq_u32 s{sTMP+1}, -1
  s_cbranch_scc0 L_adv_got_{u}
""")
    spin_guard(g,sTMP+2,"L_fail")
    if STAMPS: g(f"  s_add_u32 s{sST+11}, s{sST+11}, 1")
    g(f"""
  s_sleep 1
  s_branch L_adv_poll_{u}
L_adv_got_{u}:
  s_add_u32 s{sKN}, s{sKN}, 1
  s_cmp_eq_u32 s{sTMP+1}, -2
  s_cbranch_scc1 L_adv_end_{u}
  s_and_b32 s{sCNT}, s{sTMP+1}, 0xff
  s_lshr_b32 s{sOFF}, s{sTMP+1}, 8
  s_lshl_b32 s{sOFF}, s{sOFF}, 15
  s_mul_i32 s{sTMP}, s{sW}, s{sCNT}
  s_lshl_b32 s{sTMP}, s{sTMP}, 13
  s_add_u32 s{sOFF}, s{sOFF}, s{sTMP}
  s_branch L_adv_done_{u}
L_adv_end_{u}:
  s_mov_b32 s{sNXT}, 2
  s_mov_b32 s{sK+2}, 0
  s_mov_b32 s{sV+2}, 0
  s_mov_b32 s{sCNT}, 0x10000
  s_mov_b32 s{sTRIG}, 0
  s_mov_b32 s{sOFF}, 0
L_adv_done_{u}:
""")

def emit_body(g,o,b):
    pol=o.get('pol','nt'); vearly=opt(o,'vearly',False)
    nb=b^1; u=f"b{b}"
    g(f"L_body_{u}:")
    g(f"  s_waitcnt vmcnt(8)")
    for j in range(8):
        c="0" if j==0 else f"v[{vS}:{vS+3}]"
        g(f"  v_mfma_f32_16x16x32_bf16 v[{vS}:{vS+3}], a[{aK[b]+4*j}:{aK[b]+4*j+3}], a[{aQ+4*j}:{aQ+4*j+3}], {c}")
    g(f"""
  s_cmp_eq_u32 s{sSKIP}, 0
  s_cbranch_scc0 L_nokld_{u}
  s_cmp_eq_u32 s{sCNT}, 0
  s_cbranch_scc0 L_kld_{u}""")
    emit_advance(g,o,u)
    g(f"L_kld_{u}:")
    emit_k_loads(g,nb,pol)
    if vearly: emit_v_loads(g,nb,pol)
    g(f"L_nokld_{u}:")
    t=vT
    g(f"""
  s_nop 5
  v_max3_f32 v{t}, v{vS}, v{vS+1}, v{vS+2}
  v_max_f32 v{t}, v{t}, v{vS+3}
  v_mov_b32 v{t+1}, v{t}
  s_nop 1
  v_permlane16_swap_b32 v{t}, v{t+1}
  v_max_f32 v{t}, v{t}, v{t+1}
  v_mov_b32 v{t+1}, v{t}
  s_nop 1
  v_permlane32_swap_b32 v{t}, v{t+1}
  v_max_f32 v{t}, v{t}, v{t+1}
  v_cmp_gt_f32 vcc, v{t}, v{vM}
  s_cbranch_vccnz L_rare_{u}
L_back_{u}:
  v_fma_f32 v{t+2}, v{vS}, s{sC}, -v{vMC}
  v_fma_f32 v{t+3}, v{vS+1}, s{sC}, -v{vMC}
  v_fma_f32 v{t+4}, v{vS+2}, s{sC}, -v{vMC}
  v_fma_f32 v{t+5}, v{vS+3}, s{sC}, -v{vMC}
  v_exp_f32 v{t+2}, v{t+2}
  v_exp_f32 v{t+3}, v{t+3}
  v_exp_f32 v{t+4}, v{t+4}
  v_exp_f32 v{t+5}, v{t+5}
  v_add_f32 v{t+6}, v{t+2}, v{t+3}
  v_cvt_pk_bf16_f32 v{vP}, v{t+2}, v{t+3}
  v_add_f32 v{t+7}, v{t+4}, v{t+5}
  v_cvt_pk_bf16_f32 v{vP+1}, v{t+4}, v{t+5}
  v_add_f32 v{t+6}, v{t+6}, v{t+7}
  v_mov_b32 v{vP+2}, v{vP}
  v_mov_b32 v{vP+3}, v{vP+1}
  v_add_f32 v{vL}, v{vL}, v{t+6}
  s_nop 0
  v_permlane16_swap_b32 v{vP}, v{vP+2}
  v_permlane16_swap_b32 v{vP+1}, v{vP+3}
  s_waitcnt vmcnt({16 if vearly else 8})
""")
    for t2 in range(2):
        R=[vV[b]+4*(4*t2+rr) for rr in range(4)]
        for dw in range(4):
            g(f"  v_perm_b32 v{vB+4*dw}, v{R[1]+dw}, v{R[0]+dw}, s{sSLO}")
            g(f"  v_perm_b32 v{vB+4*dw+1}, v{R[3]+dw}, v{R[2]+dw}, s{sSLO}")
            g(f"  v_perm_b32 v{vB+4*dw+2}, v{R[1]+dw}, v{R[0]+dw}, s{sSHI}")
            g(f"  v_perm_b32 v{vB+4*dw+3}, v{R[3]+dw}, v{R[2]+dw}, s{sSHI}")
        for jj in range(8):
            a=vACC+4*jj
            g(f"  v_mfma_f32_4x4x4_16b_bf16 v[{a}:{a+3}], v[{vP+2*t2}:{vP+2*t2+1}], v[{vB+2*jj}:{vB+2*jj+1}], v[{a}:{a+3}]")
    g(f"""
  s_cmp_eq_u32 s{sSKIP}, 0
  s_cbranch_scc0 L_novld_{u}""")
    if not vearly: emit_v_loads(g,nb,pol)
    g(f"""
  s_add_u32 s{sOFF}, s{sOFF}, 8192
  s_sub_u32 s{sCNT}, s{sCNT}, 1
  s_cmp_lt_u32 s{sCNT}, s{sTRIG}
  s_cbranch_scc0 L_novld_{u}
  v_mov_b32 v{vX}, {L_CNT+12}
  v_mov_b32 v{vT}, s{sKN}
  ds_max_u32 v{vX}, v{vT}
L_novld_{u}:
  s_mov_b32 s{sSKIP}, 0
  s_cmp_eq_u32 s{sNXT}, 0
  s_cbranch_scc0 L_flush_{u}
""")
    if b==1: g("  s_branch L_body_b0")

def emit_rare(g,b):
    u=f"b{b}"; t=vT
    g(f"""
L_rare_{u}:
  v_max_f32 v{t+1}, v{t}, v{vM}
  v_sub_f32 v{t+2}, v{vM}, v{t+1}
  v_mul_f32 v{t+2}, s{sC}, v{t+2}
  v_exp_f32 v{t+2}, v{t+2}
  v_mov_b32 v{vM}, v{t+1}
  v_mul_f32 v{vMC}, s{sC}, v{t+1}
  v_mul_f32 v{vL}, v{vL}, v{t+2}
  s_nop 0
  v_mov_b32_dpp v{t+3}, v{t+2} quad_perm:[0,0,2,2] row_mask:0xf bank_mask:0xf
  v_mov_b32_dpp v{t+4}, v{t+2} quad_perm:[1,1,3,3] row_mask:0xf bank_mask:0xf
""")
    for jj in range(8):
        g(f"  v_mul_f32 v{vACC+4*jj}, v{vACC+4*jj}, v{t+3}")
        g(f"  v_mul_f32 v{vACC+4*jj+1}, v{vACC+4*jj+1}, v{t+4}")
    g(f"  s_branch L_back_{u}")

def tag_embed(g, regs, vTagv, sSel):
    for k,r in enumerate(regs):
        g(f"  s_mov_b32 s{sSel}, {hex(0x07060500|k)}\n  v_perm_b32 v{r}, v{r}, v{vTagv}, s{sSel}")

def emit_flush(g,o,b):
    u=f"b{b}"; t=vT
    g(f"""
L_flush_{u}:
  s_nop 4""")
    if STAMPS:
        g(f"  s_memrealtime s[80:81]\n  s_waitcnt lgkmcnt(0)\n  s_cmp_eq_u32 s{sCPH}, 0\n  s_cselect_b32 s{sST+3}, s80, s{sST+3}\n  s_cmp_eq_u32 s{sCPH}, 1\n  s_cselect_b32 s{sST+4}, s80, s{sST+4}\n  s_cmp_eq_u32 s{sCPH}, 2\n  s_cselect_b32 s{sST+5}, s80, s{sST+5}")
    for jj in range(8):
        a=vACC+4*jj
        g(f"  v_permlane32_swap_b32 v{a}, v{a+1}")
    for jj in range(8):
        a=vACC+4*jj
        g(f"  v_add_f32 v{vB+jj}, v{a}, v{a+1}")
    g(f"""
  v_mov_b32 v{t}, v{vL}
  s_nop 1
  v_permlane16_swap_b32 v{vL}, v{t}
  v_add_f32 v{vL}, v{vL}, v{t}
  v_mov_b32 v{t}, v{vL}
  s_nop 1
  v_permlane32_swap_b32 v{vL}, v{t}
  v_add_f32 v{vL}, v{vL}, v{t}
  s_lshl_b32 s{sTMP}, s{sCPH}, 13
  s_lshl_b32 s{sTMP+1}, s{sW}, 11
  s_add_u32 s{sTMP}, s{sTMP}, s{sTMP+1}
  s_add_u32 s{sTMP}, s{sTMP}, {L_FL}
  v_lshlrev_b32 v{t}, 5, v{vLANE}
  v_add_u32 v{t}, s{sTMP}, v{t}
  ds_write_b128 v{t}, v[{vB}:{vB+3}]
  ds_write_b128 v{t}, v[{vB+4}:{vB+7}] offset:16
  s_lshl_b32 s{sTMP}, s{sCPH}, 6
  s_lshl_b32 s{sTMP+1}, s{sW}, 4
  s_add_u32 s{sTMP}, s{sTMP}, s{sTMP+1}
  s_add_u32 s{sTMP}, s{sTMP}, {L_ST}
  v_and_b32 v{t+1}, 1, v{vLANE}
  v_lshlrev_b32 v{t+1}, 3, v{t+1}
  v_add_u32 v{t+1}, s{sTMP}, v{t+1}
  v_mov_b32 v{t+2}, v{vMC}
  v_mov_b32 v{t+3}, v{vL}
  ds_write_b64 v{t+1}, v[{t+2}:{t+3}]
  s_waitcnt lgkmcnt(0)
  s_lshl_b32 s{sTMP}, s{sCPH}, 2
  s_add_u32 s{sTMP}, s{sTMP}, {L_CNT}
  v_mov_b32 v{t}, s{sTMP}
  v_mov_b32 v{t+1}, 1
  s_mov_b64 exec, 1
  ds_add_rtn_u32 v{t+2}, v{t}, v{t+1}
  s_mov_b64 exec, -1
  s_waitcnt lgkmcnt(0)
  v_readfirstlane_b32 s{sTMP}, v{t+2}
  s_nop 0
  s_cmp_eq_u32 s{sTMP}, 3
  s_cbranch_scc0 L_nomerge_{u}
""")
    g(f"""
  s_and_b32 s{sTMP+2}, s{sG}, 7
  s_lshl_b32 s{sTMP+2}, s{sTMP+2}, 1          ; hq0
  s_lshr_b32 s{sTMP+3}, s{sG}, 3              ; b
  s_cmp_eq_u32 s{sCPH}, 2
  s_cselect_b32 s{sTMP+4}, 0, 16              ; p*16
  s_cselect_b32 s{sTMP+5}, 0, s{sCPH}
  s_cselect_b32 s{sTMP+6}, 2, 1
  s_add_u32 s{sTMP+2}, s{sTMP+2}, s{sTMP+4}
  s_add_u32 s{sTMP+2}, s{sTMP+2}, s{sTMP+5}   ; p*16+hq
  s_lshl_b32 s{sTMP+2}, s{sTMP+2}, 2
  s_add_u32 s{sTMP+2}, s{sTMP+2}, s{sTMP+3}   ; *4 + b
  s_lshl_b32 s{sTMP+2}, s{sTMP+2}, 3
  s_add_u32 s{sTMP+2}, s{sTMP+2}, s{sJ}
  s_mov_b32 s{sTMP+7}, 0                      ; hh
  v_mov_b32 v{vX}, s{sTB}
L_merge_{u}:
  s_lshl_b32 s{sTMP}, s{sCPH}, 6
  s_lshl_b32 s{sTMP+1}, s{sTMP+7}, 3
  s_add_u32 s{sTMP}, s{sTMP}, s{sTMP+1}
  s_add_u32 s{sTMP}, s{sTMP}, {L_ST}
  v_mov_b32 v{t}, s{sTMP}
  ds_read_b64 v[{vB}:{vB+1}], v{t}
  ds_read_b64 v[{vB+2}:{vB+3}], v{t} offset:16
  ds_read_b64 v[{vB+4}:{vB+5}], v{t} offset:32
  ds_read_b64 v[{vB+6}:{vB+7}], v{t} offset:48
  s_lshl_b32 s{sTMP}, s{sCPH}, 13
  s_lshl_b32 s{sTMP+1}, s{sTMP+7}, 10
  s_add_u32 s{sTMP}, s{sTMP}, s{sTMP+1}
  s_add_u32 s{sTMP}, s{sTMP}, {L_FL}
  v_lshlrev_b32 v{t+1}, 4, v{vLANE}
  v_add_u32 v{t+1}, s{sTMP}, v{t+1}
  ds_read_b128 v[{vACC}:{vACC+3}], v{t+1}
  ds_read_b128 v[{vACC+4}:{vACC+7}], v{t+1} offset:2048
  ds_read_b128 v[{vACC+8}:{vACC+11}], v{t+1} offset:4096
  ds_read_b128 v[{vACC+12}:{vACC+15}], v{t+1} offset:6144
  s_waitcnt lgkmcnt(0)
  v_max3_f32 v{t+2}, v{vB}, v{vB+2}, v{vB+4}
  v_max_f32 v{t+2}, v{t+2}, v{vB+6}           ; M
  v_sub_f32 v{vB}, v{vB}, v{t+2}
  v_sub_f32 v{vB+2}, v{vB+2}, v{t+2}
  v_sub_f32 v{vB+4}, v{vB+4}, v{t+2}
  v_sub_f32 v{vB+6}, v{vB+6}, v{t+2}
  v_exp_f32 v{vB}, v{vB}
  v_exp_f32 v{vB+2}, v{vB+2}
  v_exp_f32 v{vB+4}, v{vB+4}
  v_exp_f32 v{vB+6}, v{vB+6}
  s_nop 0
  v_mul_f32 v{t+3}, v{vB}, v{vB+1}
  v_fmac_f32 v{t+3}, v{vB+2}, v{vB+3}
  v_fmac_f32 v{t+3}, v{vB+4}, v{vB+5}
  v_fmac_f32 v{t+3}, v{vB+6}, v{vB+7}         ; L
""")
    for k in range(4):
        g(f"""  v_mul_f32 v{vB+8+k}, v{vB}, v{vACC+k}
  v_fmac_f32 v{vB+8+k}, v{vB+2}, v{vACC+4+k}
  v_fmac_f32 v{vB+8+k}, v{vB+4}, v{vACC+8+k}
  v_fmac_f32 v{vB+8+k}, v{vB+6}, v{vACC+12+k}""")
    tag_embed(g,[vB+8,vB+9,vB+10,vB+11],vX,sTMP)
    g(f"""
  s_lshl_b32 s{sTMP}, s{sTMP+2}, 10
  s_add_u32 s{sTMP}, s{sTMP}, {WS_PART}
  v_lshlrev_b32 v{t}, 4, v{vLANE}
  v_add_u32 v{t}, s{sTMP}, v{t}
  global_store_dwordx4 v{t}, v[{vB+8}:{vB+11}], s[{sWS}:{sWS+1}] sc1
  v_mov_b32 v{vB+12}, v{t+2}
  v_mov_b32 v{vB+13}, v{t+3}
  v_mov_b32 v{vB+14}, s{sT}
  v_mov_b32 v{vB+15}, s{sT}
  s_lshl_b32 s{sTMP}, s{sTMP+2}, 4
  s_add_u32 s{sTMP}, s{sTMP}, {WS_STAT}
  v_mov_b32 v{t}, s{sTMP}
  s_mov_b64 exec, 1
  global_store_dwordx4 v{t}, v[{vB+12}:{vB+15}], s[{sWS}:{sWS+1}] sc1
  s_mov_b64 exec, -1
  s_add_u32 s{sTMP+7}, s{sTMP+7}, 1
  s_add_u32 s{sTMP+2}, s{sTMP+2}, 32
  s_cmp_lt_u32 s{sTMP+7}, s{sTMP+6}
  s_cbranch_scc1 L_merge_{u}
L_nomerge_{u}:
  s_cmp_eq_u32 s{sNXT}, 2
  s_cbranch_scc1 L_tail
  s_add_u32 s{sCPH}, s{sCPH}, 1
  s_mov_b32 s{sNXT}, 0
""")
    emit_reset_and_q(g)
    g(f"  s_branch L_body_b{b^1}")

def emit_reset_and_q(g):
    t=vT
    g(f"""
  v_and_b32 v{t}, 1, v{vLANE}
  s_cmp_eq_u32 s{sCPH}, 2
  s_cselect_b32 s{sTMP}, 512, 0
  v_mul_u32_u24 v{t}, s{sTMP}, v{t}
  s_lshl_b32 s{sTMP}, s{sCPH}, 9
  s_add_u32 s{sTMP}, s{sTMP}, {L_QC}
  v_add_u32 v{t}, s{sTMP}, v{t}
  v_lshrrev_b32 v{t+1}, 4, v{vLANE}
  v_lshl_add_u32 v{t}, v{t+1}, 4, v{t}
""")
    for j in range(8):
        g(f"  ds_read_b128 a[{aQ+4*j}:{aQ+4*j+3}], v{t} offset:{j*64}")
    g(f"""
  v_mov_b32 v{vM}, 0xff800000
  v_mov_b32 v{vMC}, 0xff800000
  v_mov_b32 v{vL}, 0""")
    for r in range(32): g(f"  v_mov_b32 v{vACC+r}, 0")
    g("  s_waitcnt lgkmcnt(0)")

def emit_role(g,o,p,u):
    t=vT; D0=24; D1=28; S0=32; S1=36
    g(f"""
  s_lshr_b32 s{sTMP}, s2, 4                   ; h
  s_add_u32 s{sTMP}, s{sTMP}, {p*16}
  s_lshl_b32 s{sTMP}, s{sTMP}, 2
  s_add_u32 s{sTMP}, s{sTMP}, s{sW}           ; (p*16+h)*4 + b
  s_lshl_b32 s{sTMP}, s{sTMP}, 3
  s_lshl_b32 s{sTMP+1}, s{sTMP}, 4
  s_add_u32 s{sTMP+1}, s{sTMP+1}, {WS_STAT}
  s_lshl_b32 s{sTMP+2}, s{sTMP}, 10
  s_add_u32 s{sTMP+2}, s{sTMP+2}, {WS_PART}
  s_lshr_b32 s{sTMP+3}, s2, 2
  s_and_b32 s{sTMP+3}, s{sTMP+3}, 3           ; dq
  s_lshl_b32 s{sTMP+3}, s{sTMP+3}, 8
  s_add_u32 s{sTMP+2}, s{sTMP+2}, s{sTMP+3}
  v_lshrrev_b32 v{t}, 4, v{vLANE}             ; grp
  v_and_b32 v{t+1}, 15, v{vLANE}
  v_lshlrev_b32 v{t+2}, 4, v{t}
  v_add_u32 v{t+2}, s{sTMP+1}, v{t+2}
  v_lshlrev_b32 v{t+3}, 10, v{t}
  v_lshl_add_u32 v{t+3}, v{t+1}, 4, v{t+3}
  v_add_u32 v{t+3}, s{sTMP+2}, v{t+3}
  v_add_u32 v{t+4}, 4096, v{t+3}              ; j=grp+4
  s_mov_b32 s{sTMP+4}, 0
  s_mov_b32 s{sTMP+5}, 0x0c0c0400
  s_mov_b32 s{sTMP+6}, 0x04000c0c
L_role_poll_{u}:
  global_load_dwordx4 v[{S0}:{S0+3}], v{t+2}, s[{sWS}:{sWS+1}] sc1
  global_load_dwordx4 v[{S1}:{S1+3}], v{t+2}, s[{sWS}:{sWS+1}] offset:64 sc1
  global_load_dwordx4 v[{D0}:{D0+3}], v{t+3}, s[{sWS}:{sWS+1}] sc1
  global_load_dwordx4 v[{D1}:{D1+3}], v{t+4}, s[{sWS}:{sWS+1}] sc1
  s_waitcnt vmcnt(0)
  v_perm_b32 v{t+5}, v{D0+1}, v{D0}, s{sTMP+5}      ; [b0(D0), b0(D0+1), 0, 0]
  v_perm_b32 v{t+6}, v{D0+3}, v{D0+2}, s{sTMP+6}    ; [0,0,b0(D0+2), b0(D0+3)]
  v_or_b32 v{t+5}, v{t+5}, v{t+6}
  v_perm_b32 v{t+6}, v{D1+1}, v{D1}, s{sTMP+5}
  v_perm_b32 v{t+7}, v{D1+3}, v{D1+2}, s{sTMP+6}
  v_or_b32 v{t+6}, v{t+6}, v{t+7}
  v_xor_b32 v{t+5}, s{sTB}, v{t+5}
  v_xor_b32 v{t+6}, s{sTB}, v{t+6}
  v_or_b32 v{t+5}, v{t+5}, v{t+6}
  v_xor_b32 v{t+6}, s{sT}, v{S0+2}
  v_xor_b32 v{t+7}, s{sT}, v{S1+2}
  v_or3_b32 v{t+5}, v{t+5}, v{t+6}, v{t+7}
  v_xor_b32 v{t+6}, s{sT}, v{S0+3}
  v_xor_b32 v{t+7}, s{sT}, v{S1+3}
  v_or3_b32 v{t+5}, v{t+5}, v{t+6}, v{t+7}
  v_cmp_ne_u32 vcc, 0, v{t+5}
  s_cbranch_vccz L_role_ok_{u}
""")
    spin_guard(g,sTMP+4,"L_fail")
    g(f"""
  s_sleep 1
  s_branch L_role_poll_{u}
L_role_ok_{u}:
  v_max_f32 v{t+5}, v{S0}, v{S1}
  v_mov_b32 v{t+6}, v{t+5}
  s_nop 1
  v_permlane16_swap_b32 v{t+5}, v{t+6}
  v_max_f32 v{t+5}, v{t+5}, v{t+6}
  v_mov_b32 v{t+6}, v{t+5}
  s_nop 1
  v_permlane32_swap_b32 v{t+5}, v{t+6}
  v_max_f32 v{t+5}, v{t+5}, v{t+6}            ; M
  v_sub_f32 v{S0}, v{S0}, v{t+5}
  v_sub_f32 v{S1}, v{S1}, v{t+5}
  v_exp_f32 v{S0}, v{S0}
  v_exp_f32 v{S1}, v{S1}
  s_nop 0
  v_mul_f32 v{t+5}, v{S0}, v{S0+1}
  v_fmac_f32 v{t+5}, v{S1}, v{S1+1}           ; partial L
""")
    for k in range(4):
        g(f"  v_mul_f32 v{D0+k}, v{S0}, v{D0+k}\n  v_fmac_f32 v{D0+k}, v{S1}, v{D1+k}")
    vals=[D0,D0+1,D0+2,D0+3,t+5]
    tmp=[D1,D1+1,D1+2,D1+3,t+6]
    for sw in ('v_permlane16_swap_b32','v_permlane32_swap_b32'):
        for v,w_ in zip(vals,tmp): g(f"  v_mov_b32 v{w_}, v{v}")
        g("  s_nop 1")
        for v,w_ in zip(vals,tmp): g(f"  {sw} v{v}, v{w_}")
        for v,w_ in zip(vals,tmp): g(f"  v_add_f32 v{v}, v{v}, v{w_}")
    g(f"""
  v_rcp_f32 v{t+5}, v{t+5}
  s_nop 0
  v_mul_f32 v{D0}, v{D0}, v{t+5}
  v_mul_f32 v{D0+1}, v{D0+1}, v{t+5}
  v_mul_f32 v{D0+2}, v{D0+2}, v{t+5}
  v_mul_f32 v{D0+3}, v{D0+3}, v{t+5}
  v_cvt_pk_bf16_f32 v{D0}, v{D0}, v{D0+1}
  v_cvt_pk_bf16_f32 v{D0+1}, v{D0+2}, v{D0+3}
  s_lshl_b32 s{sTMP}, s{sW}, 7
  s_add_u32 s{sTMP}, s{sTMP}, {L_OB+p*512}
  v_lshlrev_b32 v{t+1}, 3, v{t+1}
  v_add_u32 v{t+1}, s{sTMP}, v{t+1}
  ds_write_b64 v{t+1}, v[{D0}:{D0+1}]
  s_waitcnt lgkmcnt(0)
  s_barrier
  v_and_b32 v{t+1}, 3, v{vLANE}
  v_lshlrev_b32 v{t+2}, 7, v{t+1}
  v_lshl_add_u32 v{t+2}, v{t}, 4, v{t+2}
  v_add_u32 v{t+2}, {L_OB+p*512}, v{t+2}
  ds_read_b128 v[40:43], v{t+2}
  ds_read_b128 v[44:47], v{t+2} offset:64
  v_lshrrev_b32 v{t+3}, 2, v{vLANE}
  v_and_b32 v{t+3}, 3, v{t+3}
  v_lshl_add_u32 v{t+3}, v{t}, 3, v{t+3}
  v_mul_u32_u24 v{t+3}, 224, v{t+3}
  v_lshl_add_u32 v{t+3}, v{t+1}, 3, v{t+3}
  s_lshl_b32 s{sTMP}, s{sW}, 6
  s_add_u32 s{sTMP}, s{sTMP}, {L_WST+p*14336}
  v_add_u32 v{t+3}, s{sTMP}, v{t+3}
""")
    TBq=48
    for c in range(2):
        for s in range(2):
            r=TBq+8*c+4*s
            g(f"  ds_read_b64_tr_b16 v[{r}:{r+1}], v{t+3} offset:{c*32+s*32*224}")
            g(f"  ds_read_b64_tr_b16 v[{r+2}:{r+3}], v{t+3} offset:{c*32+s*32*224+4*224}")
    g("  s_waitcnt lgkmcnt(0)")
    for c in range(2):
        d=64+4*c
        g(f"  v_mfma_f32_16x16x32_bf16 v[{d}:{d+3}], v[40:43], v[{TBq+8*c}:{TBq+8*c+3}], 0")
    for c in range(2):
        d=64+4*c
        g(f"  v_mfma_f32_16x16x32_bf16 v[{d}:{d+3}], v[44:47], v[{TBq+8*c+4}:{TBq+8*c+7}], v[{d}:{d+3}]")
    g(f"""
  v_and_b32 v{t+4}, 1, v{t}
  v_cmp_eq_u32 vcc, 1, v{t+4}
  s_nop 6
  v_cndmask_b32 v64, v64, v68, vcc
  v_cndmask_b32 v65, v65, v69, vcc
  v_cndmask_b32 v66, v66, v70, vcc
  v_cndmask_b32 v67, v67, v71, vcc
  v_mov_b32 v{vX}, s{sTB}
""")
    tag_embed(g,[64,65,66,67],vX,sTMP)
    g(f"""
  s_and_b32 s{sTMP}, s2, 3
  s_add_u32 s{sTMP}, s{sTMP}, {p*4}
  s_lshl_b32 s{sTMP}, s{sTMP}, 6
  s_lshr_b32 s{sTMP+1}, s2, 2
  s_add_u32 s{sTMP}, s{sTMP}, s{sTMP+1}
  s_mul_i32 s{sTMP}, s{sTMP}, {112*16}
  s_lshl_b32 s{sTMP+1}, s{sW}, 9              ; 2w*16*16
  s_add_u32 s{sTMP}, s{sTMP}, s{sTMP+1}
  s_add_u32 s{sTMP}, s{sTMP}, {WS_Y}
  v_and_b32 v{t+5}, 15, v{vLANE}
  v_lshlrev_b32 v{t+5}, 4, v{t+5}
  v_lshl_add_u32 v{t+5}, v{t+4}, 8, v{t+5}    ; + (g&1)*256
  v_add_u32 v{t+5}, s{sTMP}, v{t+5}
  s_cmp_eq_u32 s{sW}, 3
  s_cselect_b32 s{sTMP+2}, 0xffff, -1
  s_mov_b32 s{sTMP+3}, 0
  s_mov_b64 exec, s[{sTMP+2}:{sTMP+3}]
  global_store_dwordx4 v{t+5}, v[64:67], s[{sWS}:{sWS+1}] sc1
  s_mov_b64 exec, -1
""")

def emit_final(g,o,u,update_epoch):
    t=vT
    g(f"""
  ; ---- finalizer f=s2<224 : p=f/112, r=f%112, cq=r/28, cc=(r%28)*4
  s_cmp_ge_u32 s2, 224
  s_cbranch_scc1 L_done
  s_cmp_ge_u32 s2, 112
  s_cselect_b32 s{sTMP}, 1, 0                 ; p
  s_mul_i32 s{sTMP+1}, s{sTMP}, 112
  s_sub_u32 s{sTMP+1}, s2, s{sTMP+1}          ; r
  s_mul_i32 s{sTMP+2}, s{sTMP+1}, 2341
  s_lshr_b32 s{sTMP+2}, s{sTMP+2}, 16         ; cq = r/28
  s_mul_i32 s{sTMP+3}, s{sTMP+2}, 28
  s_sub_u32 s{sTMP+3}, s{sTMP+1}, s{sTMP+3}
  s_lshl_b32 s{sTMP+3}, s{sTMP+3}, 2          ; cc
  s_lshl_b32 s{sTMP+4}, s{sTMP}, 2
  s_add_u32 s{sTMP+4}, s{sTMP+4}, s{sTMP+2}
  s_lshl_b32 s{sTMP+4}, s{sTMP+4}, 6
  s_lshl_b32 s{sTMP+5}, s{sW}, 4
  s_add_u32 s{sTMP+4}, s{sTMP+4}, s{sTMP+5}
  s_mul_i32 s{sTMP+4}, s{sTMP+4}, 1792
  s_lshl_b32 s{sTMP+5}, s{sTMP+3}, 4
  s_add_u32 s{sTMP+4}, s{sTMP+4}, s{sTMP+5}
  s_add_u32 s{sTMP+4}, s{sTMP+4}, {WS_Y}
  v_lshrrev_b32 v{t}, 2, v{vLANE}
  v_mul_u32_u24 v{t}, 1792, v{t}
  v_and_b32 v{t+1}, 3, v{vLANE}
  v_lshl_add_u32 v{t}, v{t+1}, 4, v{t}
  v_add_u32 v{t}, s{sTMP+4}, v{t}
  s_mov_b32 s{sTMP+7}, 0
  s_mov_b32 s{sTMP+5}, 0x0c0c0400
  s_mov_b32 s{sTMP+6}, 0x04000c0c
L_fin_poll_{u}:
  global_load_dwordx4 v[24:27], v{t}, s[{sWS}:{sWS+1}] sc1
  s_waitcnt vmcnt(0)
  v_perm_b32 v{t+2}, v25, v24, s{sTMP+5}
  v_perm_b32 v{t+3}, v27, v26, s{sTMP+6}
  v_or_b32 v{t+2}, v{t+2}, v{t+3}
  v_cmp_ne_u32 vcc, s{sTB}, v{t+2}
  s_cbranch_vccz L_fin_ok_{u}
""")
    spin_guard(g,sTMP+7,"L_fail")
    g(f"""
  s_sleep 1
  s_branch L_fin_poll_{u}
L_fin_ok_{u}:
""")
    for rr in (4,8):
        for k in range(4): g(f"  v_add_f32_dpp v{28+k}, v{24+k}, v{24+k} row_ror:{rr} row_mask:0xf bank_mask:0xf")
        for k in range(4): g(f"  v_mov_b32 v{24+k}, v{28+k}")
        g("  s_nop 1")
    for sw in ('v_permlane16_swap_b32','v_permlane32_swap_b32'):
        for k in range(4): g(f"  v_mov_b32 v{28+k}, v{24+k}")
        g("  s_nop 1")
        for k in range(4): g(f"  {sw} v{24+k}, v{28+k}")
        for k in range(4): g(f"  v_add_f32 v{24+k}, v{24+k}, v{28+k}")
    g(f"""
  s_lshl_b32 s{sTMP+4}, s{sW}, 6
  s_add_u32 s{sTMP+4}, s{sTMP+4}, {L_FB}
  v_lshlrev_b32 v{t+2}, 4, v{t+1}
  v_add_u32 v{t+2}, s{sTMP+4}, v{t+2}
  ds_write_b128 v{t+2}, v[24:27]
  s_waitcnt lgkmcnt(0)
  s_barrier
  s_cmp_eq_u32 s{sW}, 0
  s_cbranch_scc0 L_done
  v_lshrrev_b32 v{t+3}, 2, v{vLANE}
  v_and_b32 v{t+3}, 3, v{t+3}                 ; b
  v_lshlrev_b32 v{t+4}, 4, v{t+1}
  v_lshl_add_u32 v{t+4}, v{t+3}, 2, v{t+4}
  v_add_u32 v{t+4}, {L_FB}, v{t+4}
  ds_read_b32 v24, v{t+4}
  ds_read_b32 v25, v{t+4} offset:64
  ds_read_b32 v26, v{t+4} offset:128
  ds_read_b32 v27, v{t+4} offset:192
  s_waitcnt lgkmcnt(0)
  v_add_f32 v24, v24, v25
  v_add_f32 v26, v26, v27
  v_add_f32 v24, v24, v26
  v_cvt_pk_bf16_f32 v24, v24, v24
  s_mul_i32 s{sTMP+4}, s{sTMP}, 448
  s_mul_i32 s{sTMP+5}, s{sTMP+2}, 112
  s_add_u32 s{sTMP+4}, s{sTMP+4}, s{sTMP+5}
  s_add_u32 s{sTMP+4}, s{sTMP+4}, s{sTMP+3}
  s_lshl_b32 s{sTMP+4}, s{sTMP+4}, 1
  v_mul_u32_u24 v{t+4}, 1792, v{t+3}
  v_lshl_add_u32 v{t+4}, v{t+1}, 1, v{t+4}
  v_add_u32 v{t+4}, s{sTMP+4}, v{t+4}
  s_mov_b64 exec, 0xffff
  global_store_short v{t+4}, v24, s[{sOUT}:{sOUT+1}]
  s_mov_b64 exec, -1
""")
    if update_epoch:
        g(f"""
  s_cmp_eq_u32 s2, 0
  s_cbranch_scc0 L_done
  v_mov_b32 v24, s{sT}
  v_mov_b32 v25, {WS_EPOCH}
  s_mov_b64 exec, 1
  global_store_dword v25, v24, s[{sWS}:{sWS+1}] sc1
  s_mov_b64 exec, -1
""")

def kd(name,nv,nacc,nsg=96):
    acc=(nv+3)//4*4
    return f""".p2align 6
.amdhsa_kernel {name}
  .amdhsa_next_free_vgpr {acc+nacc if nacc else nv}
  .amdhsa_next_free_sgpr {nsg}
  .amdhsa_accum_offset {acc}
  .amdhsa_group_segment_fixed_size 0
  .amdhsa_kernarg_size 104
  .amdhsa_user_sgpr_count 2
  .amdhsa_user_sgpr_kernarg_segment_ptr 1
  .amdhsa_system_sgpr_workgroup_id_x 1
  .amdhsa_float_denorm_mode_32 3
.end_amdhsa_kernel
"""
def khead(name): return f".globl {name}\n.p2align 8\n.type {name},@function\n{name}:\n"

def load_ptrs(g):
    g(f"""
  s_load_dwordx2 s[{sKA}:{sKA+1}], s[0:1], 8
  s_load_dwordx2 s[{sVA}:{sVA+1}], s[0:1], 16
  s_load_dwordx2 s[{sKB}:{sKB+1}], s[0:1], 48
  s_load_dwordx2 s[{sVB}:{sVB+1}], s[0:1], 56
  s_load_dwordx2 s[{sOUT}:{sOUT+1}], s[0:1], 80
  s_load_dwordx2 s[{sDBG}:{sDBG+1}], s[0:1], 88
  s_load_dwordx2 s[{sWS}:{sWS+1}], s[0:1], 96
  v_lshrrev_b32 v1, 6, v0
  v_and_b32 v{vLANE}, 63, v0
  s_nop 0
  v_readfirstlane_b32 s{sW}, v1
  s_lshr_b32 s{sG}, s2, 3
  s_and_b32 s{sJ}, s2, 7
  s_waitcnt lgkmcnt(0)
""")

def fail_and_done(g,name,stamps=False):
    if stamps and STAMPS:
        g(f"""
  s_branch L_done
L_fail:
  v_mov_b32 v24, 0xdead
  v_mov_b32 v25, 4
  s_mov_b64 exec, 1
  global_store_dword v25, v24, s[{sDBG}:{sDBG+1}]
  s_mov_b64 exec, -1
  s_endpgm
L_done:""")
        stamp(g,9)
        g(f"  s_mov_b32 s{sST+10}, s{sKN}")
        stamp_write(g)
        g("L_exit:\n  s_endpgm")
        return
    g(f"""
  s_branch L_done
L_fail:
  v_mov_b32 v24, 0xdead
  v_mov_b32 v25, 4
  s_mov_b64 exec, 1
  global_store_dword v25, v24, s[{sDBG}:{sDBG+1}]
  s_mov_b64 exec, -1
L_done:
L_exit:
  s_endpgm
""")

def uniq(txt,sfx):
    import re
    return re.sub(r'\b(L_[A-Za-z0-9_]+)',lambda m:m.group(1)+sfx,txt)

def k_qproj(o):
    g=G(); name='qproj_kernel'
    g("  s_cmp_ge_u32 s2, 256\n  s_cbranch_scc1 L_exit")
    load_ptrs(g); g(f"  v_mov_b32 v0, v{vLANE}")
    load_tags(g,sWS,sT,sTB,sTMP)
    emit_qproj(g,'k1',sWS,sT,'q')
    g("  s_waitcnt vmcnt(0)")
    fail_and_done(g,name)
    return khead(name)+uniq(g.text(),'_k1'), kd(name,128,0), name

def k_main(o):
    g=G(); name=KN+'_kernel' if opt(o,'single',False) else 'main_kernel'
    fuseq=opt(o,'fuseq',False); fuset=opt(o,'fuset',False); pol=o.get('pol','nt')
    size0,tab=chunk_table(o)
    g("  s_cmp_ge_u32 s2, 256\n  s_cbranch_scc1 L_exit")
    early=opt(o,'early',True) and fuseq
    pace=opt(o,'pace',8)
    if early: emit_qproj_ptrs(g)
    load_ptrs(g)
    stamp_init(g); stamp(g,0)
    g(f"""
  s_cmp_eq_u32 s{sW}, 4
  s_cbranch_scc1 L_aux
  v_and_b32 v{vOK}, 15, v{vLANE}
  v_lshlrev_b32 v{vOK}, 9, v{vOK}
  v_lshrrev_b32 v{vT}, 4, v{vLANE}
  v_lshl_add_u32 v{vOK}, v{vT}, 4, v{vOK}        ; (l&15)*512 + (l>>4)*16
  v_lshrrev_b32 v{vT}, 5, v{vLANE}
  v_lshlrev_b32 v{vT}, 12, v{vT}
  v_and_b32 v{vOV}, 31, v{vLANE}
  v_lshl_add_u32 v{vOV}, v{vOV}, 4, v{vT}        ; (l>>5)*4096 + (l&31)*16
  s_lshl_b32 s{sTMP+2}, s{sG}, 1
""")
    set_srd_head(g,sKB,sVB,sTMP+2)
    g(f"""
  s_lshl_b32 s{sOFF}, s{sJ}, 20
  s_lshl_b32 s{sTMP}, s{sW}, 18
  s_add_u32 s{sOFF}, s{sOFF}, s{sTMP}
""")
    if early: g("  s_barrier")
    emit_k_loads(g,0,pol)
    if pace<8: g(f"  s_waitcnt vmcnt({pace})")
    emit_v_loads(g,0,pol)
    g(f"  s_add_u32 s{sOFF}, s{sOFF}, 8192")
    if pace<16: g(f"  s_waitcnt vmcnt({pace})")
    emit_k_loads(g,1,pol)
    if pace<24: g(f"  s_waitcnt vmcnt({pace})")
    emit_v_loads(g,1,pol)
    g(f"""
  s_add_u32 s{sOFF}, s{sOFF}, 8192
  s_mov_b32 s{sCNT}, 30
  s_mov_b32 s{sPH}, 0
  s_mov_b32 s{sCPH}, 0
  s_mov_b32 s{sNXT}, 0
  s_mov_b32 s{sKN}, 0
  s_mov_b32 s{sTRIG}, 0
  s_mov_b32 s{sSKIP}, 1
  s_mov_b32 s{sC}, {f2h(SCALE)}
  s_mov_b32 s{sSLO}, 0x05040100
  s_mov_b32 s{sSHI}, 0x07060302
""")
    load_tags(g,sWS,sT,sTB,sTMP)
    stamp(g,1)
    g("  s_barrier")
    emit_reset_and_q(g)
    stamp(g,2)
    emit_body(g,o,0); emit_body(g,o,1)
    emit_rare(g,0); emit_rare(g,1)
    emit_flush(g,o,0); emit_flush(g,o,1)
    g("L_tail:")
    stamp(g,6)
    if fuset:
        g("  s_waitcnt vmcnt(0)")
        emit_role(g,o,1,'B'); stamp(g,7); emit_role(g,o,0,'A'); stamp(g,8); emit_final(g,o,'f',True)
        g("  s_waitcnt vmcnt(0)")
    else:
        g("  s_waitcnt vmcnt(0)")
    g("  s_branch L_done")
    g(f"""
L_aux:
  v_mov_b32 v0, v{vLANE}
""")
    if opt(o,'prio',True): g("  s_setprio 3")
    if early:
        emit_qproj_issue(g)
        b0=opt(o,'b0wait',63)
        if b0<63: g(f"  s_waitcnt vmcnt({b0})")
        g("  s_barrier")
        stamp(g,8)
    load_tags(g,sWS,sT,sTB,sTMP)
    usecnt = sum(c for c,_ in tab)>0 and not opt(o,'rr',False)
    if usecnt: g(f"""
  s_cmp_eq_u32 s{sJ}, 0
  s_cbranch_scc0 L_noinit
  s_mul_i32 s{sTMP}, s{sG}, {CNT_STRIDE}
  s_add_u32 s{sTMP}, s{sTMP}, {WS_CNT}
  v_mov_b32 v72, s{sTMP}
  v_mov_b32 v74, 0
  v_mov_b32 v75, s{sT}
  s_mov_b64 exec, 1
  global_store_dwordx2 v72, v[74:75], s[{sWS}:{sWS+1}] sc1
  s_mov_b64 exec, -1
L_noinit:
""")
    g(f"""
  v_lshlrev_b32 v76, 2, v0
  v_mov_b32 v77, 0
  v_add_u32 v78, {L_CNT}, v76
  s_mov_b64 exec, 0xffff
  ds_write_b32 v78, v77
  s_mov_b64 exec, -1
  v_mov_b32 v77, -1
  v_add_u32 v78, {L_QUEUE}, v76
  ds_write_b32 v78, v77
  ds_write_b32 v78, v77 offset:256
""")
    stamp(g,1)
    if fuseq:
        if early: emit_qproj_compute(g,'fq',sWS,sT)
        else: emit_qproj(g,'fq',sWS,sT,'q')
    stamp(g,2)
    emit_qgather(g,'m',sWS,sT,sG,"L_fail_aux")
    stamp(g,3)
    g("  s_waitcnt lgkmcnt(0)\n  s_barrier")
    if fuset: emit_wo_stage(g,'m')
    g(f"""
  s_mov_b32 s{sKN}, 1
  s_mul_i32 s{sTMP+8}, s{sG}, {CNT_STRIDE}
  s_add_u32 s{sTMP+8}, s{sTMP+8}, {WS_CNT}
  v_mov_b32 v8, s{sTMP+8}
  v_mov_b32 v9, 1
  v_mov_b32 v10, {L_CNT+12}
""")
    if usecnt:
      g(f"""
  s_mov_b32 s{sTMP+9}, 0
L_cinit:
  global_load_dwordx2 v[14:15], v8, s[{sWS}:{sWS+1}] sc1
  s_waitcnt vmcnt(0)
  v_readfirstlane_b32 s{sTMP}, v15
  s_nop 0
  s_cmp_eq_u32 s{sTMP}, s{sT}
  s_cbranch_scc1 L_cinit_ok
""")
      spin_guard(g,sTMP+9,"L_fail_aux")
      g(f"""
  s_sleep 8
  s_branch L_cinit
L_cinit_ok:
""")
    g(f"""
L_sched:
  s_mov_b32 s{sTMP+9}, 0
L_sched_poll:
  ds_read_b32 v11, v10
  s_waitcnt lgkmcnt(0)
  v_readfirstlane_b32 s{sTMP}, v11
  s_nop 0
  s_cmp_ge_u32 s{sTMP}, s{sKN}
  s_cbranch_scc1 L_sched_go
""")
    spin_guard(g,sTMP+9,"L_fail_aux",limit=1000000)
    g(f"""
  s_sleep 4
  s_branch L_sched_poll
L_sched_go:
""")
    ndyn=sum(c for c,_ in tab)
    if ndyn==0:
        g(f"  s_mov_b32 s{sTMP+1}, -2")
    else:
        if opt(o,'rr',False):
            g(f"  s_sub_u32 s{sTMP}, s{sKN}, 1\n  s_lshl_b32 s{sTMP}, s{sTMP}, 3\n  s_add_u32 s{sTMP}, s{sTMP}, s{sJ}\n  s_mov_b32 s{sTMP+1}, -2")
        else:
            g(f"""
  s_mov_b64 exec, 1
  global_atomic_add v11, v8, v9, s[{sWS}:{sWS+1}] sc0 sc1
  s_mov_b64 exec, -1
  s_waitcnt vmcnt(0)
  v_readfirstlane_b32 s{sTMP}, v11
  s_mov_b32 s{sTMP+1}, -2
""")
        cbase=0; ubase=8*size0
        for n,(cnt,sz) in enumerate(tab):
            g(f"""
  s_cmp_lt_u32 s{sTMP}, {cbase+cnt}
  s_cbranch_scc0 L_tab_{n}
  s_sub_u32 s{sTMP+2}, s{sTMP}, {cbase}
  s_mul_i32 s{sTMP+2}, s{sTMP+2}, {sz}
  s_add_u32 s{sTMP+2}, s{sTMP+2}, {ubase}
  s_lshl_b32 s{sTMP+2}, s{sTMP+2}, 8
  s_or_b32 s{sTMP+1}, s{sTMP+2}, {sz}
  s_branch L_tab_done
L_tab_{n}:""")
            cbase+=cnt; ubase+=cnt*sz
        assert ubase==256,(ubase)
        g("L_tab_done:")
    g(f"""
  s_lshl_b32 s{sTMP+2}, s{sKN}, 2
  s_add_u32 s{sTMP+2}, s{sTMP+2}, {L_QUEUE}
  v_mov_b32 v12, s{sTMP+2}
  v_mov_b32 v13, s{sTMP+1}
  ds_write_b32 v12, v13
  s_add_u32 s{sKN}, s{sKN}, 1
  s_cmp_eq_u32 s{sTMP+1}, -2
  s_cbranch_scc0 L_sched
  s_waitcnt vmcnt(0) lgkmcnt(0)
  s_branch L_done
L_fail_aux:
  v_mov_b32 v24, 0xdeae
  v_mov_b32 v25, 12
  s_mov_b64 exec, 1
  global_store_dword v25, v24, s[{sDBG}:{sDBG+1}]
  s_mov_b64 exec, -1
""")
    fail_and_done(g,name,True)
    return khead(name)+uniq(g.text(),'_m'), kd(name,NARCH,NACC), name

def k_role(o):
    g=G(); name='role_kernel'
    g("  s_cmp_ge_u32 s2, 256\n  s_cbranch_scc1 L_exit")
    load_ptrs(g)
    load_tags(g,sWS,sT,sTB,sTMP)
    g(f"  s_cmp_eq_u32 s{sW}, 0\n  s_cbranch_scc0 L_nostage\n  v_mov_b32 v0, v{vLANE}")
    emit_wo_stage(g,'r')
    g(f"  v_mov_b32 v{vLANE}, v0\n  s_waitcnt vmcnt(0)\nL_nostage:\n  s_barrier")
    emit_role(g,o,1,'B'); emit_role(g,o,0,'A')
    g("  s_waitcnt vmcnt(0)")
    fail_and_done(g,name)
    return khead(name)+uniq(g.text(),'_k3'), kd(name,NARCH,0), name

def k_final(o):
    g=G(); name='final_kernel'
    g("  s_cmp_ge_u32 s2, 256\n  s_cbranch_scc1 L_exit")
    load_ptrs(g)
    load_tags(g,sWS,sT,sTB,sTMP)
    emit_final(g,o,'f',False)
    g("  s_waitcnt vmcnt(0)")
    fail_and_done(g,name)
    return khead(name)+uniq(g.text(),'_k4'), kd(name,NARCH,0), name

HEADER=open('cdna_kernels/'+KN+'.s.ref').read().split('; Override launch geometry')[0]

def build(o):
    global STAMPS
    STAMPS=opt(o,'stamps',False)
    global WQPOL
    WQPOL=o.get('wqpol','nt')
    global WQTEST
    WQTEST=opt(o,'wqtest',0)
    fuseq=opt(o,'fuseq',False); fuset=opt(o,'fuset',False)
    single=fuseq and fuset
    o['single']=single
    ks=[]; launch=[]
    if not fuseq:
        ks.append(k_qproj(o)); launch.append(f"; @launch kernel=qproj_kernel grid=(256,1,1) block=(64,1,1) lds={LDS_SIZE}")
    m=k_main(o); ks.append(m)
    if single: launch.append(f"; @launch grid=(256,1,1) block=(320,1,1) lds={LDS_SIZE}")
    else: launch.append(f"; @launch kernel={m[2]} grid=(256,1,1) block=(320,1,1) lds={LDS_SIZE}")
    if not fuset:
        ks.append(k_role(o)); launch.append(f"; @launch kernel=role_kernel grid=(256,1,1) block=(256,1,1) lds={LDS_SIZE}")
        ks.append(k_final(o)); launch.append(f"; @launch kernel=final_kernel grid=(256,1,1) block=(256,1,1) lds={LDS_SIZE}")
    src=HEADER+"\n".join(launch)+'\n.amdgcn_target "amdgcn-amd-amdhsa--gfx950"\n.text\n'
    src+="".join(k[0] for k in ks)
    src+='.section .rodata,"a"\n'+"".join(k[1] for k in ks)
    if opt(o,'meta',False):
        src+=".amdgpu_metadata\n---\namdhsa.version: [1, 2]\namdhsa.kernels:\n"
        for k in ks:
            src+=f"  - .name: {k[2]}\n    .symbol: {k[2]}.kd\n    .kernarg_segment_size: 104\n    .kernarg_segment_align: 8\n    .group_segment_fixed_size: 0\n    .private_segment_fixed_size: 0\n    .wavefront_size: 64\n    .sgpr_count: 96\n    .vgpr_count: 256\n    .max_flat_workgroup_size: 320\n    .args:\n      - {{.name: kernargs, .size: 104, .offset: 0, .value_kind: by_value}}\n"
        src+="...\n.end_amdgpu_metadata\n"
    return src,launch

if __name__=='__main__':
    out=sys.argv[1]; o=dict(a.split('=',1) for a in sys.argv[2:])
    src,launch=build(o)
    open(out,'w').write(src)
    print("\n".join(launch))
```

```python
import sys
import gen as G1
from gen import *

L_X2=0xE200
sJOFF=31; sRET=33; sX2=34
CTR=L_CNT+16

def stamp(g,i): G1.stamp(g,i)

def claim(g):
    g(f"""
  v_mov_b32 v13, {CTR}
  v_mov_b32 v14, 1
  s_mov_b64 exec, 1
  ds_add_rtn_u32 v12, v13, v14
  s_mov_b64 exec, -1""")

def decode(g,u):
    g(f"""
  s_waitcnt lgkmcnt(0)
  v_readfirstlane_b32 s{sTMP}, v12
  s_nop 0
  s_lshr_b32 s{sTMP+1}, s{sTMP}, 7
  s_cmp_eq_u32 s{sTMP+1}, s{sPH}
  s_cbranch_scc0 L_newph_{u}
L_phok_{u}:
  s_and_b32 s{sTMP}, s{sTMP}, 127
  s_lshl_b32 s{sTMP}, s{sTMP}, 13
  s_add_u32 s{sOFF}, s{sTMP}, s{sJOFF}""")

def newph(g,u):
    g(f"""
L_newph_{u}:
  s_mov_b32 s{sPH}, s{sTMP+1}
  s_cmp_eq_u32 s{sPH}, 1
  s_cbranch_scc0 L_np2_{u}
  s_lshl_b32 s{sTMP+2}, s{sG}, 1
  s_add_u32 s{sTMP+2}, s{sTMP+2}, 1
  s_mov_b32 s{sTMP+3}, s{sTMP}""")
    set_srd_head(g,sKB,sVB,sTMP+2)
    g(f"""
  s_mov_b32 s{sTMP}, s{sTMP+3}
  s_branch L_phok_{u}
L_np2_{u}:
  s_cmp_eq_u32 s{sPH}, 2
  s_cbranch_scc0 L_np3_{u}
  s_mov_b32 s{sTMP+3}, s{sTMP}""")
    set_srd_head(g,sKA,sVA,sG)
    g(f"""
  s_mov_b32 s{sTMP}, s{sTMP+3}
  s_branch L_phok_{u}
L_np3_{u}:
  s_mov_b32 s{sPH}, 3
  s_mov_b32 s{sK+2}, 0
  s_mov_b32 s{sV+2}, 0
  s_branch L_phok_{u}""")

def body(g,o,b,u,kwait,vwait,load,src='reg',vearly=False):
    pol=o.get('pol','nt'); t=vT
    g(f"L_body_{u}:")
    if src=='lds':
        g(f"""
  s_waitcnt vmcnt({kwait})
  v_lshlrev_b32 v13, 4, v{vLANE}
  v_add_u32 v13, s{sX2}, v13""")
        for j in range(8): g(f"  ds_read_b128 a[{aK[b]+4*j}:{aK[b]+4*j+3}], v13 offset:{j*1024}")
        for r in range(8): g(f"  ds_read_b128 v[{vV[b]+4*r}:{vV[b]+4*r+3}], v13 offset:{8192+r*1024}")
        g("  s_waitcnt lgkmcnt(0)")
    else:
        g(f"  s_waitcnt vmcnt({kwait})")
    if load is not None: claim(g)
    for j in range(8):
        c="0" if j==0 else f"v[{vS}:{vS+3}]"
        g(f"  v_mfma_f32_16x16x32_bf16 v[{vS}:{vS+3}], a[{aK[b]+4*j}:{aK[b]+4*j+3}], a[{aQ+4*j}:{aQ+4*j+3}], {c}")
    if load is not None:
        decode(g,u)
        emit_k_loads(g,load,pol)
        if vearly: emit_v_loads(g,load,pol)
    else:
        g("  s_nop 7")
    g(f"""
  v_max3_f32 v{t}, v{vS}, v{vS+1}, v{vS+2}
  v_max_f32 v{t}, v{t}, v{vS+3}
  v_mov_b32 v{t+1}, v{t}
  s_nop 1
  v_permlane16_swap_b32 v{t}, v{t+1}
  v_max_f32 v{t}, v{t}, v{t+1}
  v_mov_b32 v{t+1}, v{t}
  s_nop 1
  v_permlane32_swap_b32 v{t}, v{t+1}
  v_max_f32 v{t}, v{t}, v{t+1}
  v_cmp_gt_f32 vcc, v{t}, v{vM}
  s_cbranch_vccnz L_rare_{u}
L_back_{u}:
  v_fma_f32 v{t+2}, v{vS}, s{sC}, -v{vMC}
  v_fma_f32 v{t+3}, v{vS+1}, s{sC}, -v{vMC}
  v_fma_f32 v{t+4}, v{vS+2}, s{sC}, -v{vMC}
  v_fma_f32 v{t+5}, v{vS+3}, s{sC}, -v{vMC}
  v_exp_f32 v{t+2}, v{t+2}
  v_exp_f32 v{t+3}, v{t+3}
  v_exp_f32 v{t+4}, v{t+4}
  v_exp_f32 v{t+5}, v{t+5}
  v_add_f32 v{t+6}, v{t+2}, v{t+3}
  v_cvt_pk_bf16_f32 v{vP}, v{t+2}, v{t+3}
  v_add_f32 v{t+7}, v{t+4}, v{t+5}
  v_cvt_pk_bf16_f32 v{vP+1}, v{t+4}, v{t+5}
  v_add_f32 v{t+6}, v{t+6}, v{t+7}
  v_mov_b32 v{vP+2}, v{vP}
  v_mov_b32 v{vP+3}, v{vP+1}
  v_add_f32 v{vL}, v{vL}, v{t+6}
  s_nop 0
  v_permlane16_swap_b32 v{vP}, v{vP+2}
  v_permlane16_swap_b32 v{vP+1}, v{vP+3}""")
    if vwait is not None: g(f"  s_waitcnt vmcnt({vwait})")
    for t2 in range(2):
        R=[vV[b]+4*(4*t2+rr) for rr in range(4)]
        for dw in range(4):
            g(f"  v_perm_b32 v{vB+4*dw}, v{R[1]+dw}, v{R[0]+dw}, s{sSLO}")
            g(f"  v_perm_b32 v{vB+4*dw+1}, v{R[3]+dw}, v{R[2]+dw}, s{sSLO}")
            g(f"  v_perm_b32 v{vB+4*dw+2}, v{R[1]+dw}, v{R[0]+dw}, s{sSHI}")
            g(f"  v_perm_b32 v{vB+4*dw+3}, v{R[3]+dw}, v{R[2]+dw}, s{sSHI}")
        for jj in range(8):
            a=vACC+4*jj
            g(f"  v_mfma_f32_4x4x4_16b_bf16 v[{a}:{a+3}], v[{vP+2*t2}:{vP+2*t2+1}], v[{vB+2*jj}:{vB+2*jj+1}], v[{a}:{a+3}]")
    if load is not None and not vearly: emit_v_loads(g,load,pol)

def rare(g,u):
    t=vT
    g(f"""
L_rare_{u}:
  v_max_f32 v{t+1}, v{t}, v{vM}
  v_sub_f32 v{t+2}, v{vM}, v{t+1}
  v_mul_f32 v{t+2}, s{sC}, v{t+2}
  v_exp_f32 v{t+2}, v{t+2}
  v_mov_b32 v{vM}, v{t+1}
  v_mul_f32 v{vMC}, s{sC}, v{t+1}
  v_mul_f32 v{vL}, v{vL}, v{t+2}
  s_nop 0
  v_mov_b32_dpp v{t+3}, v{t+2} quad_perm:[0,0,2,2] row_mask:0xf bank_mask:0xf
  v_mov_b32_dpp v{t+4}, v{t+2} quad_perm:[1,1,3,3] row_mask:0xf bank_mask:0xf
""")
    for jj in range(8):
        g(f"  v_mul_f32 v{vACC+4*jj}, v{vACC+4*jj}, v{t+3}")
        g(f"  v_mul_f32 v{vACC+4*jj+1}, v{vACC+4*jj+1}, v{t+4}")
    g(f"  s_branch L_back_{u}")

def phase_check(g,ret):
    g(f"""
  s_cmp_eq_u32 s{sPH}, s{sCPH}
  s_mov_b32 s{sRET}, {ret}
  s_cbranch_scc0 L_flush""")

def reset_state(g):
    g(f"""
  v_mov_b32 v{vM}, 0xff800000
  v_mov_b32 v{vMC}, 0xff800000
  v_mov_b32 v{vL}, 0""")
    for r in range(32): g(f"  v_mov_b32 v{vACC+r}, 0")

def read_q(g):
    t=vT
    g(f"""
  v_and_b32 v{t}, 1, v{vLANE}
  s_cmp_eq_u32 s{sCPH}, 2
  s_cselect_b32 s{sTMP}, 512, 0
  v_mul_u32_u24 v{t}, s{sTMP}, v{t}
  s_lshl_b32 s{sTMP}, s{sCPH}, 9
  s_add_u32 s{sTMP}, s{sTMP}, {L_QC}
  v_add_u32 v{t}, s{sTMP}, v{t}
  v_lshrrev_b32 v{t+1}, 4, v{vLANE}
  v_lshl_add_u32 v{t}, v{t+1}, 4, v{t}
""")
    for j in range(8):
        g(f"  ds_read_b128 a[{aQ+4*j}:{aQ+4*j+3}], v{t} offset:{j*64}")
    g("  s_waitcnt lgkmcnt(0)")

def flush(g,o):
    h=G(); G1.emit_flush(h,o,0)
    txt=h.text()
    txt=txt[:txt.index("L_nomerge_b0:")].replace("L_flush_b0","L_flush").replace("L_nomerge_b0","L_nomerge").replace("L_merge_b0","L_merge")
    g(txt)
    g(f"""
L_nomerge:
  s_add_u32 s{sCPH}, s{sCPH}, 1""")
    reset_state(g)
    g(f"""
  s_cmp_lt_u32 s{sCPH}, s{sPH}
  s_cbranch_scc1 L_flush
  s_cmp_eq_u32 s{sPH}, 3
  s_cbranch_scc1 L_tail""")
    read_q(g)
    g(f"""
  s_cmp_eq_u32 s{sRET}, 0
  s_cbranch_scc1 L_body_b0
  s_branch L_body_b1""")

def k_main2(o):
    g=G(); name=KN+'_kernel'
    pol=o.get('pol','nt'); pace=opt(o,'pace',32); extra=opt(o,'extra',True); vearly=opt(o,'vearly',False)
    g("  s_cmp_ge_u32 s2, 256\n  s_cbranch_scc1 L_exit")
    emit_qproj_ptrs(g)
    load_ptrs(g)
    G1.stamp_init(g); stamp(g,0)
    g(f"""
  s_cmp_eq_u32 s{sW}, 4
  s_cbranch_scc1 L_aux
  v_and_b32 v{vOK}, 15, v{vLANE}
  v_lshlrev_b32 v{vOK}, 9, v{vOK}
  v_lshrrev_b32 v{vT}, 4, v{vLANE}
  v_lshl_add_u32 v{vOK}, v{vT}, 4, v{vOK}        ; (l&15)*512 + (l>>4)*16
  v_lshrrev_b32 v{vT}, 5, v{vLANE}
  v_lshlrev_b32 v{vT}, 12, v{vT}
  v_and_b32 v{vOV}, 31, v{vLANE}
  v_lshl_add_u32 v{vOV}, v{vOV}, 4, v{vT}        ; (l>>5)*4096 + (l&31)*16
  s_lshl_b32 s{sTMP+2}, s{sG}, 1
""")
    set_srd_head(g,sKB,sVB,sTMP+2)
    g(f"""
  s_lshl_b32 s{sJOFF}, s{sJ}, 20
  s_lshl_b32 s{sTMP}, s{sW}, 13
  s_add_u32 s{sOFF}, s{sJOFF}, s{sTMP}          ; tile w
  s_lshl_b32 s{sX2}, s{sW}, 14
  s_add_u32 s{sX2}, s{sX2}, {L_X2}
  s_barrier
""")
    def pw(n):
        if pace<n: g(f"  s_waitcnt vmcnt({pace})")
    emit_k_loads(g,0,pol); pw(8); emit_v_loads(g,0,pol)
    g(f"  s_add_u32 s{sOFF}, s{sOFF}, 32768")
    pw(16); emit_k_loads(g,1,pol); pw(24); emit_v_loads(g,1,pol)
    if extra:
        g(f"  s_add_u32 s{sOFF}, s{sOFF}, 32768")
        pw(32)
        for j in range(8):
            g(f"  s_add_u32 m0, s{sX2}, {j*1024-j*64}\n  s_nop 0\n  buffer_load_dwordx4 v{vOK}, s[{sK}:{sK+3}], s{sOFF} offen offset:{j*64} {pol} lds")
        pw(40)
        for r in range(8):
            g(f"  s_add_u32 m0, s{sX2}, {8192+r*1024-r*512}\n  s_nop 0\n  buffer_load_dwordx4 v{vOV}, s[{sV}:{sV+3}], s{sOFF} offen offset:{r*512} {pol} lds")
    g(f"""
  s_mov_b32 s{sPH}, 0
  s_mov_b32 s{sCPH}, 0
  s_mov_b32 s{sC}, {f2h(SCALE)}
  s_mov_b32 s{sSLO}, 0x05040100
  s_mov_b32 s{sSHI}, 0x07060302
""")
    load_tags(g,sWS,sT,sTB,sTMP)
    reset_state(g)
    stamp(g,1)
    g("  s_barrier")
    read_q(g)
    stamp(g,2)
    if extra:
        body(g,o,0,'s0',40,40,0)
        body(g,o,1,'s1',40,32,None)
        body(g,o,1,'s2',16,None,None,src='lds')
        phase_check(g,0)
        g("  s_branch L_body_b0")
    else:
        body(g,o,0,'s0',24,24,0)
        body(g,o,1,'s1',24,16,None)
        phase_check(g,0)
        g("  s_branch L_body_b0")
    body(g,o,0,'b0',8,16 if vearly else 8,1,vearly=vearly); phase_check(g,1)
    body(g,o,1,'b1',8,16 if vearly else 8,0,vearly=vearly); phase_check(g,0)
    g("  s_branch L_body_b0")
    us=['s0','s1']+(['s2'] if extra else [])+['b0','b1']
    for u in us: rare(g,u)
    for u in ['s0','b0','b1']: newph(g,u)
    flush(g,o)
    g("L_tail:")
    stamp(g,6)
    g("  s_waitcnt vmcnt(0)")
    emit_role(g,o,1,'B'); stamp(g,7); emit_role(g,o,0,'A'); stamp(g,8); emit_final(g,o,'f',True)
    g("  s_waitcnt vmcnt(0)")
    g("  s_branch L_done")
    g(f"""
L_aux:
  v_mov_b32 v0, v{vLANE}
  s_setprio 3""")
    emit_qproj_issue(g)
    b0=opt(o,'b0wait',63)
    if b0<63: g(f"  s_waitcnt vmcnt({b0})")
    g("  s_barrier")
    stamp(g,8)
    load_tags(g,sWS,sT,sTB,sTMP)
    g(f"""
  v_lshlrev_b32 v76, 2, v0
  v_mov_b32 v77, 0
  v_add_u32 v78, {L_CNT}, v76
  s_mov_b64 exec, 0xffff
  ds_write_b32 v78, v77
  s_mov_b64 exec, -1
  s_waitcnt lgkmcnt(0)
  v_mov_b32 v77, {12 if extra else 8}
  v_mov_b32 v78, {CTR}
  ds_write_b32 v78, v77
""")
    stamp(g,1)
    emit_qproj_compute(g,'fq',sWS,sT)
    stamp(g,2)
    emit_qgather(g,'m',sWS,sT,sG,"L_fail_aux")
    stamp(g,3)
    g("  s_waitcnt lgkmcnt(0)\n  s_barrier")
    emit_wo_stage(g,'m')
    g(f"""
  s_waitcnt vmcnt(0) lgkmcnt(0)
  s_branch L_done
L_fail_aux:
  v_mov_b32 v24, 0xdeae
  v_mov_b32 v25, 12
  s_mov_b64 exec, 1
  global_store_dword v25, v24, s[{sDBG}:{sDBG+1}]
  s_mov_b64 exec, -1
""")
    fail_and_done(g,name,True)
    lds = L_X2+65536 if extra else LDS_SIZE
    return khead(name)+uniq(g.text(),'_m'), kd(name,NARCH,NACC), name, lds

def build2(o):
    G1.STAMPS=opt(o,'stamps',False); G1.WQPOL=o.get('wqpol','nt'); G1.WQTEST=0
    k=k_main2(o)
    src=HEADER+f"; @launch grid=(256,1,1) block=(320,1,1) lds={k[3]}"+'\n.amdgcn_target "amdgcn-amd-amdhsa--gfx950"\n.text\n'
    src+=k[0]+'.section .rodata,"a"\n'+k[1]
    if opt(o,'meta',False):
        src+=".amdgpu_metadata\n---\namdhsa.version: [1, 2]\namdhsa.kernels:\n"
        src+=f"  - .name: {k[2]}\n    .symbol: {k[2]}.kd\n    .kernarg_segment_size: 104\n    .kernarg_segment_align: 8\n    .group_segment_fixed_size: 0\n    .private_segment_fixed_size: 0\n    .wavefront_size: 64\n    .sgpr_count: 96\n    .vgpr_count: 256\n    .max_flat_workgroup_size: 320\n    .args:\n      - {{.name: kernargs, .size: 104, .offset: 0, .value_kind: by_value}}\n"
        src+="...\n.end_amdgpu_metadata\n"
    return src
if __name__=='__main__':
    out=sys.argv[1]; o=dict(a.split('=',1) for a in sys.argv[2:])
    open(out,'w').write(build2(o))
```

```python
import sys
import gen as G1
from gen import *

L_X2=0xE200
sJOFF=31; sRET=33; sX2=34
sPHB=[35,36]; sTGT=41
CTR=L_CNT+16

def stamp(g,i): G1.stamp(g,i)

def claim(g):
    g(f"""
  v_mov_b32 v13, {CTR}
  v_mov_b32 v14, 1
  s_mov_b64 exec, 1
  ds_add_rtn_u32 v12, v13, v14
  s_mov_b64 exec, -1""")

ROT=0; sROT=42
MAP=0
def tile_off(g,si,so):
    if MAP==7:
        if ROT: g(f"  s_add_u32 s{si}, s{si}, s{sROT}\n  s_and_b32 s{si}, s{si}, 127")
        g(f"  s_lshl_b32 s{si}, s{si}, 13\n  s_add_u32 s{so}, s{si}, s{sJOFF}")
    else:
        g(f"""  s_lshr_b32 s{sTMP+1}, s{si}, {MAP}
  s_lshl_b32 s{sTMP+1}, s{sTMP+1}, {16+MAP}
  s_and_b32 s{si}, s{si}, {(1<<MAP)-1}
  s_lshl_b32 s{si}, s{si}, 13
  s_add_u32 s{so}, s{si}, s{sTMP+1}
  s_add_u32 s{so}, s{so}, s{sJOFF}""")

DYN_S=128; DYN_LC=2; DYN_LOOK=6
def decode(g,u):
    dyn = DYN_S<128
    g(f"""
  s_waitcnt lgkmcnt(0)
  v_readfirstlane_b32 s{sTMP}, v12
  s_nop 0
  s_lshr_b32 s{sTMP+1}, s{sTMP}, 7""")
    if dyn: g(f"  s_min_u32 s{sTMP+1}, s{sTMP+1}, 2")
    g(f"""
  s_cmp_eq_u32 s{sTMP+1}, s{sPH}
  s_cbranch_scc0 L_newph_{u}
L_phok_{u}:""")
    if dyn:
        g(f"""
  s_cmp_ge_u32 s{sTMP}, {256+DYN_S}
  s_cbranch_scc1 L_dyn_{u}""")
    g(f"  s_and_b32 s{sTMP}, s{sTMP}, 127")
    tile_off(g,sTMP,sOFF)
    if dyn: g(f"L_dyn_done_{u}:")

def dynpath(g,u):
    if DYN_S>=128: return
    g(f"""
L_dyn_{u}:
  s_sub_u32 s{sTMP}, s{sTMP}, {256+DYN_S}
  s_lshr_b32 s{sTMP+1}, s{sTMP}, {DYN_LC}          ; chunk k
  s_and_b32 s{sTMP}, s{sTMP}, {(1<<DYN_LC)-1}
  s_lshl_b32 s{sTMP+1}, s{sTMP+1}, 2
  s_add_u32 s{sTMP+1}, s{sTMP+1}, {L_QUEUE}
  v_mov_b32 v13, s{sTMP+1}
  s_mov_b32 s{sTMP+2}, 0
L_dyn_poll_{u}:
  ds_read_b32 v12, v13
  s_waitcnt lgkmcnt(0)
  v_readfirstlane_b32 s{sTMP+1}, v12
  s_nop 0
  s_cmp_eq_u32 s{sTMP+1}, -1
  s_cbranch_scc0 L_dyn_got_{u}
""")
    spin_guard(g,sTMP+2,"L_fail")
    if G1.STAMPS: g(f"  s_add_u32 s{G1.sST+11}, s{G1.sST+11}, 1")
    g(f"""
  s_branch L_dyn_poll_{u}
L_dyn_got_{u}:
  s_cmp_eq_u32 s{sTMP+1}, -2
  s_cbranch_scc1 L_dyn_end_{u}
  s_add_u32 s{sTMP}, s{sTMP}, s{sTMP+1}
  s_lshl_b32 s{sOFF}, s{sTMP}, 13
  s_branch L_dyn_done_{u}
L_dyn_end_{u}:
  s_mov_b32 s{sPH}, 3
  s_mov_b32 s{sK+2}, 0
  s_mov_b32 s{sV+2}, 0
  s_mov_b32 s{sOFF}, 0
  s_branch L_dyn_done_{u}""")

def newph(g,u):
    g(f"""
L_newph_{u}:
  s_mov_b32 s{sPH}, s{sTMP+1}
  s_cmp_eq_u32 s{sPH}, 1
  s_cbranch_scc0 L_np2_{u}
  s_lshl_b32 s{sTMP+2}, s{sG}, 1
  s_add_u32 s{sTMP+2}, s{sTMP+2}, 1
  s_mov_b32 s{sTMP+3}, s{sTMP}""")
    set_srd_head(g,sKB,sVB,sTMP+2)
    g(f"""
  s_mov_b32 s{sTMP}, s{sTMP+3}
  s_branch L_phok_{u}
L_np2_{u}:
  s_cmp_eq_u32 s{sPH}, 2
  s_cbranch_scc0 L_np3_{u}
  s_mov_b32 s{sTMP+3}, s{sTMP}""")
    set_srd_head(g,sKA,sVA,sG)
    g(f"""
  s_mov_b32 s{sTMP}, s{sTMP+3}
  s_branch L_phok_{u}
L_np3_{u}:
  s_mov_b32 s{sPH}, 3
  s_mov_b32 s{sK+2}, 0
  s_mov_b32 s{sV+2}, 0
  s_branch L_phok_{u}""")

def body(g,o,b,u,kwait,vwait,load,src='reg',vearly=False):
    pol=o.get('pol','nt'); t=vT
    g(f"L_body_{u}:")
    if src=='lds':
        g(f"""
  s_waitcnt vmcnt({kwait})
  v_lshlrev_b32 v13, 4, v{vLANE}
  v_add_u32 v13, s{sX2}, v13""")
        for j in range(8): g(f"  ds_read_b128 a[{aK[b]+4*j}:{aK[b]+4*j+3}], v13 offset:{j*1024}")
        for r in range(8): g(f"  ds_read_b128 v[{vV[b]+4*r}:{vV[b]+4*r+3}], v13 offset:{8192+r*1024}")
        g("  s_waitcnt lgkmcnt(0)")
    else:
        g(f"  s_waitcnt vmcnt({kwait})")
    if load is not None: claim(g)
    for j in range(8):
        c="0" if j==0 else f"v[{vS}:{vS+3}]"
        g(f"  v_mfma_f32_16x16x32_bf16 v[{vS}:{vS+3}], a[{aK[b]+4*j}:{aK[b]+4*j+3}], a[{aQ+4*j}:{aQ+4*j+3}], {c}")
    if load is not None:
        decode(g,u)
        g(f"  s_mov_b32 s{sPHB[load]}, s{sPH}")
        emit_k_loads(g,load,pol)
        if vearly: emit_v_loads(g,load,pol)
    else:
        g("  s_nop 7")
    g(f"""
  v_max3_f32 v{t}, v{vS}, v{vS+1}, v{vS+2}
  v_max_f32 v{t}, v{t}, v{vS+3}
  v_mov_b32 v{t+1}, v{t}
  s_nop 1
  v_permlane16_swap_b32 v{t}, v{t+1}
  v_max_f32 v{t}, v{t}, v{t+1}
  v_mov_b32 v{t+1}, v{t}
  s_nop 1
  v_permlane32_swap_b32 v{t}, v{t+1}
  v_max_f32 v{t}, v{t}, v{t+1}
  v_cmp_gt_f32 vcc, v{t}, v{vM}
  s_cbranch_vccnz L_rare_{u}
L_back_{u}:
  v_fma_f32 v{t+2}, v{vS}, s{sC}, -v{vMC}
  v_fma_f32 v{t+3}, v{vS+1}, s{sC}, -v{vMC}
  v_fma_f32 v{t+4}, v{vS+2}, s{sC}, -v{vMC}
  v_fma_f32 v{t+5}, v{vS+3}, s{sC}, -v{vMC}
  v_exp_f32 v{t+2}, v{t+2}
  v_exp_f32 v{t+3}, v{t+3}
  v_exp_f32 v{t+4}, v{t+4}
  v_exp_f32 v{t+5}, v{t+5}
  v_add_f32 v{t+6}, v{t+2}, v{t+3}
  v_cvt_pk_bf16_f32 v{vP}, v{t+2}, v{t+3}
  v_add_f32 v{t+7}, v{t+4}, v{t+5}
  v_cvt_pk_bf16_f32 v{vP+1}, v{t+4}, v{t+5}
  v_add_f32 v{t+6}, v{t+6}, v{t+7}
  v_mov_b32 v{vP+2}, v{vP}
  v_mov_b32 v{vP+3}, v{vP+1}
  v_add_f32 v{vL}, v{vL}, v{t+6}
  s_nop 0
  v_permlane16_swap_b32 v{vP}, v{vP+2}
  v_permlane16_swap_b32 v{vP+1}, v{vP+3}""")
    if vwait is not None: g(f"  s_waitcnt vmcnt({vwait})")
    for t2 in range(2):
        R=[vV[b]+4*(4*t2+rr) for rr in range(4)]
        for dw in range(4):
            g(f"  v_perm_b32 v{vB+4*dw}, v{R[1]+dw}, v{R[0]+dw}, s{sSLO}")
            g(f"  v_perm_b32 v{vB+4*dw+1}, v{R[3]+dw}, v{R[2]+dw}, s{sSLO}")
            g(f"  v_perm_b32 v{vB+4*dw+2}, v{R[1]+dw}, v{R[0]+dw}, s{sSHI}")
            g(f"  v_perm_b32 v{vB+4*dw+3}, v{R[3]+dw}, v{R[2]+dw}, s{sSHI}")
        for jj in range(8):
            a=vACC+4*jj
            g(f"  v_mfma_f32_4x4x4_16b_bf16 v[{a}:{a+3}], v[{vP+2*t2}:{vP+2*t2+1}], v[{vB+2*jj}:{vB+2*jj+1}], v[{a}:{a+3}]")
    if load is not None and not vearly: emit_v_loads(g,load,pol)

def rare(g,u):
    t=vT
    g(f"""
L_rare_{u}:
  v_max_f32 v{t+1}, v{t}, v{vM}
  v_sub_f32 v{t+2}, v{vM}, v{t+1}
  v_mul_f32 v{t+2}, s{sC}, v{t+2}
  v_exp_f32 v{t+2}, v{t+2}
  v_mov_b32 v{vM}, v{t+1}
  v_mul_f32 v{vMC}, s{sC}, v{t+1}
  v_mul_f32 v{vL}, v{vL}, v{t+2}
  s_nop 0
  v_mov_b32_dpp v{t+3}, v{t+2} quad_perm:[0,0,2,2] row_mask:0xf bank_mask:0xf
  v_mov_b32_dpp v{t+4}, v{t+2} quad_perm:[1,1,3,3] row_mask:0xf bank_mask:0xf
""")
    for jj in range(8):
        g(f"  v_mul_f32 v{vACC+4*jj}, v{vACC+4*jj}, v{t+3}")
        g(f"  v_mul_f32 v{vACC+4*jj+1}, v{vACC+4*jj+1}, v{t+4}")
    g(f"  s_branch L_back_{u}")

def phase_check(g,ret,deep=False):
    src = sPHB[ret] if deep else sPH
    g(f"""
  s_mov_b32 s{sTGT}, s{src}
  s_cmp_eq_u32 s{sTGT}, s{sCPH}
  s_mov_b32 s{sRET}, {ret}
  s_cbranch_scc0 L_flush""")

def reset_state(g):
    g(f"""
  v_mov_b32 v{vM}, 0xff800000
  v_mov_b32 v{vMC}, 0xff800000
  v_mov_b32 v{vL}, 0""")
    for r in range(32): g(f"  v_mov_b32 v{vACC+r}, 0")

def read_q(g):
    t=vT
    g(f"""
  v_and_b32 v{t}, 1, v{vLANE}
  s_cmp_eq_u32 s{sCPH}, 2
  s_cselect_b32 s{sTMP}, 512, 0
  v_mul_u32_u24 v{t}, s{sTMP}, v{t}
  s_lshl_b32 s{sTMP}, s{sCPH}, 9
  s_add_u32 s{sTMP}, s{sTMP}, {L_QC}
  v_add_u32 v{t}, s{sTMP}, v{t}
  v_lshrrev_b32 v{t+1}, 4, v{vLANE}
  v_lshl_add_u32 v{t}, v{t+1}, 4, v{t}
""")
    for j in range(8):
        g(f"  ds_read_b128 a[{aQ+4*j}:{aQ+4*j+3}], v{t} offset:{j*64}")
    g("  s_waitcnt lgkmcnt(0)")

def flush(g,o):
    h=G(); G1.emit_flush(h,o,0)
    txt=h.text()
    txt=txt[:txt.index("L_nomerge_b0:")].replace("L_flush_b0","L_flush").replace("L_nomerge_b0","L_nomerge").replace("L_merge_b0","L_merge")
    g(txt)
    g(f"""
L_nomerge:
  s_add_u32 s{sCPH}, s{sCPH}, 1""")
    reset_state(g)
    g(f"""
  s_cmp_lt_u32 s{sCPH}, s{sTGT}
  s_cbranch_scc1 L_flush
  s_cmp_eq_u32 s{sTGT}, 3
  s_cbranch_scc1 L_tail""")
    read_q(g)
    g(f"""
  s_cmp_eq_u32 s{sRET}, 0
  s_cbranch_scc1 L_body_b0
  s_branch L_body_b1""")

def sched(g):
    C=1<<DYN_LC; cpj=(128-DYN_S)//C; assert cpj*C==128-DYN_S and cpj&(cpj-1)==0
    lcpj=cpj.bit_length()-1; nch=8*cpj
    assert nch+8+4 < 128
    sKQ=62
    g(f"""
  s_mul_i32 s{sTMP+8}, s{sG}, {CNT_STRIDE}
  s_add_u32 s{sTMP+8}, s{sTMP+8}, {WS_CNT}
  v_mov_b32 v8, s{sTMP+8}
  v_mov_b32 v9, 1
  v_mov_b32 v10, {CTR}
  s_mov_b32 s{sTMP+9}, 0
L_cinit:
  global_load_dwordx2 v[14:15], v8, s[{sWS}:{sWS+1}] sc1
  s_waitcnt vmcnt(0)
  v_readfirstlane_b32 s{sTMP}, v15
  s_nop 0
  s_cmp_eq_u32 s{sTMP}, s{sT}
  s_cbranch_scc1 L_cinit_ok""")
    spin_guard(g,sTMP+9,"L_fail_aux")
    g(f"""
  s_sleep 8
  s_branch L_cinit
L_cinit_ok:
  s_mov_b32 s{sKQ}, 0
  s_mov_b32 s{sKQ+1}, {256+DYN_S-DYN_LOOK}
L_sched:
  s_mov_b32 s{sTMP+9}, 0
L_sched_poll:
  ds_read_b32 v11, v10
  s_waitcnt lgkmcnt(0)
  v_readfirstlane_b32 s{sTMP}, v11
  s_nop 0
  s_cmp_ge_u32 s{sTMP}, s{sKQ+1}
  s_cbranch_scc1 L_sched_go""")
    spin_guard(g,sTMP+9,"L_fail_aux",limit=1000000)
    g(f"""
  s_sleep 2
  s_branch L_sched_poll
L_sched_go:
  s_mov_b64 exec, 1
  global_atomic_add v11, v8, v9, s[{sWS}:{sWS+1}] sc0 sc1
  s_mov_b64 exec, -1
  s_waitcnt vmcnt(0)
  v_readfirstlane_b32 s{sTMP}, v11
  s_lshl_b32 s{sTMP+3}, s{sKQ}, 2
  s_add_u32 s{sTMP+3}, s{sTMP+3}, {L_QUEUE}
  v_mov_b32 v12, s{sTMP+3}
  s_cmp_lt_u32 s{sTMP}, {nch}
  s_cbranch_scc0 L_sched_end
  s_lshr_b32 s{sTMP+1}, s{sTMP}, {lcpj}        ; j'
  s_lshl_b32 s{sTMP+1}, s{sTMP+1}, 7
  s_and_b32 s{sTMP+2}, s{sTMP}, {cpj-1}
  s_lshl_b32 s{sTMP+2}, s{sTMP+2}, {DYN_LC}
  s_add_u32 s{sTMP+1}, s{sTMP+1}, s{sTMP+2}
  s_add_u32 s{sTMP+1}, s{sTMP+1}, {DYN_S}
  v_mov_b32 v13, s{sTMP+1}
  ds_write_b32 v12, v13
  s_add_u32 s{sKQ}, s{sKQ}, 1
  s_add_u32 s{sKQ+1}, s{sKQ+1}, {C}
  s_branch L_sched
L_sched_end:
  v_mov_b32 v13, -2
  ds_write_b32 v12, v13
  ds_write_b32 v12, v13 offset:4
  ds_write_b32 v12, v13 offset:8
  ds_write_b32 v12, v13 offset:12
  ds_write_b32 v12, v13 offset:16
  s_mov_b32 s34, s{sKQ}""")

def k_main2(o):
    g=G(); name=KN+'_kernel'
    pol=o.get('pol','nt'); pace=opt(o,'pace',32); extra=opt(o,'extra',False); vearly=opt(o,'vearly',o.get('sched','s2')=='s2')
    g("  s_cmp_ge_u32 s2, 256\n  s_cbranch_scc1 L_exit")
    emit_qproj_ptrs(g)
    load_ptrs(g)
    G1.stamp_init(g); stamp(g,0)
    g(f"""
  s_cmp_eq_u32 s{sW}, 4
  s_cbranch_scc1 L_aux
  v_and_b32 v{vOK}, 15, v{vLANE}
  v_lshlrev_b32 v{vOK}, 9, v{vOK}
  v_lshrrev_b32 v{vT}, 4, v{vLANE}
  v_lshl_add_u32 v{vOK}, v{vT}, 4, v{vOK}        ; (l&15)*512 + (l>>4)*16
  v_lshrrev_b32 v{vT}, 5, v{vLANE}
  v_lshlrev_b32 v{vT}, 12, v{vT}
  v_and_b32 v{vOV}, 31, v{vLANE}
  v_lshl_add_u32 v{vOV}, v{vOV}, 4, v{vT}        ; (l>>5)*4096 + (l&31)*16
  s_lshl_b32 s{sTMP+2}, s{sG}, 1
""")
    set_srd_head(g,sKB,sVB,sTMP+2)
    g(f"""
  s_lshl_b32 s{sJOFF}, s{sJ}, {13+MAP}
  s_mul_i32 s{sROT}, s2, {ROT}
  s_mov_b32 s{sTMP}, s{sW}""")
    tile_off(g,sTMP,sOFF)
    g(f"""
  s_lshl_b32 s{sX2}, s{sW}, 14
  s_add_u32 s{sX2}, s{sX2}, {L_X2}
  s_barrier
""")
    def pw(n):
        if pace<n: g(f"  s_waitcnt vmcnt({pace})")
    emit_k_loads(g,0,pol); pw(8); emit_v_loads(g,0,pol)
    g(f"  s_add_u32 s{sTMP}, s{sW}, 4"); tile_off(g,sTMP,sOFF)
    pw(16); emit_k_loads(g,1,pol); pw(24); emit_v_loads(g,1,pol)
    if extra:
        g(f"  s_add_u32 s{sTMP}, s{sW}, 8"); tile_off(g,sTMP,sOFF)
        pw(32)
        for j in range(8):
            g(f"  s_add_u32 m0, s{sX2}, {j*1024-j*64}\n  s_nop 0\n  buffer_load_dwordx4 v{vOK}, s[{sK}:{sK+3}], s{sOFF} offen offset:{j*64} {pol} lds")
        pw(40)
        for r in range(8):
            g(f"  s_add_u32 m0, s{sX2}, {8192+r*1024-r*512}\n  s_nop 0\n  buffer_load_dwordx4 v{vOV}, s[{sV}:{sV+3}], s{sOFF} offen offset:{r*512} {pol} lds")
    g(f"""
  s_mov_b32 s{sPH}, 0
  s_mov_b32 s{sCPH}, 0
  s_mov_b32 s{sC}, {f2h(SCALE)}
  s_mov_b32 s{sSLO}, 0x05040100
  s_mov_b32 s{sSHI}, 0x07060302
""")
    load_tags(g,sWS,sT,sTB,sTMP)
    reset_state(g)
    stamp(g,1)
    g("  s_barrier")
    read_q(g)
    stamp(g,2)
    deep=o.get('sched','s2')=='s3'
    if deep:
        g(f"  s_mov_b32 s{sPHB[0]}, 0\n  s_mov_b32 s{sPHB[1]}, 0")
        body(g,o,0,'b0',24,24,0); phase_check(g,1,True)
        body(g,o,1,'b1',24,24,1); phase_check(g,0,True)
        g("  s_branch L_body_b0")
    else:
        if extra:
            body(g,o,0,'s0',40,40,0)
            body(g,o,1,'s1',40,32,None)
            body(g,o,1,'s2',16,None,None,src='lds')
            phase_check(g,0)
            g("  s_branch L_body_b0")
        else:
            body(g,o,0,'s0',24,24,0)
            body(g,o,1,'s1',24,16,None)
            phase_check(g,0)
            g("  s_branch L_body_b0")
        body(g,o,0,'b0',8,16 if vearly else 8,1,vearly=vearly); phase_check(g,1)
        body(g,o,1,'b1',8,16 if vearly else 8,0,vearly=vearly); phase_check(g,0)
        g("  s_branch L_body_b0")
    us=([] if deep else ['s0','s1']+(['s2'] if extra else []))+['b0','b1']
    for u in us: rare(g,u)
    for u in ([] if deep else ['s0'])+['b0','b1']: newph(g,u); dynpath(g,u)
    flush(g,o)
    g("L_tail:")
    stamp(g,6)
    g("  s_waitcnt vmcnt(0)")
    emit_role(g,o,1,'B'); stamp(g,7); emit_role(g,o,0,'A'); stamp(g,8); emit_final(g,o,'f',True)
    g("  s_waitcnt vmcnt(0)")
    g("  s_branch L_done")
    g(f"""
L_aux:
  v_mov_b32 v0, v{vLANE}
  s_setprio 3""")
    emit_qproj_issue(g)
    b0=opt(o,'b0wait',63)
    if b0<63: g(f"  s_waitcnt vmcnt({b0})")
    g("  s_barrier")
    stamp(g,8)
    load_tags(g,sWS,sT,sTB,sTMP)
    if DYN_S<128:
        g(f"""
  v_lshlrev_b32 v76, 2, v0
  v_mov_b32 v77, -1
  v_add_u32 v78, {L_QUEUE}, v76
  ds_write_b32 v78, v77
  ds_write_b32 v78, v77 offset:256""")
    g(f"""
  v_lshlrev_b32 v76, 2, v0
  v_mov_b32 v77, 0
  v_add_u32 v78, {L_CNT}, v76
  s_mov_b64 exec, 0xffff
  ds_write_b32 v78, v77
  s_mov_b64 exec, -1
  s_waitcnt lgkmcnt(0)
  v_mov_b32 v77, {12 if extra else 8}
  v_mov_b32 v78, {CTR}
  ds_write_b32 v78, v77
""")
    stamp(g,1)
    emit_qproj_compute(g,'fq',sWS,sT)
    stamp(g,2)
    emit_qgather(g,'m',sWS,sT,sG,"L_fail_aux")
    stamp(g,3)
    g("  s_waitcnt lgkmcnt(0)\n  s_barrier")
    if DYN_S<128:
        g(f"""
  s_cmp_eq_u32 s{sJ}, 0
  s_cbranch_scc0 L_noinit
  s_mul_i32 s{sTMP}, s{sG}, {CNT_STRIDE}
  s_add_u32 s{sTMP}, s{sTMP}, {WS_CNT}
  v_mov_b32 v72, s{sTMP}
  v_mov_b32 v74, 0
  v_mov_b32 v75, s{sT}
  s_mov_b64 exec, 1
  global_store_dwordx2 v72, v[74:75], s[{sWS}:{sWS+1}] sc1
  s_mov_b64 exec, -1
L_noinit:""")
    emit_wo_stage(g,'m')
    if DYN_S<128: sched(g)
    g(f"""
  s_waitcnt vmcnt(0) lgkmcnt(0)
  s_branch L_done
L_fail_aux:
  v_mov_b32 v24, 0xdeae
  v_mov_b32 v25, 12
  s_mov_b64 exec, 1
  global_store_dword v25, v24, s[{sDBG}:{sDBG+1}]
  s_mov_b64 exec, -1
""")
    fail_and_done(g,name,True)
    lds = L_X2+65536 if extra else LDS_SIZE
    return khead(name)+uniq(g.text(),'_m'), kd(name,NARCH,NACC), name, lds

def build2(o):
    global MAP, DYN_S, DYN_LC, DYN_LOOK
    DYN_S=opt(o,'dyns',128); DYN_LC=opt(o,'dynlc',2); DYN_LOOK=opt(o,'look',6)
    MAP=opt(o,'map',7)
    global ROT
    ROT=opt(o,'rot',0)
    G1.STAMPS=opt(o,'stamps',False); G1.WQPOL=o.get('wqpol','nt'); G1.WQTEST=0
    k=k_main2(o)
    src=HEADER+f"; @launch grid=(256,1,1) block=(320,1,1) lds={k[3]}"+'\n.amdgcn_target "amdgcn-amd-amdhsa--gfx950"\n.text\n'
    src+=k[0]+'.section .rodata,"a"\n'+k[1]
    if opt(o,'meta',False):
        src+=".amdgpu_metadata\n---\namdhsa.version: [1, 2]\namdhsa.kernels:\n"
        src+=f"  - .name: {k[2]}\n    .symbol: {k[2]}.kd\n    .kernarg_segment_size: 104\n    .kernarg_segment_align: 8\n    .group_segment_fixed_size: 0\n    .private_segment_fixed_size: 0\n    .wavefront_size: 64\n    .sgpr_count: 96\n    .vgpr_count: 256\n    .max_flat_workgroup_size: 320\n    .args:\n      - {{.name: kernargs, .size: 104, .offset: 0, .value_kind: by_value}}\n"
        src+="...\n.end_amdgpu_metadata\n"
    return src
if __name__=='__main__':
    out=sys.argv[1]; o=dict(a.split('=',1) for a in sys.argv[2:])
    open(out,'w').write(build2(o))
```

```python
import sys
import gen as G1
from gen import *

L_X2=0xE200
sJOFF=31; sRET=33; sX2=34
sPHB=[35,36]; sTGT=41
CTR=L_CNT+16

def stamp(g,i): G1.stamp(g,i)

def claim(g):
    g(f"""
  v_mov_b32 v13, {CTR}
  v_mov_b32 v14, 1
  s_mov_b64 exec, 1
  ds_add_rtn_u32 v12, v13, v14
  s_mov_b64 exec, -1""")

ROT=0; sROT=42
MAP=0
def tile_off(g,si,so):
    if MAP==7:
        if ROT: g(f"  s_add_u32 s{si}, s{si}, s{sROT}\n  s_and_b32 s{si}, s{si}, 127")
        g(f"  s_lshl_b32 s{si}, s{si}, 13\n  s_add_u32 s{so}, s{si}, s{sJOFF}")
    else:
        g(f"""  s_lshr_b32 s{sTMP+1}, s{si}, {MAP}
  s_lshl_b32 s{sTMP+1}, s{sTMP+1}, {16+MAP}
  s_and_b32 s{si}, s{si}, {(1<<MAP)-1}
  s_lshl_b32 s{si}, s{si}, 13
  s_add_u32 s{so}, s{si}, s{sTMP+1}
  s_add_u32 s{so}, s{so}, s{sJOFF}""")

DYN_S=128; DYN_LC=2; DYN_LOOK=6
def decode(g,u):
    dyn = DYN_S<128
    g(f"""
  s_waitcnt lgkmcnt(0)
  v_readfirstlane_b32 s{sTMP}, v12
  s_nop 0
  s_lshr_b32 s{sTMP+1}, s{sTMP}, 7""")
    if dyn: g(f"  s_min_u32 s{sTMP+1}, s{sTMP+1}, 2")
    g(f"""
  s_cmp_eq_u32 s{sTMP+1}, s{sPH}
  s_cbranch_scc0 L_newph_{u}
L_phok_{u}:""")
    if dyn:
        g(f"""
  s_cmp_ge_u32 s{sTMP}, {256+DYN_S}
  s_cbranch_scc1 L_dyn_{u}""")
    g(f"  s_and_b32 s{sTMP}, s{sTMP}, 127")
    tile_off(g,sTMP,sOFF)
    if dyn: g(f"L_dyn_done_{u}:")

def dynpath(g,u):
    if DYN_S>=128: return
    g(f"""
L_dyn_{u}:
  s_sub_u32 s{sTMP}, s{sTMP}, {256+DYN_S}
  s_lshr_b32 s{sTMP+1}, s{sTMP}, {DYN_LC}          ; chunk k
  s_and_b32 s{sTMP}, s{sTMP}, {(1<<DYN_LC)-1}
  s_lshl_b32 s{sTMP+1}, s{sTMP+1}, 2
  s_add_u32 s{sTMP+1}, s{sTMP+1}, {L_QUEUE}
  v_mov_b32 v13, s{sTMP+1}
  s_mov_b32 s{sTMP+2}, 0
L_dyn_poll_{u}:
  ds_read_b32 v12, v13
  s_waitcnt lgkmcnt(0)
  v_readfirstlane_b32 s{sTMP+1}, v12
  s_nop 0
  s_cmp_eq_u32 s{sTMP+1}, -1
  s_cbranch_scc0 L_dyn_got_{u}
""")
    spin_guard(g,sTMP+2,"L_fail")
    if G1.STAMPS: g(f"  s_add_u32 s{G1.sST+11}, s{G1.sST+11}, 1")
    g(f"""
  s_branch L_dyn_poll_{u}
L_dyn_got_{u}:
  s_cmp_eq_u32 s{sTMP+1}, -2
  s_cbranch_scc1 L_dyn_end_{u}
  s_add_u32 s{sTMP}, s{sTMP}, s{sTMP+1}
  s_lshl_b32 s{sOFF}, s{sTMP}, 13
  s_branch L_dyn_done_{u}
L_dyn_end_{u}:
  s_mov_b32 s{sPH}, 3
  s_mov_b32 s{sK+2}, 0
  s_mov_b32 s{sV+2}, 0
  s_mov_b32 s{sOFF}, 0
  s_branch L_dyn_done_{u}""")

def newph(g,u):
    g(f"""
L_newph_{u}:
  s_mov_b32 s{sPH}, s{sTMP+1}
  s_cmp_eq_u32 s{sPH}, 1
  s_cbranch_scc0 L_np2_{u}
  s_lshl_b32 s{sTMP+2}, s{sG}, 1
  s_add_u32 s{sTMP+2}, s{sTMP+2}, 1
  s_mov_b32 s{sTMP+3}, s{sTMP}""")
    set_srd_head(g,sKB,sVB,sTMP+2)
    g(f"""
  s_mov_b32 s{sTMP}, s{sTMP+3}
  s_branch L_phok_{u}
L_np2_{u}:
  s_cmp_eq_u32 s{sPH}, 2
  s_cbranch_scc0 L_np3_{u}
  s_mov_b32 s{sTMP+3}, s{sTMP}""")
    set_srd_head(g,sKA,sVA,sG)
    g(f"""
  s_mov_b32 s{sTMP}, s{sTMP+3}
  s_branch L_phok_{u}
L_np3_{u}:
  s_mov_b32 s{sPH}, 3
  s_mov_b32 s{sK+2}, 0
  s_mov_b32 s{sV+2}, 0
  s_branch L_phok_{u}""")

def body(g,o,b,u,kwait,vwait,load,src='reg',vearly=False):
    pol=o.get('pol','nt'); t=vT
    g(f"L_body_{u}:")
    if src=='lds':
        g(f"""
  s_waitcnt vmcnt({kwait})
  v_lshlrev_b32 v13, 4, v{vLANE}
  v_add_u32 v13, s{sX2}, v13""")
        for j in range(8): g(f"  ds_read_b128 a[{aK[b]+4*j}:{aK[b]+4*j+3}], v13 offset:{j*1024}")
        for r in range(8): g(f"  ds_read_b128 v[{vV[b]+4*r}:{vV[b]+4*r+3}], v13 offset:{8192+r*1024}")
        g("  s_waitcnt lgkmcnt(0)")
    else:
        g(f"  s_waitcnt vmcnt({kwait})")
    if load is not None: claim(g)
    for j in range(8):
        c="0" if j==0 else f"v[{vS}:{vS+3}]"
        g(f"  v_mfma_f32_16x16x32_bf16 v[{vS}:{vS+3}], a[{aK[b]+4*j}:{aK[b]+4*j+3}], a[{aQ+4*j}:{aQ+4*j+3}], {c}")
    if load is not None:
        decode(g,u)
        g(f"  s_mov_b32 s{sPHB[load]}, s{sPH}")
        emit_k_loads(g,load,pol)
        if vearly: emit_v_loads(g,load,pol)
    else:
        g("  s_nop 7")
    g(f"""
  v_max3_f32 v{t}, v{vS}, v{vS+1}, v{vS+2}
  v_max_f32 v{t}, v{t}, v{vS+3}
  v_mov_b32 v{t+1}, v{t}
  s_nop 1
  v_permlane16_swap_b32 v{t}, v{t+1}
  v_max_f32 v{t}, v{t}, v{t+1}
  v_mov_b32 v{t+1}, v{t}
  s_nop 1
  v_permlane32_swap_b32 v{t}, v{t+1}
  v_max_f32 v{t}, v{t}, v{t+1}
  v_cmp_gt_f32 vcc, v{t}, v{vM}
  s_cbranch_vccnz L_rare_{u}
L_back_{u}:
  v_fma_f32 v{t+2}, v{vS}, s{sC}, -v{vMC}
  v_fma_f32 v{t+3}, v{vS+1}, s{sC}, -v{vMC}
  v_fma_f32 v{t+4}, v{vS+2}, s{sC}, -v{vMC}
  v_fma_f32 v{t+5}, v{vS+3}, s{sC}, -v{vMC}
  v_exp_f32 v{t+2}, v{t+2}
  v_exp_f32 v{t+3}, v{t+3}
  v_exp_f32 v{t+4}, v{t+4}
  v_exp_f32 v{t+5}, v{t+5}
  v_add_f32 v{t+6}, v{t+2}, v{t+3}
  v_cvt_pk_bf16_f32 v{vP}, v{t+2}, v{t+3}
  v_add_f32 v{t+7}, v{t+4}, v{t+5}
  v_cvt_pk_bf16_f32 v{vP+1}, v{t+4}, v{t+5}
  v_add_f32 v{t+6}, v{t+6}, v{t+7}
  v_mov_b32 v{vP+2}, v{vP}
  v_mov_b32 v{vP+3}, v{vP+1}
  v_add_f32 v{vL}, v{vL}, v{t+6}
  s_nop 0
  v_permlane16_swap_b32 v{vP}, v{vP+2}
  v_permlane16_swap_b32 v{vP+1}, v{vP+3}""")
    if vwait is not None: g(f"  s_waitcnt vmcnt({vwait})")
    for t2 in range(2):
        R=[vV[b]+4*(4*t2+rr) for rr in range(4)]
        for dw in range(4):
            g(f"  v_perm_b32 v{vB+4*dw}, v{R[1]+dw}, v{R[0]+dw}, s{sSLO}")
            g(f"  v_perm_b32 v{vB+4*dw+1}, v{R[3]+dw}, v{R[2]+dw}, s{sSLO}")
            g(f"  v_perm_b32 v{vB+4*dw+2}, v{R[1]+dw}, v{R[0]+dw}, s{sSHI}")
            g(f"  v_perm_b32 v{vB+4*dw+3}, v{R[3]+dw}, v{R[2]+dw}, s{sSHI}")
        for jj in range(8):
            a=vACC+4*jj
            g(f"  v_mfma_f32_4x4x4_16b_bf16 v[{a}:{a+3}], v[{vP+2*t2}:{vP+2*t2+1}], v[{vB+2*jj}:{vB+2*jj+1}], v[{a}:{a+3}]")
    if load is not None and not vearly: emit_v_loads(g,load,pol)

def rare(g,u):
    t=vT
    g(f"""
L_rare_{u}:
  v_max_f32 v{t+1}, v{t}, v{vM}
  v_sub_f32 v{t+2}, v{vM}, v{t+1}
  v_mul_f32 v{t+2}, s{sC}, v{t+2}
  v_exp_f32 v{t+2}, v{t+2}
  v_mov_b32 v{vM}, v{t+1}
  v_mul_f32 v{vMC}, s{sC}, v{t+1}
  v_mul_f32 v{vL}, v{vL}, v{t+2}
  s_nop 0
  v_mov_b32_dpp v{t+3}, v{t+2} quad_perm:[0,0,2,2] row_mask:0xf bank_mask:0xf
  v_mov_b32_dpp v{t+4}, v{t+2} quad_perm:[1,1,3,3] row_mask:0xf bank_mask:0xf
""")
    for jj in range(8):
        g(f"  v_mul_f32 v{vACC+4*jj}, v{vACC+4*jj}, v{t+3}")
        g(f"  v_mul_f32 v{vACC+4*jj+1}, v{vACC+4*jj+1}, v{t+4}")
    g(f"  s_branch L_back_{u}")

def phase_check(g,ret,deep=False):
    src = sPHB[ret] if deep else sPH
    g(f"""
  s_mov_b32 s{sTGT}, s{src}
  s_cmp_eq_u32 s{sTGT}, s{sCPH}
  s_mov_b32 s{sRET}, {ret}
  s_cbranch_scc0 L_flush""")

def reset_state(g):
    g(f"""
  v_mov_b32 v{vM}, 0xff800000
  v_mov_b32 v{vMC}, 0xff800000
  v_mov_b32 v{vL}, 0""")
    for r in range(32): g(f"  v_mov_b32 v{vACC+r}, 0")

def read_q(g):
    t=vT
    g(f"""
  v_and_b32 v{t}, 1, v{vLANE}
  s_cmp_eq_u32 s{sCPH}, 2
  s_cselect_b32 s{sTMP}, 512, 0
  v_mul_u32_u24 v{t}, s{sTMP}, v{t}
  s_lshl_b32 s{sTMP}, s{sCPH}, 9
  s_add_u32 s{sTMP}, s{sTMP}, {L_QC}
  v_add_u32 v{t}, s{sTMP}, v{t}
  v_lshrrev_b32 v{t+1}, 4, v{vLANE}
  v_lshl_add_u32 v{t}, v{t+1}, 4, v{t}
""")
    for j in range(8):
        g(f"  ds_read_b128 a[{aQ+4*j}:{aQ+4*j+3}], v{t} offset:{j*64}")
    g("  s_waitcnt lgkmcnt(0)")

def flush(g,o):
    h=G(); G1.emit_flush(h,o,0)
    txt=h.text()
    txt=txt[:txt.index("L_nomerge_b0:")].replace("L_flush_b0","L_flush").replace("L_nomerge_b0","L_nomerge").replace("L_merge_b0","L_merge")
    g(txt)
    g(f"""
L_nomerge:
  s_add_u32 s{sCPH}, s{sCPH}, 1""")
    reset_state(g)
    g(f"""
  s_cmp_lt_u32 s{sCPH}, s{sTGT}
  s_cbranch_scc1 L_flush
  s_cmp_eq_u32 s{sTGT}, 3
  s_cbranch_scc1 L_tail""")
    read_q(g)
    g(f"""
  s_cmp_eq_u32 s{sRET}, 0
  s_cbranch_scc1 L_body_b0
  s_branch L_body_b1""")

def sched(g):
    C=1<<DYN_LC; cpj=(128-DYN_S)//C; assert cpj*C==128-DYN_S and cpj&(cpj-1)==0
    lcpj=cpj.bit_length()-1; nch=8*cpj
    assert nch+8+4 < 128
    sKQ=62
    g(f"""
  s_mul_i32 s{sTMP+8}, s{sG}, {CNT_STRIDE}
  s_add_u32 s{sTMP+8}, s{sTMP+8}, {WS_CNT}
  v_mov_b32 v8, s{sTMP+8}
  v_mov_b32 v9, 1
  v_mov_b32 v10, {CTR}
  s_mov_b32 s{sTMP+9}, 0
L_cinit:
  global_load_dwordx2 v[14:15], v8, s[{sWS}:{sWS+1}] sc1
  s_waitcnt vmcnt(0)
  v_readfirstlane_b32 s{sTMP}, v15
  s_nop 0
  s_cmp_eq_u32 s{sTMP}, s{sT}
  s_cbranch_scc1 L_cinit_ok""")
    spin_guard(g,sTMP+9,"L_fail_aux")
    g(f"""
  s_sleep 8
  s_branch L_cinit
L_cinit_ok:
  s_mov_b32 s{sKQ}, 0
  s_mov_b32 s{sKQ+1}, {256+DYN_S-DYN_LOOK}
L_sched:
  s_mov_b32 s{sTMP+9}, 0
L_sched_poll:
  ds_read_b32 v11, v10
  s_waitcnt lgkmcnt(0)
  v_readfirstlane_b32 s{sTMP}, v11
  s_nop 0
  s_cmp_ge_u32 s{sTMP}, s{sKQ+1}
  s_cbranch_scc1 L_sched_go""")
    spin_guard(g,sTMP+9,"L_fail_aux",limit=1000000)
    g(f"""
  s_sleep 2
  s_branch L_sched_poll
L_sched_go:
  s_mov_b64 exec, 1
  global_atomic_add v11, v8, v9, s[{sWS}:{sWS+1}] sc0 sc1
  s_mov_b64 exec, -1
  s_waitcnt vmcnt(0)
  v_readfirstlane_b32 s{sTMP}, v11
  s_lshl_b32 s{sTMP+3}, s{sKQ}, 2
  s_add_u32 s{sTMP+3}, s{sTMP+3}, {L_QUEUE}
  v_mov_b32 v12, s{sTMP+3}
  s_cmp_lt_u32 s{sTMP}, {nch}
  s_cbranch_scc0 L_sched_end
  s_lshr_b32 s{sTMP+1}, s{sTMP}, {lcpj}        ; j'
  s_lshl_b32 s{sTMP+1}, s{sTMP+1}, 7
  s_and_b32 s{sTMP+2}, s{sTMP}, {cpj-1}
  s_lshl_b32 s{sTMP+2}, s{sTMP+2}, {DYN_LC}
  s_add_u32 s{sTMP+1}, s{sTMP+1}, s{sTMP+2}
  s_add_u32 s{sTMP+1}, s{sTMP+1}, {DYN_S}
  v_mov_b32 v13, s{sTMP+1}
  ds_write_b32 v12, v13
  s_add_u32 s{sKQ}, s{sKQ}, 1
  s_add_u32 s{sKQ+1}, s{sKQ+1}, {C}
  s_branch L_sched
L_sched_end:
  v_mov_b32 v13, -2
  ds_write_b32 v12, v13
  ds_write_b32 v12, v13 offset:4
  ds_write_b32 v12, v13 offset:8
  ds_write_b32 v12, v13 offset:12
  ds_write_b32 v12, v13 offset:16
  s_mov_b32 s34, s{sKQ}""")

def k_main2(o):
    g=G(); name=KN+'_kernel'
    pol=o.get('pol','nt'); pace=opt(o,'pace',32); extra=opt(o,'extra',False); vearly=opt(o,'vearly',o.get('sched','s2')=='s2')
    g("  s_cmp_ge_u32 s2, 256\n  s_cbranch_scc1 L_exit")
    emit_qproj_ptrs(g)
    load_ptrs(g)
    G1.stamp_init(g); stamp(g,0)
    g(f"""
  s_cmp_eq_u32 s{sW}, 4
  s_cbranch_scc1 L_aux
  v_and_b32 v{vOK}, 15, v{vLANE}
  v_lshlrev_b32 v{vOK}, 9, v{vOK}
  v_lshrrev_b32 v{vT}, 4, v{vLANE}
  v_lshl_add_u32 v{vOK}, v{vT}, 4, v{vOK}        ; (l&15)*512 + (l>>4)*16
  v_lshrrev_b32 v{vT}, 5, v{vLANE}
  v_lshlrev_b32 v{vT}, 12, v{vT}
  v_and_b32 v{vOV}, 31, v{vLANE}
  v_lshl_add_u32 v{vOV}, v{vOV}, 4, v{vT}        ; (l>>5)*4096 + (l&31)*16
  s_lshl_b32 s{sTMP+2}, s{sG}, 1
""")
    set_srd_head(g,sKB,sVB,sTMP+2)
    g(f"""
  s_lshl_b32 s{sJOFF}, s{sJ}, {13+MAP}
  s_mul_i32 s{sROT}, s2, {ROT}
  s_mov_b32 s{sTMP}, s{sW}""")
    tile_off(g,sTMP,sOFF)
    g(f"""
  s_lshl_b32 s{sX2}, s{sW}, 14
  s_add_u32 s{sX2}, s{sX2}, {L_X2}
  s_barrier
""")
    def pw(n):
        if pace<n: g(f"  s_waitcnt vmcnt({pace})")
    emit_k_loads(g,0,pol); pw(8); emit_v_loads(g,0,pol)
    g(f"  s_add_u32 s{sTMP}, s{sW}, 4"); tile_off(g,sTMP,sOFF)
    pw(16); emit_k_loads(g,1,pol); pw(24); emit_v_loads(g,1,pol)
    if extra:
        g(f"  s_add_u32 s{sTMP}, s{sW}, 8"); tile_off(g,sTMP,sOFF)
        pw(32)
        for j in range(8):
            g(f"  s_add_u32 m0, s{sX2}, {j*1024-j*64}\n  s_nop 0\n  buffer_load_dwordx4 v{vOK}, s[{sK}:{sK+3}], s{sOFF} offen offset:{j*64} {pol} lds")
        pw(40)
        for r in range(8):
            g(f"  s_add_u32 m0, s{sX2}, {8192+r*1024-r*512}\n  s_nop 0\n  buffer_load_dwordx4 v{vOV}, s[{sV}:{sV+3}], s{sOFF} offen offset:{r*512} {pol} lds")
    g(f"""
  s_mov_b32 s{sPH}, 0
  s_mov_b32 s{sCPH}, 0
  s_mov_b32 s{sC}, {f2h(SCALE)}
  s_mov_b32 s{sSLO}, 0x05040100
  s_mov_b32 s{sSHI}, 0x07060302
""")
    load_tags(g,sWS,sT,sTB,sTMP)
    reset_state(g)
    stamp(g,1)
    g("  s_barrier")
    read_q(g)
    stamp(g,2)
    deep=o.get('sched','s2')=='s3'
    if deep:
        g(f"  s_mov_b32 s{sPHB[0]}, 0\n  s_mov_b32 s{sPHB[1]}, 0")
        body(g,o,0,'b0',24,24,0); phase_check(g,1,True)
        body(g,o,1,'b1',24,24,1); phase_check(g,0,True)
        g("  s_branch L_body_b0")
    else:
        if extra:
            body(g,o,0,'s0',40,40,0)
            body(g,o,1,'s1',40,32,None)
            body(g,o,1,'s2',16,None,None,src='lds')
            phase_check(g,0)
            g("  s_branch L_body_b0")
        else:
            body(g,o,0,'s0',24,24,0)
            body(g,o,1,'s1',24,16,None)
            phase_check(g,0)
            g("  s_branch L_body_b0")
        body(g,o,0,'b0',8,16 if vearly else 8,1,vearly=vearly); phase_check(g,1)
        body(g,o,1,'b1',8,16 if vearly else 8,0,vearly=vearly); phase_check(g,0)
        g("  s_branch L_body_b0")
    us=([] if deep else ['s0','s1']+(['s2'] if extra else []))+['b0','b1']
    for u in us: rare(g,u)
    for u in ([] if deep else ['s0'])+['b0','b1']: newph(g,u); dynpath(g,u)
    flush(g,o)
    g("L_tail:")
    stamp(g,6)
    g("  s_waitcnt vmcnt(0)")
    emit_role(g,o,1,'B'); stamp(g,7); emit_role(g,o,0,'A'); stamp(g,8); emit_final(g,o,'f',True)
    g("  s_waitcnt vmcnt(0)")
    g("  s_branch L_done")
    g(f"""
L_aux:
  v_mov_b32 v0, v{vLANE}
  s_setprio 3""")
    emit_qproj_issue(g)
    b0=opt(o,'b0wait',63)
    if b0<63: g(f"  s_waitcnt vmcnt({b0})")
    g("  s_barrier")
    stamp(g,8)
    load_tags(g,sWS,sT,sTB,sTMP)
    if DYN_S<128:
        g(f"""
  v_lshlrev_b32 v76, 2, v0
  v_mov_b32 v77, -1
  v_add_u32 v78, {L_QUEUE}, v76
  ds_write_b32 v78, v77
  ds_write_b32 v78, v77 offset:256""")
    g(f"""
  v_lshlrev_b32 v76, 2, v0
  v_mov_b32 v77, 0
  v_add_u32 v78, {L_CNT}, v76
  s_mov_b64 exec, 0xffff
  ds_write_b32 v78, v77
  s_mov_b64 exec, -1
  s_waitcnt lgkmcnt(0)
  v_mov_b32 v77, {12 if extra else 8}
  v_mov_b32 v78, {CTR}
  ds_write_b32 v78, v77
""")
    stamp(g,1)
    emit_qproj_compute(g,'fq',sWS,sT)
    stamp(g,2)
    emit_qgather(g,'m',sWS,sT,sG,"L_fail_aux")
    stamp(g,3)
    g("  s_waitcnt lgkmcnt(0)\n  s_barrier")
    if DYN_S<128:
        g(f"""
  s_cmp_eq_u32 s{sJ}, 0
  s_cbranch_scc0 L_noinit
  s_mul_i32 s{sTMP}, s{sG}, {CNT_STRIDE}
  s_add_u32 s{sTMP}, s{sTMP}, {WS_CNT}
  v_mov_b32 v72, s{sTMP}
  v_mov_b32 v74, 0
  v_mov_b32 v75, s{sT}
  s_mov_b64 exec, 1
  global_store_dwordx2 v72, v[74:75], s[{sWS}:{sWS+1}] sc1
  s_mov_b64 exec, -1
L_noinit:""")
    emit_wo_stage(g,'m')
    if DYN_S<128: sched(g)
    g(f"""
  s_waitcnt vmcnt(0) lgkmcnt(0)
  s_branch L_done
L_fail_aux:
  v_mov_b32 v24, 0xdeae
  v_mov_b32 v25, 12
  s_mov_b64 exec, 1
  global_store_dword v25, v24, s[{sDBG}:{sDBG+1}]
  s_mov_b64 exec, -1
""")
    if opt(o,'dbgst',False):
        h=G(); fail_and_done(h,name,False); t=h.text()
        extra_code=f"""L_done:
  s_memrealtime s[80:81]
  s_waitcnt lgkmcnt(0)
  s_mov_b32 s73, s80
  s_cmp_eq_u32 s{sW}, 0
  s_cbranch_scc0 L_exit
  s_not_b32 s80, s64
  v_mov_b32 v24, 0
  v_mov_b32 v25, s80
  s_mov_b64 exec, 1
  global_atomic_umax v24, v25, s[{sDBG}:{sDBG+1}] sc1
"""
        for k,slot in ((2,1),(3,2),(4,3),(5,4),(9,5)):
            extra_code+=f"  v_mov_b32 v25, s{64+k}\n  global_atomic_umax v24, v25, s[{sDBG}:{sDBG+1}] offset:{4*slot} sc1\n"
            extra_code+=f"  s_sub_u32 s80, s{64+k}, s64\n  v_mov_b32 v26, s80\n  global_atomic_add v24, v26, s[{sDBG}:{sDBG+1}] offset:{4*(slot+7)} sc1\n"
        extra_code+="  s_waitcnt vmcnt(0)\n  s_mov_b64 exec, -1\n"
        t=t.replace("L_done:\n",extra_code)
        g(t)
    else:
        fail_and_done(g,name,True)
    lds = L_X2+65536 if extra else LDS_SIZE
    return khead(name)+uniq(g.text(),'_m'), kd(name,NARCH,NACC), name, lds

def build2(o):
    global MAP, DYN_S, DYN_LC, DYN_LOOK
    DYN_S=opt(o,'dyns',128); DYN_LC=opt(o,'dynlc',2); DYN_LOOK=opt(o,'look',6)
    MAP=opt(o,'map',7)
    global ROT
    ROT=opt(o,'rot',0)
    G1.STAMPS=opt(o,'stamps',False); G1.WQPOL=o.get('wqpol','nt'); G1.WQTEST=0
    k=k_main2(o)
    src=HEADER+f"; @launch grid=(256,1,1) block=(320,1,1) lds={k[3]}"+'\n.amdgcn_target "amdgcn-amd-amdhsa--gfx950"\n.text\n'
    src+=k[0]+'.section .rodata,"a"\n'+k[1]
    if opt(o,'meta',False):
        src+=".amdgpu_metadata\n---\namdhsa.version: [1, 2]\namdhsa.kernels:\n"
        src+=f"  - .name: {k[2]}\n    .symbol: {k[2]}.kd\n    .kernarg_segment_size: 104\n    .kernarg_segment_align: 8\n    .group_segment_fixed_size: 0\n    .private_segment_fixed_size: 0\n    .wavefront_size: 64\n    .sgpr_count: 96\n    .vgpr_count: 256\n    .max_flat_workgroup_size: 320\n    .args:\n      - {{.name: kernargs, .size: 104, .offset: 0, .value_kind: by_value}}\n"
        src+="...\n.end_amdgpu_metadata\n"
    return src
if __name__=='__main__':
    out=sys.argv[1]; o=dict(a.split('=',1) for a in sys.argv[2:])
    open(out,'w').write(build2(o))
```

```python
import sys, struct, math
KN='concat_heads__gqa_block_cached__mha_block_cached__decode'
def f2h(x): return "0x%08x"%struct.unpack('<I',struct.pack('<f',x))[0]

WS_EPOCH=0x0
WS_QG=0x1000
WS_STAT=0x22000
WS_PART=0x40000
WS_Y=0x140000
WS_CNT=0x240000
CNT_STRIDE=4352
WS_STAMP=0x300000
WS_SIZE=0x400000
L_WST=0x0000
L_QC=0x7000
L_FL=0x7800
L_ST=0xD800
L_CNT=0xD900
L_QUEUE=0xDA00
L_OB=0xDC00
L_FB=0xE000
LDS_SIZE=0xE200
SCALE=math.log2(math.e)/16.0

class G:
    def __init__(s): s.L=[]
    def __call__(s,txt):
        for l in txt.strip('\n').split('\n'): s.L.append(l)
    def text(s): return "\n".join(s.L)+"\n"

def opt(o,k,d):
    v=o.get(k,d)
    return type(d)(v) if not isinstance(d,bool) else (str(v).lower() in('1','true','yes'))

def load_tags(g, sWS, sT, sTB, tmp):
    g(f"""
  s_load_dword s{sT}, s[{sWS}:{sWS+1}], {WS_EPOCH}
  s_waitcnt lgkmcnt(0)
  s_add_u32 s{sT}, s{sT}, 1
  s_and_b32 s{tmp}, s{sT}, 0xff
  s_add_u32 s{sTB}, s{tmp}, 0x35
  s_and_b32 s{sTB}, s{sTB}, 0xff
  s_lshl_b32 s{sTB}, s{sTB}, 8
  s_or_b32 s{sTB}, s{sTB}, s{tmp}
  s_add_u32 s{tmp+1}, s{tmp}, 0x6b
  s_and_b32 s{tmp+1}, s{tmp+1}, 0xff
  s_lshl_b32 s{tmp+1}, s{tmp+1}, 16
  s_or_b32 s{sTB}, s{sTB}, s{tmp+1}
  s_add_u32 s{tmp+1}, s{tmp}, 0xa1
  s_lshl_b32 s{tmp+1}, s{tmp+1}, 24
  s_or_b32 s{sTB}, s{sTB}, s{tmp+1}
""")

STAMPS=False
WQPOL='nt'
WQTEST=0
WQROT=0
sST=64
def stamp(g,idx,cond_phase=False):
    if not STAMPS: return
    g(f"  s_memrealtime s[80:81]\n  s_waitcnt lgkmcnt(0)\n  s_mov_b32 s{sST+idx}, s80")
def stamp_init(g):
    if not STAMPS: return
    for i in range(16): g(f"  s_mov_b32 s{sST+i}, 0")
def stamp_write(g,nwaves=5):
    if not STAMPS: return
    g(f"""
  s_getreg_b32 s{sST+15}, hwreg(HW_REG_XCC_ID)
  s_mul_i32 s80, s2, {nwaves}
  s_add_u32 s80, s80, s{sW}
  s_lshl_b32 s80, s80, 6
  s_add_u32 s80, s80, {WS_STAMP}
  v_mov_b32 v25, s80""")
    for q in range(4):
        for i in range(4): g(f"  v_mov_b32 v{28+i}, s{sST+4*q+i}")
        g(f"  s_mov_b64 exec, 1\n  global_store_dwordx4 v25, v[28:31], s[{sWS}:{sWS+1}] offset:{16*q}\n  s_mov_b64 exec, -1\n  s_nop 1")
    g("  s_waitcnt vmcnt(0)")

def spin_guard(g, sCnt, lbl_fail, limit=200000):
    g(f"""
  s_add_u32 s{sCnt}, s{sCnt}, 1
  s_cmp_gt_u32 s{sCnt}, {limit}
  s_cbranch_scc1 {lbl_fail}
""")

def emit_qproj_ptrs(g):
    g(f"""
  s_lshr_b32 s44, s2, 7
  s_mul_i32 s45, s44, 40
  s_add_u32 s46, s0, s45
  s_addc_u32 s47, s1, 0
  s_load_dwordx2 s[48:49], s[46:47], 0     ; x
  s_load_dwordx2 s[52:53], s[46:47], 24    ; wq
""")
def emit_qproj(g, u, sWS, sT, lbl):
    emit_qproj_ptrs(g); g("  s_waitcnt lgkmcnt(0)")
    emit_qproj_issue(g); emit_qproj_compute(g,u,sWS,sT)
def emit_qproj_issue(g):
    g(f"""
  v_lshrrev_b32 v1, 2, v0
  v_lshlrev_b32 v1, 13, v1            ; (l>>2)*8192
  v_and_b32 v2, 3, v0
  v_lshlrev_b32 v3, 4, v2             ; (l&3)*16
  v_add_u32 v1, v1, v3
  v_mul_u32_u24 v4, 896, v2           ; (l&3)*896
  v_lshrrev_b32 v5, 4, v0             ; g
  v_lshlrev_b32 v6, 4, v5             ; g*16
  v_add_u32 v4, v4, v6
  s_and_b32 s45, s2, 127
  s_lshl_b32 s45, s45, 6
  s_and_b32 s49, s49, 0xffff
  s_mov_b32 s50, 3584
  s_mov_b32 s51, 0x20000
  s_and_b32 s53, s53, 0xffff
  s_mov_b32 s54, 3670016
  s_mov_b32 s55, 0x20000
  s_mov_b32 m0, {L_WST}
  s_nop 0
""")
    XA=16
    if WQTEST==1:
        g("  v_lshlrev_b32 v1, 4, v0\n  s_and_b32 s45, s2, 127\n  s_mul_i32 s45, s45, 28672")
    if WQTEST==2:
        g("  v_lshrrev_b32 v1, 5, v0\n  v_lshlrev_b32 v1, 13, v1\n  v_and_b32 v7, 31, v0\n  v_lshl_add_u32 v1, v7, 4, v1\n  s_and_b32 s45, s2, 7\n  s_mul_i32 s45, s45, 458752\n  s_lshr_b32 s44, s2, 3\n  s_and_b32 s44, s44, 15\n  s_lshl_b32 s44, s44, 9\n  s_add_u32 s45, s45, s44")
    for s_ in range(14):
        g(f"  buffer_load_dwordx4 v[{XA+4*s_}:{XA+4*s_+3}], v4, s[48:51], 0 offen offset:{s_*64}")
    if WQROT:
        g(f"""  s_mul_i32 s56, s2, {WQROT}
  s_mul_hi_u32 s57, s56, 0x9249250
  s_mul_i32 s57, s57, 28
  s_sub_u32 s56, s56, s57
  s_cmp_ge_u32 s56, 28
  s_cselect_b32 s57, 28, 0
  s_sub_u32 s56, s56, s57""")
        for ld in range(28):
            g(f"""  s_lshl_b32 s57, s56, 17
  s_add_u32 s57, s57, s45
  s_lshl_b32 s58, s56, 10
  s_add_u32 m0, s58, {L_WST}
  s_add_u32 s56, s56, 1
  buffer_load_dwordx4 v1, s[52:55], s57 offen {WQPOL} lds
  s_cmp_eq_u32 s56, 28
  s_cselect_b32 s56, 0, s56""")
    else:
      for ld in range(28):
        g(f"  buffer_load_dwordx4 v1, s[52:55], s45 offen {WQPOL} lds")
        if ld<27:
            g(f"  s_add_u32 s45, s45, {[16*8192,1024,2*8192][WQTEST]}\n  s_add_u32 m0, m0, 1024\n  s_nop 0")
    stamp(g,7)
def emit_qproj_compute(g,u,sWS,sT):
    XA=16
    g(f"""
  v_lshrrev_b32 v6, 2, v0
  v_and_b32 v6, 3, v6
  v_lshl_add_u32 v6, v5, 3, v6        ; 8g + r
  v_lshlrev_b32 v6, 6, v6
  v_lshl_add_u32 v6, v2, 3, v6
  v_add_u32 v6, {L_WST}, v6
  s_waitcnt vmcnt(0)
""")
    stamp(g,4)
    TB=72
    first=True
    for batch in range(2):
        for ss in range(7):
            s=batch*7+ss
            for cb in range(2):
                r=TB+8*ss+4*cb
                g(f"  ds_read_b64_tr_b16 v[{r}:{r+1}], v6 offset:{s*2048+cb*32}")
                g(f"  ds_read_b64_tr_b16 v[{r+2}:{r+3}], v6 offset:{s*2048+cb*32+256}")
        g("  s_waitcnt lgkmcnt(0)")
        for ss in range(7):
            s=batch*7+ss
            for cb in range(2):
                r=TB+8*ss+4*cb; d=8+4*cb
                c = "0" if s==0 else f"v[{d}:{d+3}]"
                g(f"  v_mfma_f32_16x16x32_bf16 v[{d}:{d+3}], v[{XA+4*s}:{XA+4*s+3}], v[{r}:{r+3}], {c}")
    g(f"""
  s_nop 7
  v_cmp_eq_u32 vcc, 1, v5
  v_cmp_eq_u32 s[56:57], 2, v5
  v_cmp_eq_u32 s[58:59], 3, v5
  s_nop 1
  v_cndmask_b32 v8, v8, v9, vcc
  v_cndmask_b32 v12, v12, v13, vcc
  v_cndmask_b32 v8, v8, v10, s[56:57]
  v_cndmask_b32 v12, v12, v14, s[56:57]
  v_cndmask_b32 v8, v8, v11, s[58:59]
  v_cndmask_b32 v12, v12, v15, s[58:59]
  v_and_b32 v7, 1, v0                 ; parity
  v_cmp_eq_u32 vcc, 0, v7
  v_mov_b32 v9, 0
  v_mov_b32 v13, 0
  s_nop 1
  v_mov_b32_dpp v9, v8 row_shl:1 row_mask:0xf bank_mask:0xf     ; val0[n+1]
  v_mov_b32_dpp v13, v12 row_shr:1 row_mask:0xf bank_mask:0xf   ; val1[n-1]
  s_nop 1
  v_cndmask_b32 v10, v13, v8, vcc
  v_cndmask_b32 v11, v12, v9, vcc
  v_cvt_pk_bf16_f32 v10, v10, v11
  v_mov_b32 v11, s{sT}
  s_lshr_b32 s44, s2, 7
  s_lshl_b32 s44, s44, 16             ; p*4*16*1024
  s_lshr_b32 s45, s2, 3
  s_and_b32 s45, s45, 15
  s_lshl_b32 s45, s45, 10             ; hq*1024
  s_add_u32 s44, s44, s45
  s_and_b32 s45, s2, 7
  s_lshl_b32 s45, s45, 7              ; ds*16*8
  s_add_u32 s44, s44, s45
  s_add_u32 s44, s44, {WS_QG}
  v_lshlrev_b32 v12, 14, v5           ; b*16*1024
  v_lshlrev_b32 v13, 6, v7            ; cb*8*8
  v_add_u32 v12, v12, v13
  v_and_b32 v13, 15, v0
  v_lshrrev_b32 v13, 1, v13
  v_lshl_add_u32 v12, v13, 3, v12
  v_add_u32 v12, s44, v12
  global_store_dwordx2 v12, v[10:11], s[{sWS}:{sWS+1}] sc1
""")

def emit_qgather(g, u, sWS, sT, sG, lblfail):
    g(f"""
  s_lshl_b32 s44, s{sG}, 11           ; 2g*1024
  s_add_u32 s44, s44, {WS_QG}
  v_lshlrev_b32 v1, 4, v0
  v_add_u32 v1, s44, v1               ; A vectors (p=0)
  v_add_u32 v2, 0x10000, v1           ; B vectors (p=1)
  s_mov_b32 s45, 0
L_qg_poll_{u}:
  global_load_dwordx4 v[8:11], v2, s[{sWS}:{sWS+1}] sc1
  global_load_dwordx4 v[12:15], v2, s[{sWS}:{sWS+1}] offset:1024 sc1
  global_load_dwordx4 v[16:19], v1, s[{sWS}:{sWS+1}] sc1
  global_load_dwordx4 v[20:23], v1, s[{sWS}:{sWS+1}] offset:1024 sc1
  s_waitcnt vmcnt(0)
""")
    if STAMPS:
        g(f"  s_add_u32 s{sST+5}, s{sST+5}, 1\n  s_cmp_eq_u32 s{sST+5}, 1\n  s_cbranch_scc0 L_qst_{u}")
        stamp(g,6)
        g(f"L_qst_{u}:")
    g(f"""
  v_xor_b32 v9, s{sT}, v9
  v_xor_b32 v11, s{sT}, v11
  v_xor_b32 v13, s{sT}, v13
  v_xor_b32 v15, s{sT}, v15
  v_xor_b32 v17, s{sT}, v17
  v_xor_b32 v19, s{sT}, v19
  v_xor_b32 v21, s{sT}, v21
  v_xor_b32 v23, s{sT}, v23
  v_or3_b32 v9, v9, v11, v13
  v_or3_b32 v15, v15, v17, v19
  v_or3_b32 v9, v9, v21, v23
  v_or_b32 v9, v9, v15
  v_cmp_ne_u32 vcc, 0, v9
  s_cbranch_vccz L_qg_ok_{u}
""")
    spin_guard(g,45,lblfail)
    g(f"""
  s_sleep 2
  s_branch L_qg_poll_{u}
L_qg_ok_{u}:
  v_lshlrev_b32 v3, 3, v0
  v_add_u32 v3, {L_QC}, v3
  v_mov_b32 v9, v10
  v_mov_b32 v13, v14
  v_mov_b32 v17, v18
  v_mov_b32 v21, v22
  ds_write_b64 v3, v[8:9]
  ds_write_b64 v3, v[12:13] offset:512
  ds_write_b64 v3, v[16:17] offset:1024
  ds_write_b64 v3, v[20:21] offset:1536
""")

def emit_wo_stage(g, u):
    g(f"""
  s_load_dwordx2 s[48:49], s[0:1], 32
  s_load_dwordx2 s[52:53], s[0:1], 72
  s_lshr_b32 s44, s2, 2               ; h*4+dq
  s_mul_i32 s44, s44, {64*896}
  s_and_b32 s45, s2, 3
  s_mul_i32 s45, s45, 224
  s_add_u32 s44, s44, s45
  ; per lane: c = lane ; row = c/14, chunk = c%14
  v_mul_u32_u24 v2, 4682, v0          ; c*4682 >> 16 = c/14 for c<64
  v_lshrrev_b32 v2, 16, v2            ; row
  v_mul_u32_u24 v3, 14, v2
  v_sub_u32 v3, v0, v3                ; chunk
  s_waitcnt lgkmcnt(0)
  s_and_b32 s49, s49, 0xffff
  s_mov_b32 s50, 3670016
  s_mov_b32 s51, 0x20000
  s_and_b32 s53, s53, 0xffff
  s_mov_b32 s54, 3670016
  s_mov_b32 s55, 0x20000
""")
    for ld in range(14):
        g(f"""
  v_mul_u32_u24 v4, 896, v2
  v_lshl_add_u32 v4, v3, 4, v4
  s_mov_b32 m0, {L_WST+ld*1024}
  s_nop 0
  buffer_load_dwordx4 v4, s[48:51], s44 offen nt lds
  s_mov_b32 m0, {L_WST+14336+ld*1024}
  s_nop 0
  buffer_load_dwordx4 v4, s[52:55], s44 offen nt lds""")
        if ld<13:
            g(f"""
  v_add_u32 v3, 8, v3
  v_add_u32 v2, 4, v2
  v_cmp_le_u32 vcc, 14, v3
  v_subrev_u32 v5, 14, v3
  v_add_u32 v6, 1, v2
  v_cndmask_b32 v3, v3, v5, vcc
  v_cndmask_b32 v2, v2, v6, vcc""")

sW=3; sG=4; sJ=5; sT=6; sTB=7
sK=8
sV=12
sKA=16; sVA=18; sKB=20; sVB=22; sWS=24; sDBG=26; sOUT=28
sOFF=30; sCNT=31; sPH=32; sNXT=33; sKN=34; sTRIG=35; sSKIP=36; sCPH=37
sC=38; sSLO=39; sSHI=40
sTMP=44
sERR=60
vOK=1; vOV=2; vM=3; vMC=4; vL=5; vLANE=6; vX=7
vS=8; vT=12; vP=20; vB=24; vACC=40; vV=[72,104]
NARCH=136
aK=[0,32]; aQ=64
NACC=96

def chunk_table(o):
    tab=o.get('tab','dyn')
    if tab=='static': return 32, []
    if tab=='dyn': return 12, [(8,8),(8,5),(8,3),(8,2),(16,1)]
    a,b=tab.split(':'); lst=[tuple(int(x) for x in t.split('x')) for t in b.split(',')] if b else []
    return int(a), lst

def emit_k_loads(g,buf,pol):
    for j in range(8):
        r=aK[buf]+4*j
        g(f"  buffer_load_dwordx4 a[{r}:{r+3}], v{vOK}, s[{sK}:{sK+3}], s{sOFF} offen offset:{j*64} {pol}")
def emit_v_loads(g,buf,pol):
    for r8 in range(8):
        r=vV[buf]+4*r8
        g(f"  buffer_load_dwordx4 v[{r}:{r+3}], v{vOV}, s[{sV}:{sV+3}], s{sOFF} offen offset:{r8*512} {pol}")

def set_srd_head(g, sKp, sVp, sIdx):
    g(f"""
  s_lshl_b32 s{sTMP}, s{sIdx}, 23
  s_lshr_b32 s{sTMP+1}, s{sIdx}, 9
  s_add_u32 s{sK}, s{sKp}, s{sTMP}
  s_addc_u32 s{sK+1}, s{sKp+1}, s{sTMP+1}
  s_and_b32 s{sK+1}, s{sK+1}, 0xffff
  s_add_u32 s{sV}, s{sVp}, s{sTMP}
  s_addc_u32 s{sV+1}, s{sVp+1}, s{sTMP+1}
  s_and_b32 s{sV+1}, s{sV+1}, 0xffff
  s_mov_b32 s{sK+2}, 0x800000
  s_mov_b32 s{sV+2}, 0x800000
  s_mov_b32 s{sK+3}, 0x20000
  s_mov_b32 s{sV+3}, 0x20000
""")

def emit_advance(g,o,u):
    size0,tab=chunk_table(o)
    g(f"""
  s_cmp_eq_u32 s{sPH}, 2
  s_cbranch_scc1 L_adv_dyn_{u}
  s_add_u32 s{sPH}, s{sPH}, 1
  s_mov_b32 s{sNXT}, 1
  s_cmp_eq_u32 s{sPH}, 2
  s_cbranch_scc1 L_adv_p2_{u}
  s_lshl_b32 s{sTMP+2}, s{sG}, 1
  s_add_u32 s{sTMP+2}, s{sTMP+2}, 1
""")
    set_srd_head(g,sKB,sVB,sTMP+2)
    g(f"""
  s_lshl_b32 s{sOFF}, s{sJ}, 20
  s_lshl_b32 s{sTMP}, s{sW}, 18
  s_add_u32 s{sOFF}, s{sOFF}, s{sTMP}
  s_mov_b32 s{sCNT}, 32
  s_branch L_adv_done_{u}
L_adv_p2_{u}:
""")
    set_srd_head(g,sKA,sVA,sG)
    g(f"""
  ; first chunk static: start unit = j*size0, per wave size0 tiles
  s_mul_i32 s{sOFF}, s{sJ}, {size0*64*512}
  s_mul_i32 s{sTMP}, s{sW}, {size0*16*512}
  s_add_u32 s{sOFF}, s{sOFF}, s{sTMP}
  s_mov_b32 s{sCNT}, {size0}
  s_mov_b32 s{sKN}, 1
  s_mov_b32 s{sTRIG}, 3
  s_branch L_adv_done_{u}
L_adv_dyn_{u}:
  s_lshl_b32 s{sTMP}, s{sKN}, 2
  s_add_u32 s{sTMP}, s{sTMP}, {L_QUEUE}
  v_mov_b32 v{vX}, s{sTMP}
  s_mov_b32 s{sTMP+2}, 0
L_adv_poll_{u}:
  ds_read_b32 v{vT}, v{vX}
  s_waitcnt lgkmcnt(0)
  v_readfirstlane_b32 s{sTMP+1}, v{vT}
  s_nop 0
  s_cmp_eq_u32 s{sTMP+1}, -1
  s_cbranch_scc0 L_adv_got_{u}
""")
    spin_guard(g,sTMP+2,"L_fail")
    if STAMPS: g(f"  s_add_u32 s{sST+11}, s{sST+11}, 1")
    g(f"""
  s_sleep 1
  s_branch L_adv_poll_{u}
L_adv_got_{u}:
  s_add_u32 s{sKN}, s{sKN}, 1
  s_cmp_eq_u32 s{sTMP+1}, -2
  s_cbranch_scc1 L_adv_end_{u}
  s_and_b32 s{sCNT}, s{sTMP+1}, 0xff
  s_lshr_b32 s{sOFF}, s{sTMP+1}, 8
  s_lshl_b32 s{sOFF}, s{sOFF}, 15
  s_mul_i32 s{sTMP}, s{sW}, s{sCNT}
  s_lshl_b32 s{sTMP}, s{sTMP}, 13
  s_add_u32 s{sOFF}, s{sOFF}, s{sTMP}
  s_branch L_adv_done_{u}
L_adv_end_{u}:
  s_mov_b32 s{sNXT}, 2
  s_mov_b32 s{sK+2}, 0
  s_mov_b32 s{sV+2}, 0
  s_mov_b32 s{sCNT}, 0x10000
  s_mov_b32 s{sTRIG}, 0
  s_mov_b32 s{sOFF}, 0
L_adv_done_{u}:
""")

def emit_body(g,o,b):
    pol=o.get('pol','nt'); vearly=opt(o,'vearly',False)
    nb=b^1; u=f"b{b}"
    g(f"L_body_{u}:")
    g(f"  s_waitcnt vmcnt(8)")
    for j in range(8):
        c="0" if j==0 else f"v[{vS}:{vS+3}]"
        g(f"  v_mfma_f32_16x16x32_bf16 v[{vS}:{vS+3}], a[{aK[b]+4*j}:{aK[b]+4*j+3}], a[{aQ+4*j}:{aQ+4*j+3}], {c}")
    g(f"""
  s_cmp_eq_u32 s{sSKIP}, 0
  s_cbranch_scc0 L_nokld_{u}
  s_cmp_eq_u32 s{sCNT}, 0
  s_cbranch_scc0 L_kld_{u}""")
    emit_advance(g,o,u)
    g(f"L_kld_{u}:")
    emit_k_loads(g,nb,pol)
    if vearly: emit_v_loads(g,nb,pol)
    g(f"L_nokld_{u}:")
    t=vT
    g(f"""
  s_nop 5
  v_max3_f32 v{t}, v{vS}, v{vS+1}, v{vS+2}
  v_max_f32 v{t}, v{t}, v{vS+3}
  v_mov_b32 v{t+1}, v{t}
  s_nop 1
  v_permlane16_swap_b32 v{t}, v{t+1}
  v_max_f32 v{t}, v{t}, v{t+1}
  v_mov_b32 v{t+1}, v{t}
  s_nop 1
  v_permlane32_swap_b32 v{t}, v{t+1}
  v_max_f32 v{t}, v{t}, v{t+1}
  v_cmp_gt_f32 vcc, v{t}, v{vM}
  s_cbranch_vccnz L_rare_{u}
L_back_{u}:
  v_fma_f32 v{t+2}, v{vS}, s{sC}, -v{vMC}
  v_fma_f32 v{t+3}, v{vS+1}, s{sC}, -v{vMC}
  v_fma_f32 v{t+4}, v{vS+2}, s{sC}, -v{vMC}
  v_fma_f32 v{t+5}, v{vS+3}, s{sC}, -v{vMC}
  v_exp_f32 v{t+2}, v{t+2}
  v_exp_f32 v{t+3}, v{t+3}
  v_exp_f32 v{t+4}, v{t+4}
  v_exp_f32 v{t+5}, v{t+5}
  v_add_f32 v{t+6}, v{t+2}, v{t+3}
  v_cvt_pk_bf16_f32 v{vP}, v{t+2}, v{t+3}
  v_add_f32 v{t+7}, v{t+4}, v{t+5}
  v_cvt_pk_bf16_f32 v{vP+1}, v{t+4}, v{t+5}
  v_add_f32 v{t+6}, v{t+6}, v{t+7}
  v_mov_b32 v{vP+2}, v{vP}
  v_mov_b32 v{vP+3}, v{vP+1}
  v_add_f32 v{vL}, v{vL}, v{t+6}
  s_nop 0
  v_permlane16_swap_b32 v{vP}, v{vP+2}
  v_permlane16_swap_b32 v{vP+1}, v{vP+3}
  s_waitcnt vmcnt({16 if vearly else 8})
""")
    for t2 in range(2):
        R=[vV[b]+4*(4*t2+rr) for rr in range(4)]
        for dw in range(4):
            g(f"  v_perm_b32 v{vB+4*dw}, v{R[1]+dw}, v{R[0]+dw}, s{sSLO}")
            g(f"  v_perm_b32 v{vB+4*dw+1}, v{R[3]+dw}, v{R[2]+dw}, s{sSLO}")
            g(f"  v_perm_b32 v{vB+4*dw+2}, v{R[1]+dw}, v{R[0]+dw}, s{sSHI}")
            g(f"  v_perm_b32 v{vB+4*dw+3}, v{R[3]+dw}, v{R[2]+dw}, s{sSHI}")
        for jj in range(8):
            a=vACC+4*jj
            g(f"  v_mfma_f32_4x4x4_16b_bf16 v[{a}:{a+3}], v[{vP+2*t2}:{vP+2*t2+1}], v[{vB+2*jj}:{vB+2*jj+1}], v[{a}:{a+3}]")
    g(f"""
  s_cmp_eq_u32 s{sSKIP}, 0
  s_cbranch_scc0 L_novld_{u}""")
    if not vearly: emit_v_loads(g,nb,pol)
    g(f"""
  s_add_u32 s{sOFF}, s{sOFF}, 8192
  s_sub_u32 s{sCNT}, s{sCNT}, 1
  s_cmp_lt_u32 s{sCNT}, s{sTRIG}
  s_cbranch_scc0 L_novld_{u}
  v_mov_b32 v{vX}, {L_CNT+12}
  v_mov_b32 v{vT}, s{sKN}
  ds_max_u32 v{vX}, v{vT}
L_novld_{u}:
  s_mov_b32 s{sSKIP}, 0
  s_cmp_eq_u32 s{sNXT}, 0
  s_cbranch_scc0 L_flush_{u}
""")
    if b==1: g("  s_branch L_body_b0")

def emit_rare(g,b):
    u=f"b{b}"; t=vT
    g(f"""
L_rare_{u}:
  v_max_f32 v{t+1}, v{t}, v{vM}
  v_sub_f32 v{t+2}, v{vM}, v{t+1}
  v_mul_f32 v{t+2}, s{sC}, v{t+2}
  v_exp_f32 v{t+2}, v{t+2}
  v_mov_b32 v{vM}, v{t+1}
  v_mul_f32 v{vMC}, s{sC}, v{t+1}
  v_mul_f32 v{vL}, v{vL}, v{t+2}
  s_nop 0
  v_mov_b32_dpp v{t+3}, v{t+2} quad_perm:[0,0,2,2] row_mask:0xf bank_mask:0xf
  v_mov_b32_dpp v{t+4}, v{t+2} quad_perm:[1,1,3,3] row_mask:0xf bank_mask:0xf
""")
    for jj in range(8):
        g(f"  v_mul_f32 v{vACC+4*jj}, v{vACC+4*jj}, v{t+3}")
        g(f"  v_mul_f32 v{vACC+4*jj+1}, v{vACC+4*jj+1}, v{t+4}")
    g(f"  s_branch L_back_{u}")

def tag_embed(g, regs, vTagv, sSel):
    for k,r in enumerate(regs):
        g(f"  s_mov_b32 s{sSel}, {hex(0x07060500|k)}\n  v_perm_b32 v{r}, v{r}, v{vTagv}, s{sSel}")

def emit_flush(g,o,b):
    u=f"b{b}"; t=vT
    g(f"""
L_flush_{u}:
  s_nop 4""")
    if STAMPS:
        g(f"  s_memrealtime s[80:81]\n  s_waitcnt lgkmcnt(0)\n  s_cmp_eq_u32 s{sCPH}, 0\n  s_cselect_b32 s{sST+3}, s80, s{sST+3}\n  s_cmp_eq_u32 s{sCPH}, 1\n  s_cselect_b32 s{sST+4}, s80, s{sST+4}\n  s_cmp_eq_u32 s{sCPH}, 2\n  s_cselect_b32 s{sST+5}, s80, s{sST+5}")
    for jj in range(8):
        a=vACC+4*jj
        g(f"  v_permlane32_swap_b32 v{a}, v{a+1}")
    for jj in range(8):
        a=vACC+4*jj
        g(f"  v_add_f32 v{vB+jj}, v{a}, v{a+1}")
    g(f"""
  v_mov_b32 v{t}, v{vL}
  s_nop 1
  v_permlane16_swap_b32 v{vL}, v{t}
  v_add_f32 v{vL}, v{vL}, v{t}
  v_mov_b32 v{t}, v{vL}
  s_nop 1
  v_permlane32_swap_b32 v{vL}, v{t}
  v_add_f32 v{vL}, v{vL}, v{t}
  s_lshl_b32 s{sTMP}, s{sCPH}, 13
  s_lshl_b32 s{sTMP+1}, s{sW}, 11
  s_add_u32 s{sTMP}, s{sTMP}, s{sTMP+1}
  s_add_u32 s{sTMP}, s{sTMP}, {L_FL}
  v_lshlrev_b32 v{t}, 5, v{vLANE}
  v_add_u32 v{t}, s{sTMP}, v{t}
  ds_write_b128 v{t}, v[{vB}:{vB+3}]
  ds_write_b128 v{t}, v[{vB+4}:{vB+7}] offset:16
  s_lshl_b32 s{sTMP}, s{sCPH}, 6
  s_lshl_b32 s{sTMP+1}, s{sW}, 4
  s_add_u32 s{sTMP}, s{sTMP}, s{sTMP+1}
  s_add_u32 s{sTMP}, s{sTMP}, {L_ST}
  v_and_b32 v{t+1}, 1, v{vLANE}
  v_lshlrev_b32 v{t+1}, 3, v{t+1}
  v_add_u32 v{t+1}, s{sTMP}, v{t+1}
  v_mov_b32 v{t+2}, v{vMC}
  v_mov_b32 v{t+3}, v{vL}
  ds_write_b64 v{t+1}, v[{t+2}:{t+3}]
  s_waitcnt lgkmcnt(0)
  s_lshl_b32 s{sTMP}, s{sCPH}, 2
  s_add_u32 s{sTMP}, s{sTMP}, {L_CNT}
  v_mov_b32 v{t}, s{sTMP}
  v_mov_b32 v{t+1}, 1
  s_mov_b64 exec, 1
  ds_add_rtn_u32 v{t+2}, v{t}, v{t+1}
  s_mov_b64 exec, -1
  s_waitcnt lgkmcnt(0)
  v_readfirstlane_b32 s{sTMP}, v{t+2}
  s_nop 0
  s_cmp_eq_u32 s{sTMP}, 3
  s_cbranch_scc0 L_nomerge_{u}
""")
    g(f"""
  s_and_b32 s{sTMP+2}, s{sG}, 7
  s_lshl_b32 s{sTMP+2}, s{sTMP+2}, 1          ; hq0
  s_lshr_b32 s{sTMP+3}, s{sG}, 3              ; b
  s_cmp_eq_u32 s{sCPH}, 2
  s_cselect_b32 s{sTMP+4}, 0, 16              ; p*16
  s_cselect_b32 s{sTMP+5}, 0, s{sCPH}
  s_cselect_b32 s{sTMP+6}, 2, 1
  s_add_u32 s{sTMP+2}, s{sTMP+2}, s{sTMP+4}
  s_add_u32 s{sTMP+2}, s{sTMP+2}, s{sTMP+5}   ; p*16+hq
  s_lshl_b32 s{sTMP+2}, s{sTMP+2}, 2
  s_add_u32 s{sTMP+2}, s{sTMP+2}, s{sTMP+3}   ; *4 + b
  s_lshl_b32 s{sTMP+2}, s{sTMP+2}, 3
  s_add_u32 s{sTMP+2}, s{sTMP+2}, s{sJ}
  s_mov_b32 s{sTMP+7}, 0                      ; hh
  v_mov_b32 v{vX}, s{sTB}
L_merge_{u}:
  s_lshl_b32 s{sTMP}, s{sCPH}, 6
  s_lshl_b32 s{sTMP+1}, s{sTMP+7}, 3
  s_add_u32 s{sTMP}, s{sTMP}, s{sTMP+1}
  s_add_u32 s{sTMP}, s{sTMP}, {L_ST}
  v_mov_b32 v{t}, s{sTMP}
  ds_read_b64 v[{vB}:{vB+1}], v{t}
  ds_read_b64 v[{vB+2}:{vB+3}], v{t} offset:16
  ds_read_b64 v[{vB+4}:{vB+5}], v{t} offset:32
  ds_read_b64 v[{vB+6}:{vB+7}], v{t} offset:48
  s_lshl_b32 s{sTMP}, s{sCPH}, 13
  s_lshl_b32 s{sTMP+1}, s{sTMP+7}, 10
  s_add_u32 s{sTMP}, s{sTMP}, s{sTMP+1}
  s_add_u32 s{sTMP}, s{sTMP}, {L_FL}
  v_lshlrev_b32 v{t+1}, 4, v{vLANE}
  v_add_u32 v{t+1}, s{sTMP}, v{t+1}
  ds_read_b128 v[{vACC}:{vACC+3}], v{t+1}
  ds_read_b128 v[{vACC+4}:{vACC+7}], v{t+1} offset:2048
  ds_read_b128 v[{vACC+8}:{vACC+11}], v{t+1} offset:4096
  ds_read_b128 v[{vACC+12}:{vACC+15}], v{t+1} offset:6144
  s_waitcnt lgkmcnt(0)
  v_max3_f32 v{t+2}, v{vB}, v{vB+2}, v{vB+4}
  v_max_f32 v{t+2}, v{t+2}, v{vB+6}           ; M
  v_sub_f32 v{vB}, v{vB}, v{t+2}
  v_sub_f32 v{vB+2}, v{vB+2}, v{t+2}
  v_sub_f32 v{vB+4}, v{vB+4}, v{t+2}
  v_sub_f32 v{vB+6}, v{vB+6}, v{t+2}
  v_exp_f32 v{vB}, v{vB}
  v_exp_f32 v{vB+2}, v{vB+2}
  v_exp_f32 v{vB+4}, v{vB+4}
  v_exp_f32 v{vB+6}, v{vB+6}
  s_nop 0
  v_mul_f32 v{t+3}, v{vB}, v{vB+1}
  v_fmac_f32 v{t+3}, v{vB+2}, v{vB+3}
  v_fmac_f32 v{t+3}, v{vB+4}, v{vB+5}
  v_fmac_f32 v{t+3}, v{vB+6}, v{vB+7}         ; L
""")
    for k in range(4):
        g(f"""  v_mul_f32 v{vB+8+k}, v{vB}, v{vACC+k}
  v_fmac_f32 v{vB+8+k}, v{vB+2}, v{vACC+4+k}
  v_fmac_f32 v{vB+8+k}, v{vB+4}, v{vACC+8+k}
  v_fmac_f32 v{vB+8+k}, v{vB+6}, v{vACC+12+k}""")
    tag_embed(g,[vB+8,vB+9,vB+10,vB+11],vX,sTMP)
    g(f"""
  s_lshl_b32 s{sTMP}, s{sTMP+2}, 10
  s_add_u32 s{sTMP}, s{sTMP}, {WS_PART}
  v_lshlrev_b32 v{t}, 4, v{vLANE}
  v_add_u32 v{t}, s{sTMP}, v{t}
  global_store_dwordx4 v{t}, v[{vB+8}:{vB+11}], s[{sWS}:{sWS+1}] sc1
  v_mov_b32 v{vB+12}, v{t+2}
  v_mov_b32 v{vB+13}, s{sT}
  v_mov_b32 v{vB+14}, v{t+3}
  v_mov_b32 v{vB+15}, s{sT}
  s_lshl_b32 s{sTMP}, s{sTMP+2}, 4
  s_add_u32 s{sTMP}, s{sTMP}, {WS_STAT}
  v_mov_b32 v{t}, s{sTMP}
  s_mov_b64 exec, 1
  global_store_dwordx4 v{t}, v[{vB+12}:{vB+15}], s[{sWS}:{sWS+1}] sc1
  s_mov_b64 exec, -1
  s_add_u32 s{sTMP+7}, s{sTMP+7}, 1
  s_add_u32 s{sTMP+2}, s{sTMP+2}, 32
  s_cmp_lt_u32 s{sTMP+7}, s{sTMP+6}
  s_cbranch_scc1 L_merge_{u}
L_nomerge_{u}:
  s_cmp_eq_u32 s{sNXT}, 2
  s_cbranch_scc1 L_tail
  s_add_u32 s{sCPH}, s{sCPH}, 1
  s_mov_b32 s{sNXT}, 0
""")
    emit_reset_and_q(g)
    g(f"  s_branch L_body_b{b^1}")

def emit_reset_and_q(g):
    t=vT
    g(f"""
  v_and_b32 v{t}, 1, v{vLANE}
  s_cmp_eq_u32 s{sCPH}, 2
  s_cselect_b32 s{sTMP}, 512, 0
  v_mul_u32_u24 v{t}, s{sTMP}, v{t}
  s_lshl_b32 s{sTMP}, s{sCPH}, 9
  s_add_u32 s{sTMP}, s{sTMP}, {L_QC}
  v_add_u32 v{t}, s{sTMP}, v{t}
  v_lshrrev_b32 v{t+1}, 4, v{vLANE}
  v_lshl_add_u32 v{t}, v{t+1}, 4, v{t}
""")
    for j in range(8):
        g(f"  ds_read_b128 a[{aQ+4*j}:{aQ+4*j+3}], v{t} offset:{j*64}")
    g(f"""
  v_mov_b32 v{vM}, 0xff800000
  v_mov_b32 v{vMC}, 0xff800000
  v_mov_b32 v{vL}, 0""")
    for r in range(32): g(f"  v_mov_b32 v{vACC+r}, 0")
    g("  s_waitcnt lgkmcnt(0)")

def emit_role(g,o,p,u):
    t=vT; D0=24; D1=28; S0=32; S1=36
    g(f"""
  s_lshr_b32 s{sTMP}, s2, 4                   ; h
  s_add_u32 s{sTMP}, s{sTMP}, {p*16}
  s_lshl_b32 s{sTMP}, s{sTMP}, 2
  s_add_u32 s{sTMP}, s{sTMP}, s{sW}           ; (p*16+h)*4 + b
  s_lshl_b32 s{sTMP}, s{sTMP}, 3
  s_lshl_b32 s{sTMP+1}, s{sTMP}, 4
  s_add_u32 s{sTMP+1}, s{sTMP+1}, {WS_STAT}
  s_lshl_b32 s{sTMP+2}, s{sTMP}, 10
  s_add_u32 s{sTMP+2}, s{sTMP+2}, {WS_PART}
  s_lshr_b32 s{sTMP+3}, s2, 2
  s_and_b32 s{sTMP+3}, s{sTMP+3}, 3           ; dq
  s_lshl_b32 s{sTMP+3}, s{sTMP+3}, 8
  s_add_u32 s{sTMP+2}, s{sTMP+2}, s{sTMP+3}
  v_lshrrev_b32 v{t}, 4, v{vLANE}             ; grp
  v_and_b32 v{t+1}, 15, v{vLANE}
  v_lshlrev_b32 v{t+2}, 4, v{t}
  v_add_u32 v{t+2}, s{sTMP+1}, v{t+2}
  v_lshlrev_b32 v{t+3}, 10, v{t}
  v_lshl_add_u32 v{t+3}, v{t+1}, 4, v{t+3}
  v_add_u32 v{t+3}, s{sTMP+2}, v{t+3}
  v_add_u32 v{t+4}, 4096, v{t+3}              ; j=grp+4
  s_mov_b32 s{sTMP+4}, 0
  s_mov_b32 s{sTMP+5}, 0x0c0c0400
  s_mov_b32 s{sTMP+6}, 0x04000c0c
L_role_poll_{u}:
  global_load_dwordx4 v[{S0}:{S0+3}], v{t+2}, s[{sWS}:{sWS+1}] sc1
  global_load_dwordx4 v[{S1}:{S1+3}], v{t+2}, s[{sWS}:{sWS+1}] offset:64 sc1
  global_load_dwordx4 v[{D0}:{D0+3}], v{t+3}, s[{sWS}:{sWS+1}] sc1
  global_load_dwordx4 v[{D1}:{D1+3}], v{t+4}, s[{sWS}:{sWS+1}] sc1
  s_waitcnt vmcnt(0)
  v_perm_b32 v{t+5}, v{D0+1}, v{D0}, s{sTMP+5}      ; [b0(D0), b0(D0+1), 0, 0]
  v_perm_b32 v{t+6}, v{D0+3}, v{D0+2}, s{sTMP+6}    ; [0,0,b0(D0+2), b0(D0+3)]
  v_or_b32 v{t+5}, v{t+5}, v{t+6}
  v_perm_b32 v{t+6}, v{D1+1}, v{D1}, s{sTMP+5}
  v_perm_b32 v{t+7}, v{D1+3}, v{D1+2}, s{sTMP+6}
  v_or_b32 v{t+6}, v{t+6}, v{t+7}
  v_xor_b32 v{t+5}, s{sTB}, v{t+5}
  v_xor_b32 v{t+6}, s{sTB}, v{t+6}
  v_or_b32 v{t+5}, v{t+5}, v{t+6}
  v_xor_b32 v{t+6}, s{sT}, v{S0+1}
  v_xor_b32 v{t+7}, s{sT}, v{S1+1}
  v_or3_b32 v{t+5}, v{t+5}, v{t+6}, v{t+7}
  v_xor_b32 v{t+6}, s{sT}, v{S0+3}
  v_xor_b32 v{t+7}, s{sT}, v{S1+3}
  v_or3_b32 v{t+5}, v{t+5}, v{t+6}, v{t+7}
  v_cmp_ne_u32 vcc, 0, v{t+5}
  s_cbranch_vccz L_role_ok_{u}
""")
    spin_guard(g,sTMP+4,"L_fail")
    g(f"""
  s_sleep 1
  s_branch L_role_poll_{u}
L_role_ok_{u}:
  v_max_f32 v{t+5}, v{S0}, v{S1}
  v_mov_b32 v{t+6}, v{t+5}
  s_nop 1
  v_permlane16_swap_b32 v{t+5}, v{t+6}
  v_max_f32 v{t+5}, v{t+5}, v{t+6}
  v_mov_b32 v{t+6}, v{t+5}
  s_nop 1
  v_permlane32_swap_b32 v{t+5}, v{t+6}
  v_max_f32 v{t+5}, v{t+5}, v{t+6}            ; M
  v_sub_f32 v{S0}, v{S0}, v{t+5}
  v_sub_f32 v{S1}, v{S1}, v{t+5}
  v_exp_f32 v{S0}, v{S0}
  v_exp_f32 v{S1}, v{S1}
  s_nop 0
  v_mul_f32 v{t+5}, v{S0}, v{S0+2}
  v_fmac_f32 v{t+5}, v{S1}, v{S1+2}           ; partial L
""")
    for k in range(4):
        g(f"  v_mul_f32 v{D0+k}, v{S0}, v{D0+k}\n  v_fmac_f32 v{D0+k}, v{S1}, v{D1+k}")
    vals=[D0,D0+1,D0+2,D0+3,t+5]
    tmp=[D1,D1+1,D1+2,D1+3,t+6]
    for sw in ('v_permlane16_swap_b32','v_permlane32_swap_b32'):
        for v,w_ in zip(vals,tmp): g(f"  v_mov_b32 v{w_}, v{v}")
        g("  s_nop 1")
        for v,w_ in zip(vals,tmp): g(f"  {sw} v{v}, v{w_}")
        for v,w_ in zip(vals,tmp): g(f"  v_add_f32 v{v}, v{v}, v{w_}")
    g(f"""
  v_rcp_f32 v{t+5}, v{t+5}
  s_nop 0
  v_mul_f32 v{D0}, v{D0}, v{t+5}
  v_mul_f32 v{D0+1}, v{D0+1}, v{t+5}
  v_mul_f32 v{D0+2}, v{D0+2}, v{t+5}
  v_mul_f32 v{D0+3}, v{D0+3}, v{t+5}
  v_cvt_pk_bf16_f32 v{D0}, v{D0}, v{D0+1}
  v_cvt_pk_bf16_f32 v{D0+1}, v{D0+2}, v{D0+3}
  s_lshl_b32 s{sTMP}, s{sW}, 7
  s_add_u32 s{sTMP}, s{sTMP}, {L_OB+p*512}
  v_lshlrev_b32 v{t+1}, 3, v{t+1}
  v_add_u32 v{t+1}, s{sTMP}, v{t+1}
  ds_write_b64 v{t+1}, v[{D0}:{D0+1}]
  s_waitcnt lgkmcnt(0)
  s_barrier
  v_and_b32 v{t+1}, 3, v{vLANE}
  v_lshlrev_b32 v{t+2}, 7, v{t+1}
  v_lshl_add_u32 v{t+2}, v{t}, 4, v{t+2}
  v_add_u32 v{t+2}, {L_OB+p*512}, v{t+2}
  ds_read_b128 v[40:43], v{t+2}
  ds_read_b128 v[44:47], v{t+2} offset:64
  v_lshrrev_b32 v{t+3}, 2, v{vLANE}
  v_and_b32 v{t+3}, 3, v{t+3}
  v_lshl_add_u32 v{t+3}, v{t}, 3, v{t+3}
  v_mul_u32_u24 v{t+3}, 224, v{t+3}
  v_lshl_add_u32 v{t+3}, v{t+1}, 3, v{t+3}
  s_lshl_b32 s{sTMP}, s{sW}, 6
  s_add_u32 s{sTMP}, s{sTMP}, {L_WST+p*14336}
  v_add_u32 v{t+3}, s{sTMP}, v{t+3}
""")
    TBq=48
    for c in range(2):
        for s in range(2):
            r=TBq+8*c+4*s
            g(f"  ds_read_b64_tr_b16 v[{r}:{r+1}], v{t+3} offset:{c*32+s*32*224}")
            g(f"  ds_read_b64_tr_b16 v[{r+2}:{r+3}], v{t+3} offset:{c*32+s*32*224+4*224}")
    g("  s_waitcnt lgkmcnt(0)")
    for c in range(2):
        d=64+4*c
        g(f"  v_mfma_f32_16x16x32_bf16 v[{d}:{d+3}], v[40:43], v[{TBq+8*c}:{TBq+8*c+3}], 0")
    for c in range(2):
        d=64+4*c
        g(f"  v_mfma_f32_16x16x32_bf16 v[{d}:{d+3}], v[44:47], v[{TBq+8*c+4}:{TBq+8*c+7}], v[{d}:{d+3}]")
    g(f"""
  v_and_b32 v{t+4}, 1, v{t}
  v_cmp_eq_u32 vcc, 1, v{t+4}
  s_nop 6
  v_cndmask_b32 v64, v64, v68, vcc
  v_cndmask_b32 v65, v65, v69, vcc
  v_cndmask_b32 v66, v66, v70, vcc
  v_cndmask_b32 v67, v67, v71, vcc
  v_mov_b32 v{vX}, s{sTB}
""")
    tag_embed(g,[64,65,66,67],vX,sTMP)
    g(f"""
  s_and_b32 s{sTMP}, s2, 3
  s_add_u32 s{sTMP}, s{sTMP}, {p*4}
  s_lshl_b32 s{sTMP}, s{sTMP}, 6
  s_lshr_b32 s{sTMP+1}, s2, 2
  s_add_u32 s{sTMP}, s{sTMP}, s{sTMP+1}
  s_mul_i32 s{sTMP}, s{sTMP}, {112*16}
  s_lshl_b32 s{sTMP+1}, s{sW}, 9              ; 2w*16*16
  s_add_u32 s{sTMP}, s{sTMP}, s{sTMP+1}
  s_add_u32 s{sTMP}, s{sTMP}, {WS_Y}
  v_and_b32 v{t+5}, 15, v{vLANE}
  v_lshlrev_b32 v{t+5}, 4, v{t+5}
  v_lshl_add_u32 v{t+5}, v{t+4}, 8, v{t+5}    ; + (g&1)*256
  v_add_u32 v{t+5}, s{sTMP}, v{t+5}
  s_cmp_eq_u32 s{sW}, 3
  s_cselect_b32 s{sTMP+2}, 0xffff, -1
  s_mov_b32 s{sTMP+3}, 0
  s_mov_b64 exec, s[{sTMP+2}:{sTMP+3}]
  global_store_dwordx4 v{t+5}, v[64:67], s[{sWS}:{sWS+1}] sc1
  s_mov_b64 exec, -1
""")

def emit_final(g,o,u,update_epoch):
    t=vT
    g(f"""
  ; ---- finalizer f=s2<224 : p=f/112, r=f%112, cq=r/28, cc=(r%28)*4
  s_cmp_ge_u32 s2, 224
  s_cbranch_scc1 L_done
  s_cmp_ge_u32 s2, 112
  s_cselect_b32 s{sTMP}, 1, 0                 ; p
  s_mul_i32 s{sTMP+1}, s{sTMP}, 112
  s_sub_u32 s{sTMP+1}, s2, s{sTMP+1}          ; r
  s_mul_i32 s{sTMP+2}, s{sTMP+1}, 2341
  s_lshr_b32 s{sTMP+2}, s{sTMP+2}, 16         ; cq = r/28
  s_mul_i32 s{sTMP+3}, s{sTMP+2}, 28
  s_sub_u32 s{sTMP+3}, s{sTMP+1}, s{sTMP+3}
  s_lshl_b32 s{sTMP+3}, s{sTMP+3}, 2          ; cc
  s_lshl_b32 s{sTMP+4}, s{sTMP}, 2
  s_add_u32 s{sTMP+4}, s{sTMP+4}, s{sTMP+2}
  s_lshl_b32 s{sTMP+4}, s{sTMP+4}, 6
  s_lshl_b32 s{sTMP+5}, s{sW}, 4
  s_add_u32 s{sTMP+4}, s{sTMP+4}, s{sTMP+5}
  s_mul_i32 s{sTMP+4}, s{sTMP+4}, 1792
  s_lshl_b32 s{sTMP+5}, s{sTMP+3}, 4
  s_add_u32 s{sTMP+4}, s{sTMP+4}, s{sTMP+5}
  s_add_u32 s{sTMP+4}, s{sTMP+4}, {WS_Y}
  v_lshrrev_b32 v{t}, 2, v{vLANE}
  v_mul_u32_u24 v{t}, 1792, v{t}
  v_and_b32 v{t+1}, 3, v{vLANE}
  v_lshl_add_u32 v{t}, v{t+1}, 4, v{t}
  v_add_u32 v{t}, s{sTMP+4}, v{t}
  s_mov_b32 s{sTMP+7}, 0
  s_mov_b32 s{sTMP+5}, 0x0c0c0400
  s_mov_b32 s{sTMP+6}, 0x04000c0c
L_fin_poll_{u}:
  global_load_dwordx4 v[24:27], v{t}, s[{sWS}:{sWS+1}] sc1
  s_waitcnt vmcnt(0)
  v_perm_b32 v{t+2}, v25, v24, s{sTMP+5}
  v_perm_b32 v{t+3}, v27, v26, s{sTMP+6}
  v_or_b32 v{t+2}, v{t+2}, v{t+3}
  v_cmp_ne_u32 vcc, s{sTB}, v{t+2}
  s_cbranch_vccz L_fin_ok_{u}
""")
    spin_guard(g,sTMP+7,"L_fail")
    g(f"""
  s_sleep 1
  s_branch L_fin_poll_{u}
L_fin_ok_{u}:
""")
    for rr in (4,8):
        for k in range(4): g(f"  v_add_f32_dpp v{28+k}, v{24+k}, v{24+k} row_ror:{rr} row_mask:0xf bank_mask:0xf")
        for k in range(4): g(f"  v_mov_b32 v{24+k}, v{28+k}")
        g("  s_nop 1")
    for sw in ('v_permlane16_swap_b32','v_permlane32_swap_b32'):
        for k in range(4): g(f"  v_mov_b32 v{28+k}, v{24+k}")
        g("  s_nop 1")
        for k in range(4): g(f"  {sw} v{24+k}, v{28+k}")
        for k in range(4): g(f"  v_add_f32 v{24+k}, v{24+k}, v{28+k}")
    g(f"""
  s_lshl_b32 s{sTMP+4}, s{sW}, 6
  s_add_u32 s{sTMP+4}, s{sTMP+4}, {L_FB}
  v_lshlrev_b32 v{t+2}, 4, v{t+1}
  v_add_u32 v{t+2}, s{sTMP+4}, v{t+2}
  ds_write_b128 v{t+2}, v[24:27]
  s_waitcnt lgkmcnt(0)
  s_barrier
  s_cmp_eq_u32 s{sW}, 0
  s_cbranch_scc0 L_done
  v_lshrrev_b32 v{t+3}, 2, v{vLANE}
  v_and_b32 v{t+3}, 3, v{t+3}                 ; b
  v_lshlrev_b32 v{t+4}, 4, v{t+1}
  v_lshl_add_u32 v{t+4}, v{t+3}, 2, v{t+4}
  v_add_u32 v{t+4}, {L_FB}, v{t+4}
  ds_read_b32 v24, v{t+4}
  ds_read_b32 v25, v{t+4} offset:64
  ds_read_b32 v26, v{t+4} offset:128
  ds_read_b32 v27, v{t+4} offset:192
  s_waitcnt lgkmcnt(0)
  v_add_f32 v24, v24, v25
  v_add_f32 v26, v26, v27
  v_add_f32 v24, v24, v26
  v_cvt_pk_bf16_f32 v24, v24, v24
  s_mul_i32 s{sTMP+4}, s{sTMP}, 448
  s_mul_i32 s{sTMP+5}, s{sTMP+2}, 112
  s_add_u32 s{sTMP+4}, s{sTMP+4}, s{sTMP+5}
  s_add_u32 s{sTMP+4}, s{sTMP+4}, s{sTMP+3}
  s_lshl_b32 s{sTMP+4}, s{sTMP+4}, 1
  v_mul_u32_u24 v{t+4}, 1792, v{t+3}
  v_lshl_add_u32 v{t+4}, v{t+1}, 1, v{t+4}
  v_add_u32 v{t+4}, s{sTMP+4}, v{t+4}
  s_mov_b64 exec, 0xffff
  global_store_short v{t+4}, v24, s[{sOUT}:{sOUT+1}] {o.get('outpol','')}
  s_mov_b64 exec, -1
""")
    if update_epoch:
        g(f"""
  s_cmp_eq_u32 s2, 0
  s_cbranch_scc0 L_done
  v_mov_b32 v24, s{sT}
  v_mov_b32 v25, {WS_EPOCH}
  s_mov_b64 exec, 1
  global_store_dword v25, v24, s[{sWS}:{sWS+1}] sc1
  s_mov_b64 exec, -1
""")

def kd(name,nv,nacc,nsg=96):
    acc=(nv+3)//4*4
    return f""".p2align 6
.amdhsa_kernel {name}
  .amdhsa_next_free_vgpr {acc+nacc if nacc else nv}
  .amdhsa_next_free_sgpr {nsg}
  .amdhsa_accum_offset {acc}
  .amdhsa_group_segment_fixed_size 0
  .amdhsa_kernarg_size 104
  .amdhsa_user_sgpr_count 2
  .amdhsa_user_sgpr_kernarg_segment_ptr 1
  .amdhsa_system_sgpr_workgroup_id_x 1
  .amdhsa_float_denorm_mode_32 3
.end_amdhsa_kernel
"""
def khead(name): return f".globl {name}\n.p2align 8\n.type {name},@function\n{name}:\n"

def load_ptrs(g):
    g(f"""
  s_load_dwordx2 s[{sKA}:{sKA+1}], s[0:1], 8
  s_load_dwordx2 s[{sVA}:{sVA+1}], s[0:1], 16
  s_load_dwordx2 s[{sKB}:{sKB+1}], s[0:1], 48
  s_load_dwordx2 s[{sVB}:{sVB+1}], s[0:1], 56
  s_load_dwordx2 s[{sOUT}:{sOUT+1}], s[0:1], 80
  s_load_dwordx2 s[{sDBG}:{sDBG+1}], s[0:1], 88
  s_load_dwordx2 s[{sWS}:{sWS+1}], s[0:1], 96
  v_lshrrev_b32 v1, 6, v0
  v_and_b32 v{vLANE}, 63, v0
  s_nop 0
  v_readfirstlane_b32 s{sW}, v1
  s_lshr_b32 s{sG}, s2, 3
  s_and_b32 s{sJ}, s2, 7
  s_waitcnt lgkmcnt(0)
""")

def fail_and_done(g,name,stamps=False):
    if stamps and STAMPS:
        g(f"""
  s_branch L_done
L_fail:
  v_mov_b32 v24, 0xdead
  v_mov_b32 v25, 4
  s_mov_b64 exec, 1
  global_store_dword v25, v24, s[{sDBG}:{sDBG+1}]
  s_mov_b64 exec, -1
  s_endpgm
L_done:""")
        stamp(g,9)
        g(f"  s_mov_b32 s{sST+10}, s{sKN}")
        stamp_write(g)
        g("L_exit:\n  s_endpgm")
        return
    g(f"""
  s_branch L_done
L_fail:
  v_mov_b32 v24, 0xdead
  v_mov_b32 v25, 4
  s_mov_b64 exec, 1
  global_store_dword v25, v24, s[{sDBG}:{sDBG+1}]
  s_mov_b64 exec, -1
L_done:
L_exit:
  s_endpgm
""")

def uniq(txt,sfx):
    import re
    return re.sub(r'\b(L_[A-Za-z0-9_]+)',lambda m:m.group(1)+sfx,txt)

def k_qproj(o):
    g=G(); name='qproj_kernel'
    g("  s_cmp_ge_u32 s2, 256\n  s_cbranch_scc1 L_exit")
    load_ptrs(g); g(f"  v_mov_b32 v0, v{vLANE}")
    load_tags(g,sWS,sT,sTB,sTMP)
    emit_qproj(g,'k1',sWS,sT,'q')
    g("  s_waitcnt vmcnt(0)")
    fail_and_done(g,name)
    return khead(name)+uniq(g.text(),'_k1'), kd(name,128,0), name

def k_main(o):
    g=G(); name=KN+'_kernel' if opt(o,'single',False) else 'main_kernel'
    fuseq=opt(o,'fuseq',False); fuset=opt(o,'fuset',False); pol=o.get('pol','nt')
    size0,tab=chunk_table(o)
    g("  s_cmp_ge_u32 s2, 256\n  s_cbranch_scc1 L_exit")
    early=opt(o,'early',True) and fuseq
    pace=opt(o,'pace',8)
    if early: emit_qproj_ptrs(g)
    load_ptrs(g)
    stamp_init(g); stamp(g,0)
    g(f"""
  s_cmp_eq_u32 s{sW}, 4
  s_cbranch_scc1 L_aux
  v_and_b32 v{vOK}, 15, v{vLANE}
  v_lshlrev_b32 v{vOK}, 9, v{vOK}
  v_lshrrev_b32 v{vT}, 4, v{vLANE}
  v_lshl_add_u32 v{vOK}, v{vT}, 4, v{vOK}        ; (l&15)*512 + (l>>4)*16
  v_lshrrev_b32 v{vT}, 5, v{vLANE}
  v_lshlrev_b32 v{vT}, 12, v{vT}
  v_and_b32 v{vOV}, 31, v{vLANE}
  v_lshl_add_u32 v{vOV}, v{vOV}, 4, v{vT}        ; (l>>5)*4096 + (l&31)*16
  s_lshl_b32 s{sTMP+2}, s{sG}, 1
""")
    set_srd_head(g,sKB,sVB,sTMP+2)
    g(f"""
  s_lshl_b32 s{sOFF}, s{sJ}, 20
  s_lshl_b32 s{sTMP}, s{sW}, 18
  s_add_u32 s{sOFF}, s{sOFF}, s{sTMP}
""")
    if early: g("  s_barrier")
    emit_k_loads(g,0,pol)
    if pace<8: g(f"  s_waitcnt vmcnt({pace})")
    emit_v_loads(g,0,pol)
    g(f"  s_add_u32 s{sOFF}, s{sOFF}, 8192")
    if pace<16: g(f"  s_waitcnt vmcnt({pace})")
    emit_k_loads(g,1,pol)
    if pace<24: g(f"  s_waitcnt vmcnt({pace})")
    emit_v_loads(g,1,pol)
    g(f"""
  s_add_u32 s{sOFF}, s{sOFF}, 8192
  s_mov_b32 s{sCNT}, 30
  s_mov_b32 s{sPH}, 0
  s_mov_b32 s{sCPH}, 0
  s_mov_b32 s{sNXT}, 0
  s_mov_b32 s{sKN}, 0
  s_mov_b32 s{sTRIG}, 0
  s_mov_b32 s{sSKIP}, 1
  s_mov_b32 s{sC}, {f2h(SCALE)}
  s_mov_b32 s{sSLO}, 0x05040100
  s_mov_b32 s{sSHI}, 0x07060302
""")
    load_tags(g,sWS,sT,sTB,sTMP)
    stamp(g,1)
    g("  s_barrier")
    emit_reset_and_q(g)
    stamp(g,2)
    emit_body(g,o,0); emit_body(g,o,1)
    emit_rare(g,0); emit_rare(g,1)
    emit_flush(g,o,0); emit_flush(g,o,1)
    g("L_tail:")
    stamp(g,6)
    if fuset:
        g("  s_waitcnt vmcnt(0)")
        emit_role(g,o,1,'B'); stamp(g,7); emit_role(g,o,0,'A'); stamp(g,8); emit_final(g,o,'f',True)
        g("  s_waitcnt vmcnt(0)")
    else:
        g("  s_waitcnt vmcnt(0)")
    g("  s_branch L_done")
    g(f"""
L_aux:
  v_mov_b32 v0, v{vLANE}
""")
    if opt(o,'prio',True): g("  s_setprio 3")
    if early:
        emit_qproj_issue(g)
        b0=opt(o,'b0wait',63)
        if b0<63: g(f"  s_waitcnt vmcnt({b0})")
        g("  s_barrier")
        stamp(g,8)
    load_tags(g,sWS,sT,sTB,sTMP)
    usecnt = sum(c for c,_ in tab)>0 and not opt(o,'rr',False)
    if usecnt: g(f"""
  s_cmp_eq_u32 s{sJ}, 0
  s_cbranch_scc0 L_noinit
  s_mul_i32 s{sTMP}, s{sG}, {CNT_STRIDE}
  s_add_u32 s{sTMP}, s{sTMP}, {WS_CNT}
  v_mov_b32 v72, s{sTMP}
  v_mov_b32 v74, 0
  v_mov_b32 v75, s{sT}
  s_mov_b64 exec, 1
  global_store_dwordx2 v72, v[74:75], s[{sWS}:{sWS+1}] sc1
  s_mov_b64 exec, -1
L_noinit:
""")
    g(f"""
  v_lshlrev_b32 v76, 2, v0
  v_mov_b32 v77, 0
  v_add_u32 v78, {L_CNT}, v76
  s_mov_b64 exec, 0xffff
  ds_write_b32 v78, v77
  s_mov_b64 exec, -1
  v_mov_b32 v77, -1
  v_add_u32 v78, {L_QUEUE}, v76
  ds_write_b32 v78, v77
  ds_write_b32 v78, v77 offset:256
""")
    stamp(g,1)
    if fuseq:
        if early: emit_qproj_compute(g,'fq',sWS,sT)
        else: emit_qproj(g,'fq',sWS,sT,'q')
    stamp(g,2)
    emit_qgather(g,'m',sWS,sT,sG,"L_fail_aux")
    stamp(g,3)
    g("  s_waitcnt lgkmcnt(0)\n  s_barrier")
    if fuset: emit_wo_stage(g,'m')
    g(f"""
  s_mov_b32 s{sKN}, 1
  s_mul_i32 s{sTMP+8}, s{sG}, {CNT_STRIDE}
  s_add_u32 s{sTMP+8}, s{sTMP+8}, {WS_CNT}
  v_mov_b32 v8, s{sTMP+8}
  v_mov_b32 v9, 1
  v_mov_b32 v10, {L_CNT+12}
""")
    if usecnt:
      g(f"""
  s_mov_b32 s{sTMP+9}, 0
L_cinit:
  global_load_dwordx2 v[14:15], v8, s[{sWS}:{sWS+1}] sc1
  s_waitcnt vmcnt(0)
  v_readfirstlane_b32 s{sTMP}, v15
  s_nop 0
  s_cmp_eq_u32 s{sTMP}, s{sT}
  s_cbranch_scc1 L_cinit_ok
""")
      spin_guard(g,sTMP+9,"L_fail_aux")
      g(f"""
  s_sleep 8
  s_branch L_cinit
L_cinit_ok:
""")
    g(f"""
L_sched:
  s_mov_b32 s{sTMP+9}, 0
L_sched_poll:
  ds_read_b32 v11, v10
  s_waitcnt lgkmcnt(0)
  v_readfirstlane_b32 s{sTMP}, v11
  s_nop 0
  s_cmp_ge_u32 s{sTMP}, s{sKN}
  s_cbranch_scc1 L_sched_go
""")
    spin_guard(g,sTMP+9,"L_fail_aux",limit=1000000)
    g(f"""
  s_sleep 4
  s_branch L_sched_poll
L_sched_go:
""")
    ndyn=sum(c for c,_ in tab)
    if ndyn==0:
        g(f"  s_mov_b32 s{sTMP+1}, -2")
    else:
        if opt(o,'rr',False):
            g(f"  s_sub_u32 s{sTMP}, s{sKN}, 1\n  s_lshl_b32 s{sTMP}, s{sTMP}, 3\n  s_add_u32 s{sTMP}, s{sTMP}, s{sJ}\n  s_mov_b32 s{sTMP+1}, -2")
        else:
            g(f"""
  s_mov_b64 exec, 1
  global_atomic_add v11, v8, v9, s[{sWS}:{sWS+1}] sc0 sc1
  s_mov_b64 exec, -1
  s_waitcnt vmcnt(0)
  v_readfirstlane_b32 s{sTMP}, v11
  s_mov_b32 s{sTMP+1}, -2
""")
        cbase=0; ubase=8*size0
        for n,(cnt,sz) in enumerate(tab):
            g(f"""
  s_cmp_lt_u32 s{sTMP}, {cbase+cnt}
  s_cbranch_scc0 L_tab_{n}
  s_sub_u32 s{sTMP+2}, s{sTMP}, {cbase}
  s_mul_i32 s{sTMP+2}, s{sTMP+2}, {sz}
  s_add_u32 s{sTMP+2}, s{sTMP+2}, {ubase}
  s_lshl_b32 s{sTMP+2}, s{sTMP+2}, 8
  s_or_b32 s{sTMP+1}, s{sTMP+2}, {sz}
  s_branch L_tab_done
L_tab_{n}:""")
            cbase+=cnt; ubase+=cnt*sz
        assert ubase==256,(ubase)
        g("L_tab_done:")
    g(f"""
  s_lshl_b32 s{sTMP+2}, s{sKN}, 2
  s_add_u32 s{sTMP+2}, s{sTMP+2}, {L_QUEUE}
  v_mov_b32 v12, s{sTMP+2}
  v_mov_b32 v13, s{sTMP+1}
  ds_write_b32 v12, v13
  s_add_u32 s{sKN}, s{sKN}, 1
  s_cmp_eq_u32 s{sTMP+1}, -2
  s_cbranch_scc0 L_sched
  s_waitcnt vmcnt(0) lgkmcnt(0)
  s_branch L_done
L_fail_aux:
  v_mov_b32 v24, 0xdeae
  v_mov_b32 v25, 12
  s_mov_b64 exec, 1
  global_store_dword v25, v24, s[{sDBG}:{sDBG+1}]
  s_mov_b64 exec, -1
""")
    fail_and_done(g,name,True)
    return khead(name)+uniq(g.text(),'_m'), kd(name,NARCH,NACC), name

def k_role(o):
    g=G(); name='role_kernel'
    g("  s_cmp_ge_u32 s2, 256\n  s_cbranch_scc1 L_exit")
    load_ptrs(g)
    load_tags(g,sWS,sT,sTB,sTMP)
    g(f"  s_cmp_eq_u32 s{sW}, 0\n  s_cbranch_scc0 L_nostage\n  v_mov_b32 v0, v{vLANE}")
    emit_wo_stage(g,'r')
    g(f"  v_mov_b32 v{vLANE}, v0\n  s_waitcnt vmcnt(0)\nL_nostage:\n  s_barrier")
    emit_role(g,o,1,'B'); emit_role(g,o,0,'A')
    g("  s_waitcnt vmcnt(0)")
    fail_and_done(g,name)
    return khead(name)+uniq(g.text(),'_k3'), kd(name,NARCH,0), name

def k_final(o):
    g=G(); name='final_kernel'
    g("  s_cmp_ge_u32 s2, 256\n  s_cbranch_scc1 L_exit")
    load_ptrs(g)
    load_tags(g,sWS,sT,sTB,sTMP)
    emit_final(g,o,'f',False)
    g("  s_waitcnt vmcnt(0)")
    fail_and_done(g,name)
    return khead(name)+uniq(g.text(),'_k4'), kd(name,NARCH,0), name

HEADER=open('cdna_kernels/'+KN+'.s.ref').read().split('; Override launch geometry')[0]

def build(o):
    global STAMPS
    STAMPS=opt(o,'stamps',False)
    global WQPOL
    WQPOL=o.get('wqpol','nt')
    global WQTEST
    WQTEST=opt(o,'wqtest',0)
    fuseq=opt(o,'fuseq',False); fuset=opt(o,'fuset',False)
    single=fuseq and fuset
    o['single']=single
    ks=[]; launch=[]
    if not fuseq:
        ks.append(k_qproj(o)); launch.append(f"; @launch kernel=qproj_kernel grid=(256,1,1) block=(64,1,1) lds={LDS_SIZE}")
    m=k_main(o); ks.append(m)
    if single: launch.append(f"; @launch grid=(256,1,1) block=(320,1,1) lds={LDS_SIZE}")
    else: launch.append(f"; @launch kernel={m[2]} grid=(256,1,1) block=(320,1,1) lds={LDS_SIZE}")
    if not fuset:
        ks.append(k_role(o)); launch.append(f"; @launch kernel=role_kernel grid=(256,1,1) block=(256,1,1) lds={LDS_SIZE}")
        ks.append(k_final(o)); launch.append(f"; @launch kernel=final_kernel grid=(256,1,1) block=(256,1,1) lds={LDS_SIZE}")
    src=HEADER+"\n".join(launch)+'\n.amdgcn_target "amdgcn-amd-amdhsa--gfx950"\n.text\n'
    src+="".join(k[0] for k in ks)
    src+='.section .rodata,"a"\n'+"".join(k[1] for k in ks)
    if opt(o,'meta',False):
        src+=".amdgpu_metadata\n---\namdhsa.version: [1, 2]\namdhsa.kernels:\n"
        for k in ks:
            src+=f"  - .name: {k[2]}\n    .symbol: {k[2]}.kd\n    .kernarg_segment_size: 104\n    .kernarg_segment_align: 8\n    .group_segment_fixed_size: 0\n    .private_segment_fixed_size: 0\n    .wavefront_size: 64\n    .sgpr_count: 96\n    .vgpr_count: 256\n    .max_flat_workgroup_size: 320\n    .args:\n      - {{.name: kernargs, .size: 104, .offset: 0, .value_kind: by_value}}\n"
        src+="...\n.end_amdgpu_metadata\n"
    return src,launch

if __name__=='__main__':
    out=sys.argv[1]; o=dict(a.split('=',1) for a in sys.argv[2:])
    src,launch=build(o)
    open(out,'w').write(src)
    print("\n".join(launch))
```

```python
import sys
import gen as G1
from gen import *

L_X2=0xE200
sJOFF=31; sRET=33; sX2=34
sPHB=[35,36]; sTGT=41
CTR=L_CNT+16

def stamp(g,i): G1.stamp(g,i)

def claim(g):
    g(f"""
  v_mov_b32 v13, {CTR}
  v_mov_b32 v14, 1
  s_mov_b64 exec, 1
  ds_add_rtn_u32 v12, v13, v14
  s_mov_b64 exec, -1""")

ROT=0; sROT=42
MAP=0
def tile_off(g,si,so):
    if MAP==7:
        if ROT: g(f"  s_add_u32 s{si}, s{si}, s{sROT}\n  s_and_b32 s{si}, s{si}, 127")
        g(f"  s_lshl_b32 s{si}, s{si}, 13\n  s_add_u32 s{so}, s{si}, s{sJOFF}")
    else:
        g(f"""  s_lshr_b32 s{sTMP+1}, s{si}, {MAP}
  s_lshl_b32 s{sTMP+1}, s{sTMP+1}, {16+MAP}
  s_and_b32 s{si}, s{si}, {(1<<MAP)-1}
  s_lshl_b32 s{si}, s{si}, 13
  s_add_u32 s{so}, s{si}, s{sTMP+1}
  s_add_u32 s{so}, s{so}, s{sJOFF}""")

DYN_S=128; DYN_LC=2; DYN_LOOK=6
def decode(g,u):
    dyn = DYN_S<128
    g(f"""
  s_waitcnt lgkmcnt(0)
  v_readfirstlane_b32 s{sTMP}, v12
  s_nop 0
  s_lshr_b32 s{sTMP+1}, s{sTMP}, 7""")
    if dyn: g(f"  s_min_u32 s{sTMP+1}, s{sTMP+1}, 2")
    g(f"""
  s_cmp_eq_u32 s{sTMP+1}, s{sPH}
  s_cbranch_scc0 L_newph_{u}
L_phok_{u}:""")
    if dyn:
        g(f"""
  s_cmp_ge_u32 s{sTMP}, {256+DYN_S}
  s_cbranch_scc1 L_dyn_{u}""")
    g(f"  s_and_b32 s{sTMP}, s{sTMP}, 127")
    tile_off(g,sTMP,sOFF)
    if dyn: g(f"L_dyn_done_{u}:")

def dynpath(g,u):
    if DYN_S>=128: return
    g(f"""
L_dyn_{u}:
  s_sub_u32 s{sTMP}, s{sTMP}, {256+DYN_S}
  s_lshr_b32 s{sTMP+1}, s{sTMP}, {DYN_LC}          ; chunk k
  s_and_b32 s{sTMP}, s{sTMP}, {(1<<DYN_LC)-1}
  s_lshl_b32 s{sTMP+1}, s{sTMP+1}, 2
  s_add_u32 s{sTMP+1}, s{sTMP+1}, {L_QUEUE}
  v_mov_b32 v13, s{sTMP+1}
  s_mov_b32 s{sTMP+2}, 0
L_dyn_poll_{u}:
  ds_read_b32 v12, v13
  s_waitcnt lgkmcnt(0)
  v_readfirstlane_b32 s{sTMP+1}, v12
  s_nop 0
  s_cmp_eq_u32 s{sTMP+1}, -1
  s_cbranch_scc0 L_dyn_got_{u}
""")
    spin_guard(g,sTMP+2,"L_fail")
    if G1.STAMPS: g(f"  s_add_u32 s{G1.sST+11}, s{G1.sST+11}, 1")
    g(f"""
  s_branch L_dyn_poll_{u}
L_dyn_got_{u}:
  s_cmp_eq_u32 s{sTMP+1}, -2
  s_cbranch_scc1 L_dyn_end_{u}
  s_add_u32 s{sTMP}, s{sTMP}, s{sTMP+1}
  s_lshl_b32 s{sOFF}, s{sTMP}, 13
  s_branch L_dyn_done_{u}
L_dyn_end_{u}:
  s_mov_b32 s{sPH}, 3
  s_mov_b32 s{sK+2}, 0
  s_mov_b32 s{sV+2}, 0
  s_mov_b32 s{sOFF}, 0
  s_branch L_dyn_done_{u}""")

def newph(g,u):
    g(f"""
L_newph_{u}:
  s_mov_b32 s{sPH}, s{sTMP+1}
  s_cmp_eq_u32 s{sPH}, 1
  s_cbranch_scc0 L_np2_{u}
  s_lshl_b32 s{sTMP+2}, s{sG}, 1
  s_add_u32 s{sTMP+2}, s{sTMP+2}, 1
  s_mov_b32 s{sTMP+3}, s{sTMP}""")
    set_srd_head(g,sKB,sVB,sTMP+2)
    g(f"""
  s_mov_b32 s{sTMP}, s{sTMP+3}
  s_branch L_phok_{u}
L_np2_{u}:
  s_cmp_eq_u32 s{sPH}, 2
  s_cbranch_scc0 L_np3_{u}
  s_mov_b32 s{sTMP+3}, s{sTMP}""")
    set_srd_head(g,sKA,sVA,sG)
    g(f"""
  s_mov_b32 s{sTMP}, s{sTMP+3}
  s_branch L_phok_{u}
L_np3_{u}:
  s_mov_b32 s{sPH}, 3
  s_mov_b32 s{sK+2}, 0
  s_mov_b32 s{sV+2}, 0
  s_branch L_phok_{u}""")

def body(g,o,b,u,kwait,vwait,load,src='reg',vearly=False):
    pol=o.get('pol','nt'); t=vT
    g(f"L_body_{u}:")
    if src=='lds':
        g(f"""
  s_waitcnt vmcnt({kwait})
  v_lshlrev_b32 v13, 4, v{vLANE}
  v_add_u32 v13, s{sX2}, v13""")
        for j in range(8): g(f"  ds_read_b128 a[{aK[b]+4*j}:{aK[b]+4*j+3}], v13 offset:{j*1024}")
        for r in range(8): g(f"  ds_read_b128 v[{vV[b]+4*r}:{vV[b]+4*r+3}], v13 offset:{8192+r*1024}")
        g("  s_waitcnt lgkmcnt(0)")
    else:
        g(f"  s_waitcnt vmcnt({kwait})")
    if load is not None: claim(g)
    for j in range(8):
        c="0" if j==0 else f"v[{vS}:{vS+3}]"
        g(f"  v_mfma_f32_16x16x32_bf16 v[{vS}:{vS+3}], a[{aK[b]+4*j}:{aK[b]+4*j+3}], a[{aQ+4*j}:{aQ+4*j+3}], {c}")
    if load is not None:
        decode(g,u)
        g(f"  s_mov_b32 s{sPHB[load]}, s{sPH}")
        emit_k_loads(g,load,pol)
        if vearly: emit_v_loads(g,load,pol)
    else:
        g("  s_nop 7")
    g(f"""
  v_max3_f32 v{t}, v{vS}, v{vS+1}, v{vS+2}
  v_max_f32 v{t}, v{t}, v{vS+3}
  v_mov_b32 v{t+1}, v{t}
  s_nop 1
  v_permlane16_swap_b32 v{t}, v{t+1}
  v_max_f32 v{t}, v{t}, v{t+1}
  v_mov_b32 v{t+1}, v{t}
  s_nop 1
  v_permlane32_swap_b32 v{t}, v{t+1}
  v_max_f32 v{t}, v{t}, v{t+1}
  v_cmp_gt_f32 vcc, v{t}, v{vM}
  s_cbranch_vccnz L_rare_{u}
L_back_{u}:
  v_fma_f32 v{t+2}, v{vS}, s{sC}, -v{vMC}
  v_fma_f32 v{t+3}, v{vS+1}, s{sC}, -v{vMC}
  v_fma_f32 v{t+4}, v{vS+2}, s{sC}, -v{vMC}
  v_fma_f32 v{t+5}, v{vS+3}, s{sC}, -v{vMC}
  v_exp_f32 v{t+2}, v{t+2}
  v_exp_f32 v{t+3}, v{t+3}
  v_exp_f32 v{t+4}, v{t+4}
  v_exp_f32 v{t+5}, v{t+5}
  v_add_f32 v{t+6}, v{t+2}, v{t+3}
  v_cvt_pk_bf16_f32 v{vP}, v{t+2}, v{t+3}
  v_add_f32 v{t+7}, v{t+4}, v{t+5}
  v_cvt_pk_bf16_f32 v{vP+1}, v{t+4}, v{t+5}
  v_add_f32 v{t+6}, v{t+6}, v{t+7}
  v_mov_b32 v{vP+2}, v{vP}
  v_mov_b32 v{vP+3}, v{vP+1}
  v_add_f32 v{vL}, v{vL}, v{t+6}
  s_nop 0
  v_permlane16_swap_b32 v{vP}, v{vP+2}
  v_permlane16_swap_b32 v{vP+1}, v{vP+3}""")
    if vwait is not None: g(f"  s_waitcnt vmcnt({vwait})")
    for t2 in range(2):
        R=[vV[b]+4*(4*t2+rr) for rr in range(4)]
        for dw in range(4):
            g(f"  v_perm_b32 v{vB+4*dw}, v{R[1]+dw}, v{R[0]+dw}, s{sSLO}")
            g(f"  v_perm_b32 v{vB+4*dw+1}, v{R[3]+dw}, v{R[2]+dw}, s{sSLO}")
            g(f"  v_perm_b32 v{vB+4*dw+2}, v{R[1]+dw}, v{R[0]+dw}, s{sSHI}")
            g(f"  v_perm_b32 v{vB+4*dw+3}, v{R[3]+dw}, v{R[2]+dw}, s{sSHI}")
        for jj in range(8):
            a=vACC+4*jj
            g(f"  v_mfma_f32_4x4x4_16b_bf16 v[{a}:{a+3}], v[{vP+2*t2}:{vP+2*t2+1}], v[{vB+2*jj}:{vB+2*jj+1}], v[{a}:{a+3}]")
    if load is not None and not vearly: emit_v_loads(g,load,pol)

def rare(g,u):
    t=vT
    g(f"""
L_rare_{u}:
  v_max_f32 v{t+1}, v{t}, v{vM}
  v_sub_f32 v{t+2}, v{vM}, v{t+1}
  v_mul_f32 v{t+2}, s{sC}, v{t+2}
  v_exp_f32 v{t+2}, v{t+2}
  v_mov_b32 v{vM}, v{t+1}
  v_mul_f32 v{vMC}, s{sC}, v{t+1}
  v_mul_f32 v{vL}, v{vL}, v{t+2}
  s_nop 0
  v_mov_b32_dpp v{t+3}, v{t+2} quad_perm:[0,0,2,2] row_mask:0xf bank_mask:0xf
  v_mov_b32_dpp v{t+4}, v{t+2} quad_perm:[1,1,3,3] row_mask:0xf bank_mask:0xf
""")
    for jj in range(8):
        g(f"  v_mul_f32 v{vACC+4*jj}, v{vACC+4*jj}, v{t+3}")
        g(f"  v_mul_f32 v{vACC+4*jj+1}, v{vACC+4*jj+1}, v{t+4}")
    g(f"  s_branch L_back_{u}")

def phase_check(g,ret,deep=False):
    src = sPHB[ret] if deep else sPH
    g(f"""
  s_mov_b32 s{sTGT}, s{src}
  s_cmp_eq_u32 s{sTGT}, s{sCPH}
  s_mov_b32 s{sRET}, {ret}
  s_cbranch_scc0 L_flush""")

def reset_state(g):
    g(f"""
  v_mov_b32 v{vM}, 0xff800000
  v_mov_b32 v{vMC}, 0xff800000
  v_mov_b32 v{vL}, 0""")
    for r in range(32): g(f"  v_mov_b32 v{vACC+r}, 0")

def read_q(g):
    t=vT
    g(f"""
  v_and_b32 v{t}, 1, v{vLANE}
  s_cmp_eq_u32 s{sCPH}, 2
  s_cselect_b32 s{sTMP}, 512, 0
  v_mul_u32_u24 v{t}, s{sTMP}, v{t}
  s_lshl_b32 s{sTMP}, s{sCPH}, 9
  s_add_u32 s{sTMP}, s{sTMP}, {L_QC}
  v_add_u32 v{t}, s{sTMP}, v{t}
  v_lshrrev_b32 v{t+1}, 4, v{vLANE}
  v_lshl_add_u32 v{t}, v{t+1}, 4, v{t}
""")
    for j in range(8):
        g(f"  ds_read_b128 a[{aQ+4*j}:{aQ+4*j+3}], v{t} offset:{j*64}")
    g("  s_waitcnt lgkmcnt(0)")

def flush(g,o):
    h=G(); G1.emit_flush(h,o,0)
    txt=h.text()
    txt=txt[:txt.index("L_nomerge_b0:")].replace("L_flush_b0","L_flush").replace("L_nomerge_b0","L_nomerge").replace("L_merge_b0","L_merge")
    g(txt)
    g(f"""
L_nomerge:
  s_add_u32 s{sCPH}, s{sCPH}, 1""")
    reset_state(g)
    g(f"""
  s_cmp_lt_u32 s{sCPH}, s{sTGT}
  s_cbranch_scc1 L_flush
  s_cmp_eq_u32 s{sTGT}, 3
  s_cbranch_scc1 L_tail
  v_mov_b32 v13, {QFLAG}
  s_mov_b32 s{sTMP+2}, 0
L_qf_poll:
  ds_read_b32 v12, v13
  s_waitcnt lgkmcnt(0)
  v_readfirstlane_b32 s{sTMP}, v12
  s_nop 0
  s_cmp_eq_u32 s{sTMP}, 1
  s_cbranch_scc1 L_qf_ok""")
    spin_guard(g,sTMP+2,"L_fail")
    g("  s_branch L_qf_poll\nL_qf_ok:")
    read_q(g)
    g(f"""
  s_cmp_eq_u32 s{sRET}, 0
  s_cbranch_scc1 L_body_b0
  s_branch L_body_b1""")

QFLAG=L_CNT+20
def qgather2(g,o):
    NS=opt(o,'npoll',6); R0=8
    g(f"""
  s_lshl_b32 s44, s{sG}, 11           ; 2g*1024
  s_add_u32 s44, s44, {WS_QG}
  v_lshlrev_b32 v1, 4, v0
  v_add_u32 v1, s44, v1               ; A vectors (p=0)
  v_add_u32 v2, 0x10000, v1           ; B vectors (p=1)
  v_lshlrev_b32 v3, 3, v0
  v_add_u32 v3, {L_QC}, v3
  s_mov_b32 s45, 0""")
    for i in range(NS):
        g(f"  global_load_dwordx4 v[{R0+4*i}:{R0+4*i+3}], v2, s[{sWS}:{sWS+1}] sc1")
        if i<NS-1: g(f"  s_sleep {opt(o,'pollgap',2)}")
    g("L_qg_loop:")
    for i in range(NS):
        r=R0+4*i
        g(f"""
  s_waitcnt vmcnt({NS-1})
  v_xor_b32 v4, s{sT}, v{r+1}
  v_xor_b32 v5, s{sT}, v{r+3}
  v_or_b32 v4, v4, v5
  v_cmp_ne_u32 vcc, 0, v4
  s_cbranch_vccz L_qg_ok{i}
  global_load_dwordx4 v[{r}:{r+3}], v2, s[{sWS}:{sWS+1}] sc1""")
    spin_guard(g,45,"L_fail_aux")
    g("  s_branch L_qg_loop")
    for i in range(NS):
        r=R0+4*i
        g(f"""
L_qg_ok{i}:
  v_mov_b32 v{r+1}, v{r+2}
  ds_write_b64 v3, v[{r}:{r+1}]
  s_branch L_qg_first""")
    g("L_qg_first:")
    stamp(g,3)
    g("  s_waitcnt lgkmcnt(0)\n  s_barrier")
    g(f"""
  s_waitcnt vmcnt(0)
  s_mov_b32 s45, 0
L_qg2_poll:
  global_load_dwordx4 v[12:15], v2, s[{sWS}:{sWS+1}] offset:1024 sc1
  global_load_dwordx4 v[16:19], v1, s[{sWS}:{sWS+1}] sc1
  global_load_dwordx4 v[20:23], v1, s[{sWS}:{sWS+1}] offset:1024 sc1
  s_waitcnt vmcnt(0)
  v_xor_b32 v13, s{sT}, v13
  v_xor_b32 v15, s{sT}, v15
  v_xor_b32 v17, s{sT}, v17
  v_xor_b32 v19, s{sT}, v19
  v_xor_b32 v21, s{sT}, v21
  v_xor_b32 v23, s{sT}, v23
  v_or3_b32 v13, v13, v15, v17
  v_or3_b32 v13, v13, v19, v21
  v_or_b32 v13, v13, v23
  v_cmp_ne_u32 vcc, 0, v13
  s_cbranch_vccz L_qg2_ok""")
    spin_guard(g,45,"L_fail_aux")
    g(f"""
  s_sleep 8
  s_branch L_qg2_poll
L_qg2_ok:
  v_mov_b32 v13, v14
  v_mov_b32 v17, v18
  v_mov_b32 v21, v22
  ds_write_b64 v3, v[12:13] offset:512
  ds_write_b64 v3, v[16:17] offset:1024
  ds_write_b64 v3, v[20:21] offset:1536
  s_waitcnt lgkmcnt(0)
  v_mov_b32 v4, {QFLAG}
  v_mov_b32 v5, 1
  ds_write_b32 v4, v5""")

def sched(g):
    C=1<<DYN_LC; cpj=(128-DYN_S)//C; assert cpj*C==128-DYN_S and cpj&(cpj-1)==0
    lcpj=cpj.bit_length()-1; nch=8*cpj
    assert nch+8+4 < 128
    sKQ=62
    g(f"""
  s_mul_i32 s{sTMP+8}, s{sG}, {CNT_STRIDE}
  s_add_u32 s{sTMP+8}, s{sTMP+8}, {WS_CNT}
  v_mov_b32 v8, s{sTMP+8}
  v_mov_b32 v9, 1
  v_mov_b32 v10, {CTR}
  s_mov_b32 s{sTMP+9}, 0
L_cinit:
  global_load_dwordx2 v[14:15], v8, s[{sWS}:{sWS+1}] sc1
  s_waitcnt vmcnt(0)
  v_readfirstlane_b32 s{sTMP}, v15
  s_nop 0
  s_cmp_eq_u32 s{sTMP}, s{sT}
  s_cbranch_scc1 L_cinit_ok""")
    spin_guard(g,sTMP+9,"L_fail_aux")
    g(f"""
  s_sleep 8
  s_branch L_cinit
L_cinit_ok:
  s_mov_b32 s{sKQ}, 0
  s_mov_b32 s{sKQ+1}, {256+DYN_S-DYN_LOOK}
L_sched:
  s_mov_b32 s{sTMP+9}, 0
L_sched_poll:
  ds_read_b32 v11, v10
  s_waitcnt lgkmcnt(0)
  v_readfirstlane_b32 s{sTMP}, v11
  s_nop 0
  s_cmp_ge_u32 s{sTMP}, s{sKQ+1}
  s_cbranch_scc1 L_sched_go""")
    spin_guard(g,sTMP+9,"L_fail_aux",limit=1000000)
    g(f"""
  s_sleep 2
  s_branch L_sched_poll
L_sched_go:
  s_mov_b64 exec, 1
  global_atomic_add v11, v8, v9, s[{sWS}:{sWS+1}] sc0 sc1
  s_mov_b64 exec, -1
  s_waitcnt vmcnt(0)
  v_readfirstlane_b32 s{sTMP}, v11
  s_lshl_b32 s{sTMP+3}, s{sKQ}, 2
  s_add_u32 s{sTMP+3}, s{sTMP+3}, {L_QUEUE}
  v_mov_b32 v12, s{sTMP+3}
  s_cmp_lt_u32 s{sTMP}, {nch}
  s_cbranch_scc0 L_sched_end
  s_lshr_b32 s{sTMP+1}, s{sTMP}, {lcpj}        ; j'
  s_lshl_b32 s{sTMP+1}, s{sTMP+1}, 7
  s_and_b32 s{sTMP+2}, s{sTMP}, {cpj-1}
  s_lshl_b32 s{sTMP+2}, s{sTMP+2}, {DYN_LC}
  s_add_u32 s{sTMP+1}, s{sTMP+1}, s{sTMP+2}
  s_add_u32 s{sTMP+1}, s{sTMP+1}, {DYN_S}
  v_mov_b32 v13, s{sTMP+1}
  ds_write_b32 v12, v13
  s_add_u32 s{sKQ}, s{sKQ}, 1
  s_add_u32 s{sKQ+1}, s{sKQ+1}, {C}
  s_branch L_sched
L_sched_end:
  v_mov_b32 v13, -2
  ds_write_b32 v12, v13
  ds_write_b32 v12, v13 offset:4
  ds_write_b32 v12, v13 offset:8
  ds_write_b32 v12, v13 offset:12
  ds_write_b32 v12, v13 offset:16
  s_mov_b32 s34, s{sKQ}""")

def tags_from_epoch(g):
    h=G(); load_tags(h,sWS,sT,sTB,sTMP); L=h.text().split('\n')
    L=[l for l in L if 's_load_dword' not in l]
    g("\n".join(L))

def k_main2(o):
    g=G(); name=KN+'_kernel'
    pol=o.get('pol','nt'); pace=opt(o,'pace',32); extra=opt(o,'extra',False); vearly=opt(o,'vearly',o.get('sched','s2')=='s2')
    g("  s_cmp_ge_u32 s2, 256\n  s_cbranch_scc1 L_exit")
    emit_qproj_ptrs(g)
    load_ptrs(g)
    G1.stamp_init(g); stamp(g,0)
    g(f"  s_load_dword s{sT}, s[{sWS}:{sWS+1}], {WS_EPOCH}")
    g(f"""
  s_cmp_eq_u32 s{sW}, 4
  s_cbranch_scc1 L_aux
  v_and_b32 v{vOK}, 15, v{vLANE}
  v_lshlrev_b32 v{vOK}, 9, v{vOK}
  v_lshrrev_b32 v{vT}, 4, v{vLANE}
  v_lshl_add_u32 v{vOK}, v{vT}, 4, v{vOK}        ; (l&15)*512 + (l>>4)*16
  v_lshrrev_b32 v{vT}, 5, v{vLANE}
  v_lshlrev_b32 v{vT}, 12, v{vT}
  v_and_b32 v{vOV}, 31, v{vLANE}
  v_lshl_add_u32 v{vOV}, v{vOV}, 4, v{vT}        ; (l>>5)*4096 + (l&31)*16
  s_lshl_b32 s{sTMP+2}, s{sG}, 1
""")
    set_srd_head(g,sKB,sVB,sTMP+2)
    g(f"""
  s_lshl_b32 s{sJOFF}, s{sJ}, {13+MAP}
  s_mul_i32 s{sROT}, s2, {ROT}
  s_mov_b32 s{sTMP}, s{sW}""")
    tile_off(g,sTMP,sOFF)
    g(f"""
  s_lshl_b32 s{sX2}, s{sW}, 14
  s_add_u32 s{sX2}, s{sX2}, {L_X2}
  s_barrier
""")
    def pw(n):
        if pace<n: g(f"  s_waitcnt vmcnt({pace})")
    emit_k_loads(g,0,pol); pw(8); emit_v_loads(g,0,pol)
    g(f"  s_add_u32 s{sTMP}, s{sW}, 4"); tile_off(g,sTMP,sOFF)
    pw(16); emit_k_loads(g,1,pol); pw(24); emit_v_loads(g,1,pol)
    if extra:
        g(f"  s_add_u32 s{sTMP}, s{sW}, 8"); tile_off(g,sTMP,sOFF)
        pw(32)
        for j in range(8):
            g(f"  s_add_u32 m0, s{sX2}, {j*1024-j*64}\n  s_nop 0\n  buffer_load_dwordx4 v{vOK}, s[{sK}:{sK+3}], s{sOFF} offen offset:{j*64} {pol} lds")
        pw(40)
        for r in range(8):
            g(f"  s_add_u32 m0, s{sX2}, {8192+r*1024-r*512}\n  s_nop 0\n  buffer_load_dwordx4 v{vOV}, s[{sV}:{sV+3}], s{sOFF} offen offset:{r*512} {pol} lds")
    g(f"""
  s_mov_b32 s{sPH}, 0
  s_mov_b32 s{sCPH}, 0
  s_mov_b32 s{sC}, {f2h(SCALE)}
  s_mov_b32 s{sSLO}, 0x05040100
  s_mov_b32 s{sSHI}, 0x07060302
""")
    tags_from_epoch(g)
    reset_state(g)
    stamp(g,1)
    g("  s_barrier")
    read_q(g)
    stamp(g,2)
    deep=o.get('sched','s2')=='s3'
    if deep:
        g(f"  s_mov_b32 s{sPHB[0]}, 0\n  s_mov_b32 s{sPHB[1]}, 0")
        body(g,o,0,'b0',24,24,0); phase_check(g,1,True)
        body(g,o,1,'b1',24,24,1); phase_check(g,0,True)
        g("  s_branch L_body_b0")
    else:
        if extra:
            body(g,o,0,'s0',40,40,0)
            body(g,o,1,'s1',40,32,None)
            body(g,o,1,'s2',16,None,None,src='lds')
            phase_check(g,0)
            g("  s_branch L_body_b0")
        else:
            body(g,o,0,'s0',24,24,0)
            body(g,o,1,'s1',24,16,None)
            phase_check(g,0)
            g("  s_branch L_body_b0")
        body(g,o,0,'b0',8,16 if vearly else 8,1,vearly=vearly); phase_check(g,1)
        body(g,o,1,'b1',8,16 if vearly else 8,0,vearly=vearly); phase_check(g,0)
        g("  s_branch L_body_b0")
    us=([] if deep else ['s0','s1']+(['s2'] if extra else []))+['b0','b1']
    for u in us: rare(g,u)
    for u in ([] if deep else ['s0'])+['b0','b1']: newph(g,u); dynpath(g,u)
    flush(g,o)
    g("L_tail:")
    stamp(g,6)
    if opt(o,'tailwait',False): g("  s_waitcnt vmcnt(0)")
    emit_role(g,o,1,'B'); stamp(g,7); emit_role(g,o,0,'A'); stamp(g,8); emit_final(g,o,'f',True)
    g("  s_waitcnt vmcnt(0)")
    g("  s_branch L_done")
    g(f"""
L_aux:
  v_mov_b32 v0, v{vLANE}
  s_setprio 3""")
    emit_qproj_issue(g)
    b0=opt(o,'b0wait',63)
    if b0<63: g(f"  s_waitcnt vmcnt({b0})")
    g("  s_barrier")
    stamp(g,8)
    tags_from_epoch(g)
    if DYN_S<128:
        g(f"""
  v_lshlrev_b32 v76, 2, v0
  v_mov_b32 v77, -1
  v_add_u32 v78, {L_QUEUE}, v76
  ds_write_b32 v78, v77
  ds_write_b32 v78, v77 offset:256""")
    g(f"""
  v_lshlrev_b32 v76, 2, v0
  v_mov_b32 v77, 0
  v_add_u32 v78, {L_CNT}, v76
  s_mov_b64 exec, 0xffff
  ds_write_b32 v78, v77
  s_mov_b64 exec, -1
  s_waitcnt lgkmcnt(0)
  v_mov_b32 v77, {12 if extra else 8}
  v_mov_b32 v78, {CTR}
  ds_write_b32 v78, v77
""")
    stamp(g,1)
    emit_qproj_compute(g,'fq',sWS,sT)
    stamp(g,2)
    if opt(o,'qg2',True): qgather2(g,o)
    else:
        emit_qgather(g,'m',sWS,sT,sG,"L_fail_aux")
        stamp(g,3)
        g(f"  v_mov_b32 v4, {QFLAG}\n  v_mov_b32 v5, 1\n  ds_write_b32 v4, v5\n  s_waitcnt lgkmcnt(0)\n  s_barrier")
    if DYN_S<128:
        g(f"""
  s_cmp_eq_u32 s{sJ}, 0
  s_cbranch_scc0 L_noinit
  s_mul_i32 s{sTMP}, s{sG}, {CNT_STRIDE}
  s_add_u32 s{sTMP}, s{sTMP}, {WS_CNT}
  v_mov_b32 v72, s{sTMP}
  v_mov_b32 v74, 0
  v_mov_b32 v75, s{sT}
  s_mov_b64 exec, 1
  global_store_dwordx2 v72, v[74:75], s[{sWS}:{sWS+1}] sc1
  s_mov_b64 exec, -1
L_noinit:""")
    wolate=opt(o,'wolate',False) and DYN_S<128
    if not wolate: emit_wo_stage(g,'m')
    if DYN_S<128: sched(g)
    if wolate: emit_wo_stage(g,'m')
    g(f"""
  s_waitcnt vmcnt(0) lgkmcnt(0)
  s_branch L_done
L_fail_aux:
  v_mov_b32 v24, 0xdeae
  v_mov_b32 v25, 12
  s_mov_b64 exec, 1
  global_store_dword v25, v24, s[{sDBG}:{sDBG+1}]
  s_mov_b64 exec, -1
""")
    if opt(o,'dbgst',False):
        h=G(); fail_and_done(h,name,False); t=h.text()
        extra_code=f"""L_done:
  s_memrealtime s[80:81]
  s_waitcnt lgkmcnt(0)
  s_mov_b32 s73, s80
  s_cmp_eq_u32 s{sW}, 0
  s_cbranch_scc0 L_exit
  s_not_b32 s80, s64
  v_mov_b32 v24, 0
  v_mov_b32 v25, s80
  s_mov_b64 exec, 1
  global_atomic_umax v24, v25, s[{sDBG}:{sDBG+1}] sc1
"""
        for k,slot in ((2,1),(3,2),(4,3),(5,4),(9,5)):
            extra_code+=f"  v_mov_b32 v25, s{64+k}\n  global_atomic_umax v24, v25, s[{sDBG}:{sDBG+1}] offset:{4*slot} sc1\n"
            extra_code+=f"  s_sub_u32 s80, s{64+k}, s64\n  v_mov_b32 v26, s80\n  global_atomic_add v24, v26, s[{sDBG}:{sDBG+1}] offset:{4*(slot+7)} sc1\n"
        extra_code+="  s_waitcnt vmcnt(0)\n  s_mov_b64 exec, -1\n"
        t=t.replace("L_done:\n",extra_code)
        g(t)
    else:
        fail_and_done(g,name,True)
    lds = L_X2+65536 if extra else LDS_SIZE
    return khead(name)+uniq(g.text(),'_m'), kd(name,NARCH,NACC), name, lds

def build2(o):
    global MAP, DYN_S, DYN_LC, DYN_LOOK
    DYN_S=opt(o,'dyns',128); DYN_LC=opt(o,'dynlc',2); DYN_LOOK=opt(o,'look',6)
    MAP=opt(o,'map',7)
    global ROT
    ROT=opt(o,'rot',0)
    G1.STAMPS=opt(o,'stamps',False); G1.WQPOL=o.get('wqpol','nt'); G1.WQTEST=0; G1.WQROT=opt(o,'wqrot',0)
    k=k_main2(o)
    src=HEADER+f"; @launch grid=(256,1,1) block=(320,1,1) lds={k[3]}"+'\n.amdgcn_target "amdgcn-amd-amdhsa--gfx950"\n.text\n'
    src+=k[0]+'.section .rodata,"a"\n'+k[1]
    if opt(o,'meta',False):
        src+=".amdgpu_metadata\n---\namdhsa.version: [1, 2]\namdhsa.kernels:\n"
        src+=f"  - .name: {k[2]}\n    .symbol: {k[2]}.kd\n    .kernarg_segment_size: 104\n    .kernarg_segment_align: 8\n    .group_segment_fixed_size: 0\n    .private_segment_fixed_size: 0\n    .wavefront_size: 64\n    .sgpr_count: 96\n    .vgpr_count: 256\n    .max_flat_workgroup_size: 320\n    .args:\n      - {{.name: kernargs, .size: 104, .offset: 0, .value_kind: by_value}}\n"
        src+="...\n.end_amdgpu_metadata\n"
    return src
if __name__=='__main__':
    out=sys.argv[1]; o=dict(a.split('=',1) for a in sys.argv[2:])
    open(out,'w').write(build2(o))
```

```python
import sys, struct, math
KN='concat_heads__gqa_block_cached__mha_block_cached__decode'
def f2h(x): return "0x%08x"%struct.unpack('<I',struct.pack('<f',x))[0]

WS_EPOCH=0x0
WS_QG=0x1000
WS_STAT=0x22000
WS_PART=0x40000
WS_Y=0x140000
WS_CNT=0x240000
CNT_STRIDE=4352
WS_STAMP=0x300000
WS_SIZE=0x400000
L_WST=0x0000
L_QC=0x7000
L_FL=0x7800
L_ST=0xD800
L_CNT=0xD900
L_QUEUE=0xDA00
L_OB=0xDC00
L_FB=0xE000
LDS_SIZE=0xE200
SCALE=math.log2(math.e)/16.0

class G:
    def __init__(s): s.L=[]
    def __call__(s,txt):
        for l in txt.strip('\n').split('\n'): s.L.append(l)
    def text(s): return "\n".join(s.L)+"\n"

def opt(o,k,d):
    v=o.get(k,d)
    return type(d)(v) if not isinstance(d,bool) else (str(v).lower() in('1','true','yes'))

def load_tags(g, sWS, sT, sTB, tmp):
    g(f"""
  s_load_dword s{sT}, s[{sWS}:{sWS+1}], {WS_EPOCH}
  s_waitcnt lgkmcnt(0)
  s_add_u32 s{sT}, s{sT}, 1
  s_and_b32 s{tmp}, s{sT}, 0xff
  s_add_u32 s{sTB}, s{tmp}, 0x35
  s_and_b32 s{sTB}, s{sTB}, 0xff
  s_lshl_b32 s{sTB}, s{sTB}, 8
  s_or_b32 s{sTB}, s{sTB}, s{tmp}
  s_add_u32 s{tmp+1}, s{tmp}, 0x6b
  s_and_b32 s{tmp+1}, s{tmp+1}, 0xff
  s_lshl_b32 s{tmp+1}, s{tmp+1}, 16
  s_or_b32 s{sTB}, s{sTB}, s{tmp+1}
  s_add_u32 s{tmp+1}, s{tmp}, 0xa1
  s_lshl_b32 s{tmp+1}, s{tmp+1}, 24
  s_or_b32 s{sTB}, s{sTB}, s{tmp+1}
""")

STAMPS=False
RQ=2; RO=2
TAILST=False
WQPOL='nt'
WOPOL='nt'
WQTEST=0
WQROT=0
sST=64
def stamp(g,idx,cond_phase=False):
    if not STAMPS: return
    g(f"  s_memrealtime s[80:81]\n  s_waitcnt lgkmcnt(0)\n  s_mov_b32 s{sST+idx}, s80")
def stamp_init(g):
    if not STAMPS: return
    for i in range(16): g(f"  s_mov_b32 s{sST+i}, 0")
def stamp_write(g,nwaves=5):
    if not STAMPS: return
    g(f"""
  s_getreg_b32 s{sST+15}, hwreg(HW_REG_XCC_ID)
  s_mul_i32 s80, s2, {nwaves}
  s_add_u32 s80, s80, s{sW}
  s_lshl_b32 s80, s80, 6
  s_add_u32 s80, s80, {WS_STAMP}
  v_mov_b32 v25, s80""")
    for q in range(4):
        for i in range(4): g(f"  v_mov_b32 v{28+i}, s{sST+4*q+i}")
        g(f"  s_mov_b64 exec, 1\n  global_store_dwordx4 v25, v[28:31], s[{sWS}:{sWS+1}] offset:{16*q}\n  s_mov_b64 exec, -1\n  s_nop 1")
    g("  s_waitcnt vmcnt(0)")

def spin_guard(g, sCnt, lbl_fail, limit=200000):
    g(f"""
  s_add_u32 s{sCnt}, s{sCnt}, 1
  s_cmp_gt_u32 s{sCnt}, {limit}
  s_cbranch_scc1 {lbl_fail}
""")

def emit_qproj_ptrs(g):
    g(f"""
  s_lshr_b32 s44, s2, 7
  s_mul_i32 s45, s44, 40
  s_add_u32 s46, s0, s45
  s_addc_u32 s47, s1, 0
  s_load_dwordx2 s[48:49], s[46:47], 0     ; x
  s_load_dwordx2 s[52:53], s[46:47], 24    ; wq
""")
def emit_qproj(g, u, sWS, sT, lbl):
    emit_qproj_ptrs(g); g("  s_waitcnt lgkmcnt(0)")
    emit_qproj_issue(g); emit_qproj_compute(g,u,sWS,sT)
def emit_qproj_issue(g):
    g(f"""
  v_lshrrev_b32 v1, 2, v0
  v_lshlrev_b32 v1, 13, v1            ; (l>>2)*8192
  v_and_b32 v2, 3, v0
  v_lshlrev_b32 v3, 4, v2             ; (l&3)*16
  v_add_u32 v1, v1, v3
  v_mul_u32_u24 v4, 896, v2           ; (l&3)*896
  v_lshrrev_b32 v5, 4, v0             ; g
  v_lshlrev_b32 v6, 4, v5             ; g*16
  v_add_u32 v4, v4, v6
  s_and_b32 s45, s{RQ}, 127
  s_lshl_b32 s45, s45, 6
  s_and_b32 s49, s49, 0xffff
  s_mov_b32 s50, 3584
  s_mov_b32 s51, 0x20000
  s_and_b32 s53, s53, 0xffff
  s_mov_b32 s54, 3670016
  s_mov_b32 s55, 0x20000
  s_mov_b32 m0, {L_WST}
  s_nop 0
""")
    XA=16
    if WQTEST==1:
        g("  v_lshlrev_b32 v1, 4, v0\n  s_and_b32 s45, s2, 127\n  s_mul_i32 s45, s45, 28672")
    if WQTEST==2:
        g("  v_lshrrev_b32 v1, 5, v0\n  v_lshlrev_b32 v1, 13, v1\n  v_and_b32 v7, 31, v0\n  v_lshl_add_u32 v1, v7, 4, v1\n  s_and_b32 s45, s2, 7\n  s_mul_i32 s45, s45, 458752\n  s_lshr_b32 s44, s2, 3\n  s_and_b32 s44, s44, 15\n  s_lshl_b32 s44, s44, 9\n  s_add_u32 s45, s45, s44")
    for s_ in range(14):
        g(f"  buffer_load_dwordx4 v[{XA+4*s_}:{XA+4*s_+3}], v4, s[48:51], 0 offen offset:{s_*64}")
    if WQROT:
        g(f"""  s_mul_i32 s56, s2, {WQROT}
  s_mul_hi_u32 s57, s56, 0x9249250
  s_mul_i32 s57, s57, 28
  s_sub_u32 s56, s56, s57
  s_cmp_ge_u32 s56, 28
  s_cselect_b32 s57, 28, 0
  s_sub_u32 s56, s56, s57""")
        for ld in range(28):
            g(f"""  s_lshl_b32 s57, s56, 17
  s_add_u32 s57, s57, s45
  s_lshl_b32 s58, s56, 10
  s_add_u32 m0, s58, {L_WST}
  s_add_u32 s56, s56, 1
  buffer_load_dwordx4 v1, s[52:55], s57 offen {WQPOL} lds
  s_cmp_eq_u32 s56, 28
  s_cselect_b32 s56, 0, s56""")
    else:
      for ld in range(28):
        g(f"  buffer_load_dwordx4 v1, s[52:55], s45 offen {WQPOL} lds")
        if ld<27:
            g(f"  s_add_u32 s45, s45, {[16*8192,1024,2*8192][WQTEST]}\n  s_add_u32 m0, m0, 1024\n  s_nop 0")
    stamp(g,7)
def emit_qproj_compute(g,u,sWS,sT):
    XA=16
    g(f"""
  v_lshrrev_b32 v6, 2, v0
  v_and_b32 v6, 3, v6
  v_lshl_add_u32 v6, v5, 3, v6        ; 8g + r
  v_lshlrev_b32 v6, 6, v6
  v_lshl_add_u32 v6, v2, 3, v6
  v_add_u32 v6, {L_WST}, v6
  s_waitcnt vmcnt(0)
""")
    stamp(g,4)
    TB=72
    first=True
    for batch in range(2):
        for ss in range(7):
            s=batch*7+ss
            for cb in range(2):
                r=TB+8*ss+4*cb
                g(f"  ds_read_b64_tr_b16 v[{r}:{r+1}], v6 offset:{s*2048+cb*32}")
                g(f"  ds_read_b64_tr_b16 v[{r+2}:{r+3}], v6 offset:{s*2048+cb*32+256}")
        g("  s_waitcnt lgkmcnt(0)")
        for ss in range(7):
            s=batch*7+ss
            for cb in range(2):
                r=TB+8*ss+4*cb; d=8+4*cb
                c = "0" if s==0 else f"v[{d}:{d+3}]"
                g(f"  v_mfma_f32_16x16x32_bf16 v[{d}:{d+3}], v[{XA+4*s}:{XA+4*s+3}], v[{r}:{r+3}], {c}")
    g(f"""
  s_nop 7
  v_cmp_eq_u32 vcc, 1, v5
  v_cmp_eq_u32 s[56:57], 2, v5
  v_cmp_eq_u32 s[58:59], 3, v5
  s_nop 1
  v_cndmask_b32 v8, v8, v9, vcc
  v_cndmask_b32 v12, v12, v13, vcc
  v_cndmask_b32 v8, v8, v10, s[56:57]
  v_cndmask_b32 v12, v12, v14, s[56:57]
  v_cndmask_b32 v8, v8, v11, s[58:59]
  v_cndmask_b32 v12, v12, v15, s[58:59]
  v_and_b32 v7, 1, v0                 ; parity
  v_cmp_eq_u32 vcc, 0, v7
  v_mov_b32 v9, 0
  v_mov_b32 v13, 0
  s_nop 1
  v_mov_b32_dpp v9, v8 row_shl:1 row_mask:0xf bank_mask:0xf     ; val0[n+1]
  v_mov_b32_dpp v13, v12 row_shr:1 row_mask:0xf bank_mask:0xf   ; val1[n-1]
  s_nop 1
  v_cndmask_b32 v10, v13, v8, vcc
  v_cndmask_b32 v11, v12, v9, vcc
  v_cvt_pk_bf16_f32 v10, v10, v11
  v_mov_b32 v11, s{sT}
  s_lshr_b32 s44, s{RQ}, 7
  s_lshl_b32 s44, s44, 16             ; p*4*16*1024
  s_lshr_b32 s45, s{RQ}, 3
  s_and_b32 s45, s45, 15
  s_lshl_b32 s45, s45, 10             ; hq*1024
  s_add_u32 s44, s44, s45
  s_and_b32 s45, s{RQ}, 7
  s_lshl_b32 s45, s45, 7              ; ds*16*8
  s_add_u32 s44, s44, s45
  s_add_u32 s44, s44, {WS_QG}
  v_lshlrev_b32 v12, 14, v5           ; b*16*1024
  v_lshlrev_b32 v13, 6, v7            ; cb*8*8
  v_add_u32 v12, v12, v13
  v_and_b32 v13, 15, v0
  v_lshrrev_b32 v13, 1, v13
  v_lshl_add_u32 v12, v13, 3, v12
  v_add_u32 v12, s44, v12
  global_store_dwordx2 v12, v[10:11], s[{sWS}:{sWS+1}] sc1
""")

def emit_qgather(g, u, sWS, sT, sG, lblfail):
    g(f"""
  s_lshl_b32 s44, s{sG}, 11           ; 2g*1024
  s_add_u32 s44, s44, {WS_QG}
  v_lshlrev_b32 v1, 4, v0
  v_add_u32 v1, s44, v1               ; A vectors (p=0)
  v_add_u32 v2, 0x10000, v1           ; B vectors (p=1)
  s_mov_b32 s45, 0
L_qg_poll_{u}:
  global_load_dwordx4 v[8:11], v2, s[{sWS}:{sWS+1}] sc1
  global_load_dwordx4 v[12:15], v2, s[{sWS}:{sWS+1}] offset:1024 sc1
  global_load_dwordx4 v[16:19], v1, s[{sWS}:{sWS+1}] sc1
  global_load_dwordx4 v[20:23], v1, s[{sWS}:{sWS+1}] offset:1024 sc1
  s_waitcnt vmcnt(0)
""")
    if STAMPS:
        g(f"  s_add_u32 s{sST+5}, s{sST+5}, 1\n  s_cmp_eq_u32 s{sST+5}, 1\n  s_cbranch_scc0 L_qst_{u}")
        stamp(g,6)
        g(f"L_qst_{u}:")
    g(f"""
  v_xor_b32 v9, s{sT}, v9
  v_xor_b32 v11, s{sT}, v11
  v_xor_b32 v13, s{sT}, v13
  v_xor_b32 v15, s{sT}, v15
  v_xor_b32 v17, s{sT}, v17
  v_xor_b32 v19, s{sT}, v19
  v_xor_b32 v21, s{sT}, v21
  v_xor_b32 v23, s{sT}, v23
  v_or3_b32 v9, v9, v11, v13
  v_or3_b32 v15, v15, v17, v19
  v_or3_b32 v9, v9, v21, v23
  v_or_b32 v9, v9, v15
  v_cmp_ne_u32 vcc, 0, v9
  s_cbranch_vccz L_qg_ok_{u}
""")
    spin_guard(g,45,lblfail)
    g(f"""
  s_sleep 2
  s_branch L_qg_poll_{u}
L_qg_ok_{u}:
  v_lshlrev_b32 v3, 3, v0
  v_add_u32 v3, {L_QC}, v3
  v_mov_b32 v9, v10
  v_mov_b32 v13, v14
  v_mov_b32 v17, v18
  v_mov_b32 v21, v22
  ds_write_b64 v3, v[8:9]
  ds_write_b64 v3, v[12:13] offset:512
  ds_write_b64 v3, v[16:17] offset:1024
  ds_write_b64 v3, v[20:21] offset:1536
""")

def emit_wo_stage(g, u, which=(0,1)):
    g(f"""
  s_load_dwordx2 s[48:49], s[0:1], 32
  s_load_dwordx2 s[52:53], s[0:1], 72
  s_lshr_b32 s44, s{RO}, 2               ; h*4+dq
  s_mul_i32 s44, s44, {64*896}
  s_and_b32 s45, s{RO}, 3
  s_mul_i32 s45, s45, 224
  s_add_u32 s44, s44, s45
  ; per lane: c = lane ; row = c/14, chunk = c%14
  v_mul_u32_u24 v2, 4682, v0          ; c*4682 >> 16 = c/14 for c<64
  v_lshrrev_b32 v2, 16, v2            ; row
  v_mul_u32_u24 v3, 14, v2
  v_sub_u32 v3, v0, v3                ; chunk
  s_waitcnt lgkmcnt(0)
  s_and_b32 s49, s49, 0xffff
  s_mov_b32 s50, 3670016
  s_mov_b32 s51, 0x20000
  s_and_b32 s53, s53, 0xffff
  s_mov_b32 s54, 3670016
  s_mov_b32 s55, 0x20000
""")
    for ld in range(14):
        g(f"""
  v_mul_u32_u24 v4, 896, v2
  v_lshl_add_u32 v4, v3, 4, v4""")
        if 0 in which: g(f"""  s_mov_b32 m0, {L_WST+ld*1024}
  s_nop 0
  buffer_load_dwordx4 v4, s[48:51], s44 offen {WOPOL} lds""")
        if 1 in which: g(f"""  s_mov_b32 m0, {L_WST+14336+ld*1024}
  s_nop 0
  buffer_load_dwordx4 v4, s[52:55], s44 offen {WOPOL} lds""")
        if ld<13:
            g(f"""
  v_add_u32 v3, 8, v3
  v_add_u32 v2, 4, v2
  v_cmp_le_u32 vcc, 14, v3
  v_subrev_u32 v5, 14, v3
  v_add_u32 v6, 1, v2
  v_cndmask_b32 v3, v3, v5, vcc
  v_cndmask_b32 v2, v2, v6, vcc""")

sW=3; SW_=3; sG=4; sJ=5; sT=6; sTB=7
sK=8
sV=12
sKA=16; sVA=18; sKB=20; sVB=22; sWS=24; sDBG=26; sOUT=28
sOFF=30; sCNT=31; sPH=32; sNXT=33; sKN=34; sTRIG=35; sSKIP=36; sCPH=37
sC=38; sSLO=39; sSHI=40
sTMP=44
sERR=60
vOK=1; vOV=2; vM=3; vMC=4; vL=5; vLANE=6; vX=7
vS=8; vT=12; vP=20; vB=24; vACC=40; vV=[72,104]
NARCH=136
aK=[0,32]; aQ=64
NACC=96

def chunk_table(o):
    tab=o.get('tab','dyn')
    if tab=='static': return 32, []
    if tab=='dyn': return 12, [(8,8),(8,5),(8,3),(8,2),(16,1)]
    a,b=tab.split(':'); lst=[tuple(int(x) for x in t.split('x')) for t in b.split(',')] if b else []
    return int(a), lst

def emit_k_loads(g,buf,pol):
    for j in range(8):
        r=aK[buf]+4*j
        g(f"  buffer_load_dwordx4 a[{r}:{r+3}], v{vOK}, s[{sK}:{sK+3}], s{sOFF} offen offset:{j*64} {pol}")
def emit_v_loads(g,buf,pol):
    for r8 in range(8):
        r=vV[buf]+4*r8
        g(f"  buffer_load_dwordx4 v[{r}:{r+3}], v{vOV}, s[{sV}:{sV+3}], s{sOFF} offen offset:{r8*512} {pol}")

def set_srd_head(g, sKp, sVp, sIdx):
    g(f"""
  s_lshl_b32 s{sTMP}, s{sIdx}, 23
  s_lshr_b32 s{sTMP+1}, s{sIdx}, 9
  s_add_u32 s{sK}, s{sKp}, s{sTMP}
  s_addc_u32 s{sK+1}, s{sKp+1}, s{sTMP+1}
  s_and_b32 s{sK+1}, s{sK+1}, 0xffff
  s_add_u32 s{sV}, s{sVp}, s{sTMP}
  s_addc_u32 s{sV+1}, s{sVp+1}, s{sTMP+1}
  s_and_b32 s{sV+1}, s{sV+1}, 0xffff
  s_mov_b32 s{sK+2}, 0x800000
  s_mov_b32 s{sV+2}, 0x800000
  s_mov_b32 s{sK+3}, 0x20000
  s_mov_b32 s{sV+3}, 0x20000
""")

def emit_advance(g,o,u):
    size0,tab=chunk_table(o)
    g(f"""
  s_cmp_eq_u32 s{sPH}, 2
  s_cbranch_scc1 L_adv_dyn_{u}
  s_add_u32 s{sPH}, s{sPH}, 1
  s_mov_b32 s{sNXT}, 1
  s_cmp_eq_u32 s{sPH}, 2
  s_cbranch_scc1 L_adv_p2_{u}
  s_lshl_b32 s{sTMP+2}, s{sG}, 1
  s_add_u32 s{sTMP+2}, s{sTMP+2}, 1
""")
    set_srd_head(g,sKB,sVB,sTMP+2)
    g(f"""
  s_lshl_b32 s{sOFF}, s{sJ}, 20
  s_lshl_b32 s{sTMP}, s{sW}, 18
  s_add_u32 s{sOFF}, s{sOFF}, s{sTMP}
  s_mov_b32 s{sCNT}, 32
  s_branch L_adv_done_{u}
L_adv_p2_{u}:
""")
    set_srd_head(g,sKA,sVA,sG)
    g(f"""
  ; first chunk static: start unit = j*size0, per wave size0 tiles
  s_mul_i32 s{sOFF}, s{sJ}, {size0*64*512}
  s_mul_i32 s{sTMP}, s{sW}, {size0*16*512}
  s_add_u32 s{sOFF}, s{sOFF}, s{sTMP}
  s_mov_b32 s{sCNT}, {size0}
  s_mov_b32 s{sKN}, 1
  s_mov_b32 s{sTRIG}, 3
  s_branch L_adv_done_{u}
L_adv_dyn_{u}:
  s_lshl_b32 s{sTMP}, s{sKN}, 2
  s_add_u32 s{sTMP}, s{sTMP}, {L_QUEUE}
  v_mov_b32 v{vX}, s{sTMP}
  s_mov_b32 s{sTMP+2}, 0
L_adv_poll_{u}:
  ds_read_b32 v{vT}, v{vX}
  s_waitcnt lgkmcnt(0)
  v_readfirstlane_b32 s{sTMP+1}, v{vT}
  s_nop 0
  s_cmp_eq_u32 s{sTMP+1}, -1
  s_cbranch_scc0 L_adv_got_{u}
""")
    spin_guard(g,sTMP+2,"L_fail")
    if STAMPS: g(f"  s_add_u32 s{sST+11}, s{sST+11}, 1")
    g(f"""
  s_sleep 1
  s_branch L_adv_poll_{u}
L_adv_got_{u}:
  s_add_u32 s{sKN}, s{sKN}, 1
  s_cmp_eq_u32 s{sTMP+1}, -2
  s_cbranch_scc1 L_adv_end_{u}
  s_and_b32 s{sCNT}, s{sTMP+1}, 0xff
  s_lshr_b32 s{sOFF}, s{sTMP+1}, 8
  s_lshl_b32 s{sOFF}, s{sOFF}, 15
  s_mul_i32 s{sTMP}, s{sW}, s{sCNT}
  s_lshl_b32 s{sTMP}, s{sTMP}, 13
  s_add_u32 s{sOFF}, s{sOFF}, s{sTMP}
  s_branch L_adv_done_{u}
L_adv_end_{u}:
  s_mov_b32 s{sNXT}, 2
  s_mov_b32 s{sK+2}, 0
  s_mov_b32 s{sV+2}, 0
  s_mov_b32 s{sCNT}, 0x10000
  s_mov_b32 s{sTRIG}, 0
  s_mov_b32 s{sOFF}, 0
L_adv_done_{u}:
""")

def emit_body(g,o,b):
    pol=o.get('pol','nt'); vearly=opt(o,'vearly',False)
    nb=b^1; u=f"b{b}"
    g(f"L_body_{u}:")
    g(f"  s_waitcnt vmcnt(8)")
    for j in range(8):
        c="0" if j==0 else f"v[{vS}:{vS+3}]"
        g(f"  v_mfma_f32_16x16x32_bf16 v[{vS}:{vS+3}], a[{aK[b]+4*j}:{aK[b]+4*j+3}], a[{aQ+4*j}:{aQ+4*j+3}], {c}")
    g(f"""
  s_cmp_eq_u32 s{sSKIP}, 0
  s_cbranch_scc0 L_nokld_{u}
  s_cmp_eq_u32 s{sCNT}, 0
  s_cbranch_scc0 L_kld_{u}""")
    emit_advance(g,o,u)
    g(f"L_kld_{u}:")
    emit_k_loads(g,nb,pol)
    if vearly: emit_v_loads(g,nb,pol)
    g(f"L_nokld_{u}:")
    t=vT
    g(f"""
  s_nop 5
  v_max3_f32 v{t}, v{vS}, v{vS+1}, v{vS+2}
  v_max_f32 v{t}, v{t}, v{vS+3}
  v_mov_b32 v{t+1}, v{t}
  s_nop 1
  v_permlane16_swap_b32 v{t}, v{t+1}
  v_max_f32 v{t}, v{t}, v{t+1}
  v_mov_b32 v{t+1}, v{t}
  s_nop 1
  v_permlane32_swap_b32 v{t}, v{t+1}
  v_max_f32 v{t}, v{t}, v{t+1}
  v_cmp_gt_f32 vcc, v{t}, v{vM}
  s_cbranch_vccnz L_rare_{u}
L_back_{u}:
  v_fma_f32 v{t+2}, v{vS}, s{sC}, -v{vMC}
  v_fma_f32 v{t+3}, v{vS+1}, s{sC}, -v{vMC}
  v_fma_f32 v{t+4}, v{vS+2}, s{sC}, -v{vMC}
  v_fma_f32 v{t+5}, v{vS+3}, s{sC}, -v{vMC}
  v_exp_f32 v{t+2}, v{t+2}
  v_exp_f32 v{t+3}, v{t+3}
  v_exp_f32 v{t+4}, v{t+4}
  v_exp_f32 v{t+5}, v{t+5}
  v_add_f32 v{t+6}, v{t+2}, v{t+3}
  v_cvt_pk_bf16_f32 v{vP}, v{t+2}, v{t+3}
  v_add_f32 v{t+7}, v{t+4}, v{t+5}
  v_cvt_pk_bf16_f32 v{vP+1}, v{t+4}, v{t+5}
  v_add_f32 v{t+6}, v{t+6}, v{t+7}
  v_mov_b32 v{vP+2}, v{vP}
  v_mov_b32 v{vP+3}, v{vP+1}
  v_add_f32 v{vL}, v{vL}, v{t+6}
  s_nop 0
  v_permlane16_swap_b32 v{vP}, v{vP+2}
  v_permlane16_swap_b32 v{vP+1}, v{vP+3}
  s_waitcnt vmcnt({16 if vearly else 8})
""")
    for t2 in range(2):
        R=[vV[b]+4*(4*t2+rr) for rr in range(4)]
        for dw in range(4):
            g(f"  v_perm_b32 v{vB+4*dw}, v{R[1]+dw}, v{R[0]+dw}, s{sSLO}")
            g(f"  v_perm_b32 v{vB+4*dw+1}, v{R[3]+dw}, v{R[2]+dw}, s{sSLO}")
            g(f"  v_perm_b32 v{vB+4*dw+2}, v{R[1]+dw}, v{R[0]+dw}, s{sSHI}")
            g(f"  v_perm_b32 v{vB+4*dw+3}, v{R[3]+dw}, v{R[2]+dw}, s{sSHI}")
        for jj in range(8):
            a=vACC+4*jj
            g(f"  v_mfma_f32_4x4x4_16b_bf16 v[{a}:{a+3}], v[{vP+2*t2}:{vP+2*t2+1}], v[{vB+2*jj}:{vB+2*jj+1}], v[{a}:{a+3}]")
    g(f"""
  s_cmp_eq_u32 s{sSKIP}, 0
  s_cbranch_scc0 L_novld_{u}""")
    if not vearly: emit_v_loads(g,nb,pol)
    g(f"""
  s_add_u32 s{sOFF}, s{sOFF}, 8192
  s_sub_u32 s{sCNT}, s{sCNT}, 1
  s_cmp_lt_u32 s{sCNT}, s{sTRIG}
  s_cbranch_scc0 L_novld_{u}
  v_mov_b32 v{vX}, {L_CNT+12}
  v_mov_b32 v{vT}, s{sKN}
  ds_max_u32 v{vX}, v{vT}
L_novld_{u}:
  s_mov_b32 s{sSKIP}, 0
  s_cmp_eq_u32 s{sNXT}, 0
  s_cbranch_scc0 L_flush_{u}
""")
    if b==1: g("  s_branch L_body_b0")

def emit_rare(g,b):
    u=f"b{b}"; t=vT
    g(f"""
L_rare_{u}:
  v_max_f32 v{t+1}, v{t}, v{vM}
  v_sub_f32 v{t+2}, v{vM}, v{t+1}
  v_mul_f32 v{t+2}, s{sC}, v{t+2}
  v_exp_f32 v{t+2}, v{t+2}
  v_mov_b32 v{vM}, v{t+1}
  v_mul_f32 v{vMC}, s{sC}, v{t+1}
  v_mul_f32 v{vL}, v{vL}, v{t+2}
  s_nop 0
  v_mov_b32_dpp v{t+3}, v{t+2} quad_perm:[0,0,2,2] row_mask:0xf bank_mask:0xf
  v_mov_b32_dpp v{t+4}, v{t+2} quad_perm:[1,1,3,3] row_mask:0xf bank_mask:0xf
""")
    for jj in range(8):
        g(f"  v_mul_f32 v{vACC+4*jj}, v{vACC+4*jj}, v{t+3}")
        g(f"  v_mul_f32 v{vACC+4*jj+1}, v{vACC+4*jj+1}, v{t+4}")
    g(f"  s_branch L_back_{u}")

def tag_embed(g, regs, vTagv, sSel):
    for k,r in enumerate(regs):
        g(f"  s_mov_b32 s{sSel}, {hex(0x07060500|k)}\n  v_perm_b32 v{r}, v{r}, v{vTagv}, s{sSel}")

def emit_flush(g,o,b):
    u=f"b{b}"; t=vT
    g(f"""
L_flush_{u}:
  s_nop 4""")
    if STAMPS:
        g(f"  s_memrealtime s[80:81]\n  s_waitcnt lgkmcnt(0)\n  s_cmp_eq_u32 s{sCPH}, 0\n  s_cselect_b32 s{sST+3}, s80, s{sST+3}\n  s_cmp_eq_u32 s{sCPH}, 1\n  s_cselect_b32 s{sST+4}, s80, s{sST+4}\n  s_cmp_eq_u32 s{sCPH}, 2\n  s_cselect_b32 s{sST+5}, s80, s{sST+5}")
    for jj in range(8):
        a=vACC+4*jj
        g(f"  v_permlane32_swap_b32 v{a}, v{a+1}")
    for jj in range(8):
        a=vACC+4*jj
        g(f"  v_add_f32 v{vB+jj}, v{a}, v{a+1}")
    g(f"""
  v_mov_b32 v{t}, v{vL}
  s_nop 1
  v_permlane16_swap_b32 v{vL}, v{t}
  v_add_f32 v{vL}, v{vL}, v{t}
  v_mov_b32 v{t}, v{vL}
  s_nop 1
  v_permlane32_swap_b32 v{vL}, v{t}
  v_add_f32 v{vL}, v{vL}, v{t}
  s_lshl_b32 s{sTMP}, s{sCPH}, 13
  s_lshl_b32 s{sTMP+1}, s{sW}, 11
  s_add_u32 s{sTMP}, s{sTMP}, s{sTMP+1}
  s_add_u32 s{sTMP}, s{sTMP}, {L_FL}
  v_lshlrev_b32 v{t}, 5, v{vLANE}
  v_add_u32 v{t}, s{sTMP}, v{t}
  ds_write_b128 v{t}, v[{vB}:{vB+3}]
  ds_write_b128 v{t}, v[{vB+4}:{vB+7}] offset:16
  s_lshl_b32 s{sTMP}, s{sCPH}, 6
  s_lshl_b32 s{sTMP+1}, s{sW}, 4
  s_add_u32 s{sTMP}, s{sTMP}, s{sTMP+1}
  s_add_u32 s{sTMP}, s{sTMP}, {L_ST}
  v_and_b32 v{t+1}, 1, v{vLANE}
  v_lshlrev_b32 v{t+1}, 3, v{t+1}
  v_add_u32 v{t+1}, s{sTMP}, v{t+1}
  v_mov_b32 v{t+2}, v{vMC}
  v_mov_b32 v{t+3}, v{vL}
  ds_write_b64 v{t+1}, v[{t+2}:{t+3}]
  s_waitcnt lgkmcnt(0)
  s_lshl_b32 s{sTMP}, s{sCPH}, 2
  s_add_u32 s{sTMP}, s{sTMP}, {L_CNT}
  v_mov_b32 v{t}, s{sTMP}
  v_mov_b32 v{t+1}, 1
  s_mov_b64 exec, 1
  ds_add_rtn_u32 v{t+2}, v{t}, v{t+1}
  s_mov_b64 exec, -1
  s_waitcnt lgkmcnt(0)
  v_readfirstlane_b32 s{sTMP}, v{t+2}
  s_nop 0
  s_cmp_eq_u32 s{sTMP}, 3
  s_cbranch_scc0 L_nomerge_{u}
""")
    g(f"""
  s_and_b32 s{sTMP+2}, s{sG}, 7
  s_lshl_b32 s{sTMP+2}, s{sTMP+2}, 1          ; hq0
  s_lshr_b32 s{sTMP+3}, s{sG}, 3              ; b
  s_cmp_eq_u32 s{sCPH}, 2
  s_cselect_b32 s{sTMP+4}, 0, 16              ; p*16
  s_cselect_b32 s{sTMP+5}, 0, s{sCPH}
  s_cselect_b32 s{sTMP+6}, 2, 1
  s_add_u32 s{sTMP+2}, s{sTMP+2}, s{sTMP+4}
  s_add_u32 s{sTMP+2}, s{sTMP+2}, s{sTMP+5}   ; p*16+hq
  s_lshl_b32 s{sTMP+2}, s{sTMP+2}, 2
  s_add_u32 s{sTMP+2}, s{sTMP+2}, s{sTMP+3}   ; *4 + b
  s_lshl_b32 s{sTMP+2}, s{sTMP+2}, 3
  s_add_u32 s{sTMP+2}, s{sTMP+2}, s{sJ}
  s_mov_b32 s{sTMP+7}, 0                      ; hh
  v_mov_b32 v{vX}, s{sTB}
L_merge_{u}:
  s_lshl_b32 s{sTMP}, s{sCPH}, 6
  s_lshl_b32 s{sTMP+1}, s{sTMP+7}, 3
  s_add_u32 s{sTMP}, s{sTMP}, s{sTMP+1}
  s_add_u32 s{sTMP}, s{sTMP}, {L_ST}
  v_mov_b32 v{t}, s{sTMP}
  ds_read_b64 v[{vB}:{vB+1}], v{t}
  ds_read_b64 v[{vB+2}:{vB+3}], v{t} offset:16
  ds_read_b64 v[{vB+4}:{vB+5}], v{t} offset:32
  ds_read_b64 v[{vB+6}:{vB+7}], v{t} offset:48
  s_lshl_b32 s{sTMP}, s{sCPH}, 13
  s_lshl_b32 s{sTMP+1}, s{sTMP+7}, 10
  s_add_u32 s{sTMP}, s{sTMP}, s{sTMP+1}
  s_add_u32 s{sTMP}, s{sTMP}, {L_FL}
  v_lshlrev_b32 v{t+1}, 4, v{vLANE}
  v_add_u32 v{t+1}, s{sTMP}, v{t+1}
  ds_read_b128 v[{vACC}:{vACC+3}], v{t+1}
  ds_read_b128 v[{vACC+4}:{vACC+7}], v{t+1} offset:2048
  ds_read_b128 v[{vACC+8}:{vACC+11}], v{t+1} offset:4096
  ds_read_b128 v[{vACC+12}:{vACC+15}], v{t+1} offset:6144
  s_waitcnt lgkmcnt(0)
  v_max3_f32 v{t+2}, v{vB}, v{vB+2}, v{vB+4}
  v_max_f32 v{t+2}, v{t+2}, v{vB+6}           ; M
  v_sub_f32 v{vB}, v{vB}, v{t+2}
  v_sub_f32 v{vB+2}, v{vB+2}, v{t+2}
  v_sub_f32 v{vB+4}, v{vB+4}, v{t+2}
  v_sub_f32 v{vB+6}, v{vB+6}, v{t+2}
  v_exp_f32 v{vB}, v{vB}
  v_exp_f32 v{vB+2}, v{vB+2}
  v_exp_f32 v{vB+4}, v{vB+4}
  v_exp_f32 v{vB+6}, v{vB+6}
  s_nop 0
  v_mul_f32 v{t+3}, v{vB}, v{vB+1}
  v_fmac_f32 v{t+3}, v{vB+2}, v{vB+3}
  v_fmac_f32 v{t+3}, v{vB+4}, v{vB+5}
  v_fmac_f32 v{t+3}, v{vB+6}, v{vB+7}         ; L
""")
    for k in range(4):
        g(f"""  v_mul_f32 v{vB+8+k}, v{vB}, v{vACC+k}
  v_fmac_f32 v{vB+8+k}, v{vB+2}, v{vACC+4+k}
  v_fmac_f32 v{vB+8+k}, v{vB+4}, v{vACC+8+k}
  v_fmac_f32 v{vB+8+k}, v{vB+6}, v{vACC+12+k}""")
    tag_embed(g,[vB+8,vB+9,vB+10,vB+11],vX,sTMP)
    g(f"""
  s_lshl_b32 s{sTMP}, s{sTMP+2}, 10
  s_add_u32 s{sTMP}, s{sTMP}, {WS_PART}
  v_lshlrev_b32 v{t}, 4, v{vLANE}
  v_add_u32 v{t}, s{sTMP}, v{t}
  global_store_dwordx4 v{t}, v[{vB+8}:{vB+11}], s[{sWS}:{sWS+1}] sc1
  v_mov_b32 v{vB+12}, v{t+2}
  v_mov_b32 v{vB+13}, s{sT}
  v_mov_b32 v{vB+14}, v{t+3}
  v_mov_b32 v{vB+15}, s{sT}
  s_lshl_b32 s{sTMP}, s{sTMP+2}, 4
  s_add_u32 s{sTMP}, s{sTMP}, {WS_STAT}
  v_mov_b32 v{t}, s{sTMP}
  s_mov_b64 exec, 1
  global_store_dwordx4 v{t}, v[{vB+12}:{vB+15}], s[{sWS}:{sWS+1}] sc1
  s_mov_b64 exec, -1
  s_add_u32 s{sTMP+7}, s{sTMP+7}, 1
  s_add_u32 s{sTMP+2}, s{sTMP+2}, 32
  s_cmp_lt_u32 s{sTMP+7}, s{sTMP+6}
  s_cbranch_scc1 L_merge_{u}
L_nomerge_{u}:
  s_cmp_eq_u32 s{sNXT}, 2
  s_cbranch_scc1 L_tail
  s_add_u32 s{sCPH}, s{sCPH}, 1
  s_mov_b32 s{sNXT}, 0
""")
    emit_reset_and_q(g)
    g(f"  s_branch L_body_b{b^1}")

def emit_reset_and_q(g):
    t=vT
    g(f"""
  v_and_b32 v{t}, 1, v{vLANE}
  s_cmp_eq_u32 s{sCPH}, 2
  s_cselect_b32 s{sTMP}, 512, 0
  v_mul_u32_u24 v{t}, s{sTMP}, v{t}
  s_lshl_b32 s{sTMP}, s{sCPH}, 9
  s_add_u32 s{sTMP}, s{sTMP}, {L_QC}
  v_add_u32 v{t}, s{sTMP}, v{t}
  v_lshrrev_b32 v{t+1}, 4, v{vLANE}
  v_lshl_add_u32 v{t}, v{t+1}, 4, v{t}
""")
    for j in range(8):
        g(f"  ds_read_b128 a[{aQ+4*j}:{aQ+4*j+3}], v{t} offset:{j*64}")
    g(f"""
  v_mov_b32 v{vM}, 0xff800000
  v_mov_b32 v{vMC}, 0xff800000
  v_mov_b32 v{vL}, 0""")
    for r in range(32): g(f"  v_mov_b32 v{vACC+r}, 0")
    g("  s_waitcnt lgkmcnt(0)")

def emit_role(g,o,p,u,wreg=None,fail='L_fail',sleep=1,part=0):
    t=vT; D0=24; D1=28; S0=32; S1=36
    sW=wreg if wreg is not None else SW_
    if part in (0,1): _role_p1(g,o,p,u,sW,fail,sleep)
    if part==0:
        if o.get('tailst') and p==0: stamp(g,11)
        g("  s_barrier")
        if o.get('tailst') and p==0: stamp(g,12)
    if part in (0,2): _role_p2(g,o,p,u,sW)

def _role_p1(g,o,p,u,sW,fail,sleep):
    t=vT; D0=24; D1=28; S0=32; S1=36
    g(f"""
  s_lshr_b32 s{sTMP}, s{RO}, 4                   ; h
  s_add_u32 s{sTMP}, s{sTMP}, {p*16}
  s_lshl_b32 s{sTMP}, s{sTMP}, 2
  s_add_u32 s{sTMP}, s{sTMP}, s{sW}           ; (p*16+h)*4 + b
  s_lshl_b32 s{sTMP}, s{sTMP}, 3
  s_lshl_b32 s{sTMP+1}, s{sTMP}, 4
  s_add_u32 s{sTMP+1}, s{sTMP+1}, {WS_STAT}
  s_lshl_b32 s{sTMP+2}, s{sTMP}, 10
  s_add_u32 s{sTMP+2}, s{sTMP+2}, {WS_PART}
  s_lshr_b32 s{sTMP+3}, s{RO}, 2
  s_and_b32 s{sTMP+3}, s{sTMP+3}, 3           ; dq
  s_lshl_b32 s{sTMP+3}, s{sTMP+3}, 8
  s_add_u32 s{sTMP+2}, s{sTMP+2}, s{sTMP+3}
  v_lshrrev_b32 v{t}, 4, v{vLANE}             ; grp
  v_and_b32 v{t+1}, 15, v{vLANE}
  v_lshlrev_b32 v{t+2}, 4, v{t}
  v_add_u32 v{t+2}, s{sTMP+1}, v{t+2}
  v_lshlrev_b32 v{t+3}, 10, v{t}
  v_lshl_add_u32 v{t+3}, v{t+1}, 4, v{t+3}
  v_add_u32 v{t+3}, s{sTMP+2}, v{t+3}
  v_add_u32 v{t+4}, 4096, v{t+3}              ; j=grp+4
  s_mov_b32 s{sTMP+4}, 0
  s_mov_b32 s{sTMP+5}, 0x0c0c0400
  s_mov_b32 s{sTMP+6}, 0x04000c0c
L_role_poll_{u}:
  global_load_dwordx4 v[{S0}:{S0+3}], v{t+2}, s[{sWS}:{sWS+1}] sc1
  global_load_dwordx4 v[{S1}:{S1+3}], v{t+2}, s[{sWS}:{sWS+1}] offset:64 sc1
  global_load_dwordx4 v[{D0}:{D0+3}], v{t+3}, s[{sWS}:{sWS+1}] sc1
  global_load_dwordx4 v[{D1}:{D1+3}], v{t+4}, s[{sWS}:{sWS+1}] sc1
  s_waitcnt vmcnt(0)
  v_perm_b32 v{t+5}, v{D0+1}, v{D0}, s{sTMP+5}      ; [b0(D0), b0(D0+1), 0, 0]
  v_perm_b32 v{t+6}, v{D0+3}, v{D0+2}, s{sTMP+6}    ; [0,0,b0(D0+2), b0(D0+3)]
  v_or_b32 v{t+5}, v{t+5}, v{t+6}
  v_perm_b32 v{t+6}, v{D1+1}, v{D1}, s{sTMP+5}
  v_perm_b32 v{t+7}, v{D1+3}, v{D1+2}, s{sTMP+6}
  v_or_b32 v{t+6}, v{t+6}, v{t+7}
  v_xor_b32 v{t+5}, s{sTB}, v{t+5}
  v_xor_b32 v{t+6}, s{sTB}, v{t+6}
  v_or_b32 v{t+5}, v{t+5}, v{t+6}
  v_xor_b32 v{t+6}, s{sT}, v{S0+1}
  v_xor_b32 v{t+7}, s{sT}, v{S1+1}
  v_or3_b32 v{t+5}, v{t+5}, v{t+6}, v{t+7}
  v_xor_b32 v{t+6}, s{sT}, v{S0+3}
  v_xor_b32 v{t+7}, s{sT}, v{S1+3}
  v_or3_b32 v{t+5}, v{t+5}, v{t+6}, v{t+7}
  v_cmp_ne_u32 vcc, 0, v{t+5}
  s_cbranch_vccz L_role_ok_{u}
""")
    spin_guard(g,sTMP+4,fail)
    g(f"""
  s_sleep {sleep}
  s_branch L_role_poll_{u}
L_role_ok_{u}:""")
    if o.get('tailst') and p==0: stamp(g,10)
    g(f"""
  v_max_f32 v{t+5}, v{S0}, v{S1}
  v_mov_b32 v{t+6}, v{t+5}
  s_nop 1
  v_permlane16_swap_b32 v{t+5}, v{t+6}
  v_max_f32 v{t+5}, v{t+5}, v{t+6}
  v_mov_b32 v{t+6}, v{t+5}
  s_nop 1
  v_permlane32_swap_b32 v{t+5}, v{t+6}
  v_max_f32 v{t+5}, v{t+5}, v{t+6}            ; M
  v_sub_f32 v{S0}, v{S0}, v{t+5}
  v_sub_f32 v{S1}, v{S1}, v{t+5}
  v_exp_f32 v{S0}, v{S0}
  v_exp_f32 v{S1}, v{S1}
  s_nop 0
  v_mul_f32 v{t+5}, v{S0}, v{S0+2}
  v_fmac_f32 v{t+5}, v{S1}, v{S1+2}           ; partial L
""")
    for k in range(4):
        g(f"  v_mul_f32 v{D0+k}, v{S0}, v{D0+k}\n  v_fmac_f32 v{D0+k}, v{S1}, v{D1+k}")
    vals=[D0,D0+1,D0+2,D0+3,t+5]
    tmp=[D1,D1+1,D1+2,D1+3,t+6]
    for sw in ('v_permlane16_swap_b32','v_permlane32_swap_b32'):
        for v,w_ in zip(vals,tmp): g(f"  v_mov_b32 v{w_}, v{v}")
        g("  s_nop 1")
        for v,w_ in zip(vals,tmp): g(f"  {sw} v{v}, v{w_}")
        for v,w_ in zip(vals,tmp): g(f"  v_add_f32 v{v}, v{v}, v{w_}")
    g(f"""
  v_rcp_f32 v{t+5}, v{t+5}
  s_nop 0
  v_mul_f32 v{D0}, v{D0}, v{t+5}
  v_mul_f32 v{D0+1}, v{D0+1}, v{t+5}
  v_mul_f32 v{D0+2}, v{D0+2}, v{t+5}
  v_mul_f32 v{D0+3}, v{D0+3}, v{t+5}
  v_cvt_pk_bf16_f32 v{D0}, v{D0}, v{D0+1}
  v_cvt_pk_bf16_f32 v{D0+1}, v{D0+2}, v{D0+3}
  s_lshl_b32 s{sTMP}, s{sW}, 7
  s_add_u32 s{sTMP}, s{sTMP}, {L_OB+p*512}
  v_lshlrev_b32 v{t+1}, 3, v{t+1}
  v_add_u32 v{t+1}, s{sTMP}, v{t+1}
  ds_write_b64 v{t+1}, v[{D0}:{D0+1}]
  s_waitcnt lgkmcnt(0)""")

def _role_p2(g,o,p,u,sW):
    t=vT
    g(f"""
  v_lshrrev_b32 v{t}, 4, v{vLANE}             ; grp
  v_and_b32 v{t+1}, 3, v{vLANE}
  v_lshlrev_b32 v{t+2}, 7, v{t+1}
  v_lshl_add_u32 v{t+2}, v{t}, 4, v{t+2}
  v_add_u32 v{t+2}, {L_OB+p*512}, v{t+2}
  ds_read_b128 v[40:43], v{t+2}
  ds_read_b128 v[44:47], v{t+2} offset:64
  v_lshrrev_b32 v{t+3}, 2, v{vLANE}
  v_and_b32 v{t+3}, 3, v{t+3}
  v_lshl_add_u32 v{t+3}, v{t}, 3, v{t+3}
  v_mul_u32_u24 v{t+3}, 224, v{t+3}
  v_lshl_add_u32 v{t+3}, v{t+1}, 3, v{t+3}
  s_lshl_b32 s{sTMP}, s{sW}, 6
  s_add_u32 s{sTMP}, s{sTMP}, {L_WST+p*14336}
  v_add_u32 v{t+3}, s{sTMP}, v{t+3}
""")
    TBq=48
    for c in range(2):
        for s in range(2):
            r=TBq+8*c+4*s
            g(f"  ds_read_b64_tr_b16 v[{r}:{r+1}], v{t+3} offset:{c*32+s*32*224}")
            g(f"  ds_read_b64_tr_b16 v[{r+2}:{r+3}], v{t+3} offset:{c*32+s*32*224+4*224}")
    g("  s_waitcnt lgkmcnt(0)")
    for c in range(2):
        d=64+4*c
        g(f"  v_mfma_f32_16x16x32_bf16 v[{d}:{d+3}], v[40:43], v[{TBq+8*c}:{TBq+8*c+3}], 0")
    for c in range(2):
        d=64+4*c
        g(f"  v_mfma_f32_16x16x32_bf16 v[{d}:{d+3}], v[44:47], v[{TBq+8*c+4}:{TBq+8*c+7}], v[{d}:{d+3}]")
    g(f"""
  v_and_b32 v{t+4}, 1, v{t}
  v_cmp_eq_u32 vcc, 1, v{t+4}
  s_nop 6
  v_cndmask_b32 v64, v64, v68, vcc
  v_cndmask_b32 v65, v65, v69, vcc
  v_cndmask_b32 v66, v66, v70, vcc
  v_cndmask_b32 v67, v67, v71, vcc
  v_mov_b32 v{vX}, s{sTB}
""")
    tag_embed(g,[64,65,66,67],vX,sTMP)
    g(f"""
  s_and_b32 s{sTMP}, s{RO}, 3
  s_add_u32 s{sTMP}, s{sTMP}, {p*4}
  s_lshl_b32 s{sTMP}, s{sTMP}, 6
  s_lshr_b32 s{sTMP+1}, s{RO}, 2
  s_add_u32 s{sTMP}, s{sTMP}, s{sTMP+1}
  s_mul_i32 s{sTMP}, s{sTMP}, {112*16}
  s_lshl_b32 s{sTMP+1}, s{sW}, 9              ; 2w*16*16
  s_add_u32 s{sTMP}, s{sTMP}, s{sTMP+1}
  s_add_u32 s{sTMP}, s{sTMP}, {WS_Y}
  v_and_b32 v{t+5}, 15, v{vLANE}
  v_lshlrev_b32 v{t+5}, 4, v{t+5}
  v_lshl_add_u32 v{t+5}, v{t+4}, 8, v{t+5}    ; + (g&1)*256
  v_add_u32 v{t+5}, s{sTMP}, v{t+5}
  s_cmp_eq_u32 s{sW}, 3
  s_cselect_b32 s{sTMP+2}, 0xffff, -1
  s_mov_b32 s{sTMP+3}, 0
  s_mov_b64 exec, s[{sTMP+2}:{sTMP+3}]
  global_store_dwordx4 v{t+5}, v[64:67], s[{sWS}:{sWS+1}] sc1
  s_mov_b64 exec, -1
""")

def emit_final(g,o,u,update_epoch,lo=0,hi=224,loopw=None,fail='L_fail',done='L_done',fb=None,fsleep=1):
    t=vT
    FB=fb if fb is not None else L_FB
    sW=loopw if loopw is not None else SW_
    if lo>0: g(f"  s_cmp_lt_u32 s2, {lo}\n  s_cbranch_scc1 {done}")
    g(f"""
  ; ---- finalizer f=s2<224 : p=f/112, r=f%112, cq=r/28, cc=(r%28)*4
  s_cmp_ge_u32 s2, {hi}
  s_cbranch_scc1 {done}
  s_cmp_ge_u32 s2, 112
  s_cselect_b32 s{sTMP}, 1, 0                 ; p
  s_mul_i32 s{sTMP+1}, s{sTMP}, 112
  s_sub_u32 s{sTMP+1}, s2, s{sTMP+1}          ; r
  s_mul_i32 s{sTMP+2}, s{sTMP+1}, 2341
  s_lshr_b32 s{sTMP+2}, s{sTMP+2}, 16         ; cq = r/28
  s_mul_i32 s{sTMP+3}, s{sTMP+2}, 28
  s_sub_u32 s{sTMP+3}, s{sTMP+1}, s{sTMP+3}
  s_lshl_b32 s{sTMP+3}, s{sTMP+3}, 2          ; cc
""")
    if loopw is not None: g(f"  s_mov_b32 s{loopw}, 0\nL_finw_{u}:")
    g(f"""
  s_lshl_b32 s{sTMP+4}, s{sTMP}, 2
  s_add_u32 s{sTMP+4}, s{sTMP+4}, s{sTMP+2}
  s_lshl_b32 s{sTMP+4}, s{sTMP+4}, 6
  s_lshl_b32 s{sTMP+5}, s{sW}, 4
  s_add_u32 s{sTMP+4}, s{sTMP+4}, s{sTMP+5}
  s_mul_i32 s{sTMP+4}, s{sTMP+4}, 1792
  s_lshl_b32 s{sTMP+5}, s{sTMP+3}, 4
  s_add_u32 s{sTMP+4}, s{sTMP+4}, s{sTMP+5}
  s_add_u32 s{sTMP+4}, s{sTMP+4}, {WS_Y}
  v_lshrrev_b32 v{t}, 2, v{vLANE}
  v_mul_u32_u24 v{t}, 1792, v{t}
  v_and_b32 v{t+1}, 3, v{vLANE}
  v_lshl_add_u32 v{t}, v{t+1}, 4, v{t}
  v_add_u32 v{t}, s{sTMP+4}, v{t}
  s_mov_b32 s{sTMP+7}, 0
  s_mov_b32 s{sTMP+5}, 0x0c0c0400
  s_mov_b32 s{sTMP+6}, 0x04000c0c
L_fin_poll_{u}:
  global_load_dwordx4 v[24:27], v{t}, s[{sWS}:{sWS+1}] sc1
  s_waitcnt vmcnt(0)
  v_perm_b32 v{t+2}, v25, v24, s{sTMP+5}
  v_perm_b32 v{t+3}, v27, v26, s{sTMP+6}
  v_or_b32 v{t+2}, v{t+2}, v{t+3}
  v_cmp_ne_u32 vcc, s{sTB}, v{t+2}
  s_cbranch_vccz L_fin_ok_{u}
""")
    spin_guard(g,sTMP+7,fail)
    g(f"""
  s_sleep {fsleep}
  s_branch L_fin_poll_{u}
L_fin_ok_{u}:
""")
    if o.get('tailst'): stamp(g,13)
    for rr in (4,8):
        for k in range(4): g(f"  v_add_f32_dpp v{28+k}, v{24+k}, v{24+k} row_ror:{rr} row_mask:0xf bank_mask:0xf")
        for k in range(4): g(f"  v_mov_b32 v{24+k}, v{28+k}")
        g("  s_nop 1")
    for sw in ('v_permlane16_swap_b32','v_permlane32_swap_b32'):
        for k in range(4): g(f"  v_mov_b32 v{28+k}, v{24+k}")
        g("  s_nop 1")
        for k in range(4): g(f"  {sw} v{24+k}, v{28+k}")
        for k in range(4): g(f"  v_add_f32 v{24+k}, v{24+k}, v{28+k}")
    g(f"""
  s_lshl_b32 s{sTMP+4}, s{sW}, 6
  s_add_u32 s{sTMP+4}, s{sTMP+4}, {FB}
  v_lshlrev_b32 v{t+2}, 4, v{t+1}
  v_add_u32 v{t+2}, s{sTMP+4}, v{t+2}
  ds_write_b128 v{t+2}, v[24:27]
  s_waitcnt lgkmcnt(0)""")
    if loopw is not None:
        g(f"  s_add_u32 s{loopw}, s{loopw}, 1\n  s_cmp_lt_u32 s{loopw}, 4\n  s_cbranch_scc1 L_finw_{u}")
    else:
        g(f"  s_barrier\n  s_cmp_eq_u32 s{sW}, 0\n  s_cbranch_scc0 {done}")
    g(f"""
  v_lshrrev_b32 v{t+3}, 2, v{vLANE}
  v_and_b32 v{t+3}, 3, v{t+3}                 ; b
  v_lshlrev_b32 v{t+4}, 4, v{t+1}
  v_lshl_add_u32 v{t+4}, v{t+3}, 2, v{t+4}
  v_add_u32 v{t+4}, {FB}, v{t+4}
  ds_read_b32 v24, v{t+4}
  ds_read_b32 v25, v{t+4} offset:64
  ds_read_b32 v26, v{t+4} offset:128
  ds_read_b32 v27, v{t+4} offset:192
  s_waitcnt lgkmcnt(0)
  v_add_f32 v24, v24, v25
  v_add_f32 v26, v26, v27
  v_add_f32 v24, v24, v26
  v_cvt_pk_bf16_f32 v24, v24, v24
  s_mul_i32 s{sTMP+4}, s{sTMP}, 448
  s_mul_i32 s{sTMP+5}, s{sTMP+2}, 112
  s_add_u32 s{sTMP+4}, s{sTMP+4}, s{sTMP+5}
  s_add_u32 s{sTMP+4}, s{sTMP+4}, s{sTMP+3}
  s_lshl_b32 s{sTMP+4}, s{sTMP+4}, 1
  v_mul_u32_u24 v{t+4}, 1792, v{t+3}
  v_lshl_add_u32 v{t+4}, v{t+1}, 1, v{t+4}
  v_add_u32 v{t+4}, s{sTMP+4}, v{t+4}
  s_mov_b64 exec, 0xffff
  global_store_short v{t+4}, v24, s[{sOUT}:{sOUT+1}] {o.get('outpol','')}
  s_mov_b64 exec, -1
""")
    if update_epoch:
        g(f"""
  s_cmp_eq_u32 s2, 0
  s_cbranch_scc0 {done}
  v_mov_b32 v24, s{sT}
  v_mov_b32 v25, {WS_EPOCH}
  s_mov_b64 exec, 1
  global_store_dword v25, v24, s[{sWS}:{sWS+1}] sc1
  s_mov_b64 exec, -1
""")

def kd(name,nv,nacc,nsg=96):
    acc=(nv+3)//4*4
    return f""".p2align 6
.amdhsa_kernel {name}
  .amdhsa_next_free_vgpr {acc+nacc if nacc else nv}
  .amdhsa_next_free_sgpr {nsg}
  .amdhsa_accum_offset {acc}
  .amdhsa_group_segment_fixed_size 0
  .amdhsa_kernarg_size 104
  .amdhsa_user_sgpr_count 2
  .amdhsa_user_sgpr_kernarg_segment_ptr 1
  .amdhsa_system_sgpr_workgroup_id_x 1
  .amdhsa_float_denorm_mode_32 3
.end_amdhsa_kernel
"""
def khead(name): return f".globl {name}\n.p2align 8\n.type {name},@function\n{name}:\n"

def load_ptrs(g):
    g(f"""
  s_load_dwordx2 s[{sKA}:{sKA+1}], s[0:1], 8
  s_load_dwordx2 s[{sVA}:{sVA+1}], s[0:1], 16
  s_load_dwordx2 s[{sKB}:{sKB+1}], s[0:1], 48
  s_load_dwordx2 s[{sVB}:{sVB+1}], s[0:1], 56
  s_load_dwordx2 s[{sOUT}:{sOUT+1}], s[0:1], 80
  s_load_dwordx2 s[{sDBG}:{sDBG+1}], s[0:1], 88
  s_load_dwordx2 s[{sWS}:{sWS+1}], s[0:1], 96
  v_lshrrev_b32 v1, 6, v0
  v_and_b32 v{vLANE}, 63, v0
  s_nop 0
  v_readfirstlane_b32 s{sW}, v1
  s_lshr_b32 s{sG}, s2, 3
  s_and_b32 s{sJ}, s2, 7
  s_waitcnt lgkmcnt(0)
""")

def fail_and_done(g,name,stamps=False):
    if stamps and STAMPS:
        g(f"""
  s_branch L_done
L_fail:
  v_mov_b32 v24, 0xdead
  v_mov_b32 v25, 4
  s_mov_b64 exec, 1
  global_store_dword v25, v24, s[{sDBG}:{sDBG+1}]
  s_mov_b64 exec, -1
  s_endpgm
L_done:""")
        stamp(g,9)
        if not TAILST: g(f"  s_mov_b32 s{sST+10}, s{sKN}")
        stamp_write(g)
        g("L_exit:\n  s_endpgm")
        return
    g(f"""
  s_branch L_done
L_fail:
  v_mov_b32 v24, 0xdead
  v_mov_b32 v25, 4
  s_mov_b64 exec, 1
  global_store_dword v25, v24, s[{sDBG}:{sDBG+1}]
  s_mov_b64 exec, -1
L_done:
L_exit:
  s_endpgm
""")

def uniq(txt,sfx):
    import re
    return re.sub(r'\b(L_[A-Za-z0-9_]+)',lambda m:m.group(1)+sfx,txt)

def k_qproj(o):
    g=G(); name='qproj_kernel'
    g("  s_cmp_ge_u32 s2, 256\n  s_cbranch_scc1 L_exit")
    load_ptrs(g); g(f"  v_mov_b32 v0, v{vLANE}")
    load_tags(g,sWS,sT,sTB,sTMP)
    emit_qproj(g,'k1',sWS,sT,'q')
    g("  s_waitcnt vmcnt(0)")
    fail_and_done(g,name)
    return khead(name)+uniq(g.text(),'_k1'), kd(name,128,0), name

def k_main(o):
    g=G(); name=KN+'_kernel' if opt(o,'single',False) else 'main_kernel'
    fuseq=opt(o,'fuseq',False); fuset=opt(o,'fuset',False); pol=o.get('pol','nt')
    size0,tab=chunk_table(o)
    g("  s_cmp_ge_u32 s2, 256\n  s_cbranch_scc1 L_exit")
    early=opt(o,'early',True) and fuseq
    pace=opt(o,'pace',8)
    if early: emit_qproj_ptrs(g)
    load_ptrs(g)
    stamp_init(g); stamp(g,0)
    g(f"""
  s_cmp_eq_u32 s{sW}, 4
  s_cbranch_scc1 L_aux
  v_and_b32 v{vOK}, 15, v{vLANE}
  v_lshlrev_b32 v{vOK}, 9, v{vOK}
  v_lshrrev_b32 v{vT}, 4, v{vLANE}
  v_lshl_add_u32 v{vOK}, v{vT}, 4, v{vOK}        ; (l&15)*512 + (l>>4)*16
  v_lshrrev_b32 v{vT}, 5, v{vLANE}
  v_lshlrev_b32 v{vT}, 12, v{vT}
  v_and_b32 v{vOV}, 31, v{vLANE}
  v_lshl_add_u32 v{vOV}, v{vOV}, 4, v{vT}        ; (l>>5)*4096 + (l&31)*16
  s_lshl_b32 s{sTMP+2}, s{sG}, 1
""")
    set_srd_head(g,sKB,sVB,sTMP+2)
    g(f"""
  s_lshl_b32 s{sOFF}, s{sJ}, 20
  s_lshl_b32 s{sTMP}, s{sW}, 18
  s_add_u32 s{sOFF}, s{sOFF}, s{sTMP}
""")
    if early: g("  s_barrier")
    emit_k_loads(g,0,pol)
    if pace<8: g(f"  s_waitcnt vmcnt({pace})")
    emit_v_loads(g,0,pol)
    g(f"  s_add_u32 s{sOFF}, s{sOFF}, 8192")
    if pace<16: g(f"  s_waitcnt vmcnt({pace})")
    emit_k_loads(g,1,pol)
    if pace<24: g(f"  s_waitcnt vmcnt({pace})")
    emit_v_loads(g,1,pol)
    g(f"""
  s_add_u32 s{sOFF}, s{sOFF}, 8192
  s_mov_b32 s{sCNT}, 30
  s_mov_b32 s{sPH}, 0
  s_mov_b32 s{sCPH}, 0
  s_mov_b32 s{sNXT}, 0
  s_mov_b32 s{sKN}, 0
  s_mov_b32 s{sTRIG}, 0
  s_mov_b32 s{sSKIP}, 1
  s_mov_b32 s{sC}, {f2h(SCALE)}
  s_mov_b32 s{sSLO}, 0x05040100
  s_mov_b32 s{sSHI}, 0x07060302
""")
    load_tags(g,sWS,sT,sTB,sTMP)
    stamp(g,1)
    g("  s_barrier")
    emit_reset_and_q(g)
    stamp(g,2)
    emit_body(g,o,0); emit_body(g,o,1)
    emit_rare(g,0); emit_rare(g,1)
    emit_flush(g,o,0); emit_flush(g,o,1)
    g("L_tail:")
    stamp(g,6)
    if fuset:
        g("  s_waitcnt vmcnt(0)")
        emit_role(g,o,1,'B'); stamp(g,7); emit_role(g,o,0,'A'); stamp(g,8); emit_final(g,o,'f',True)
        g("  s_waitcnt vmcnt(0)")
    else:
        g("  s_waitcnt vmcnt(0)")
    g("  s_branch L_done")
    g(f"""
L_aux:
  v_mov_b32 v0, v{vLANE}
""")
    if opt(o,'prio',True): g("  s_setprio 3")
    if early:
        emit_qproj_issue(g)
        b0=opt(o,'b0wait',63)
        if b0<63: g(f"  s_waitcnt vmcnt({b0})")
        g("  s_barrier")
        stamp(g,8)
    load_tags(g,sWS,sT,sTB,sTMP)
    usecnt = sum(c for c,_ in tab)>0 and not opt(o,'rr',False)
    if usecnt: g(f"""
  s_cmp_eq_u32 s{sJ}, 0
  s_cbranch_scc0 L_noinit
  s_mul_i32 s{sTMP}, s{sG}, {CNT_STRIDE}
  s_add_u32 s{sTMP}, s{sTMP}, {WS_CNT}
  v_mov_b32 v72, s{sTMP}
  v_mov_b32 v74, 0
  v_mov_b32 v75, s{sT}
  s_mov_b64 exec, 1
  global_store_dwordx2 v72, v[74:75], s[{sWS}:{sWS+1}] sc1
  s_mov_b64 exec, -1
L_noinit:
""")
    g(f"""
  v_lshlrev_b32 v76, 2, v0
  v_mov_b32 v77, 0
  v_add_u32 v78, {L_CNT}, v76
  s_mov_b64 exec, 0xffff
  ds_write_b32 v78, v77
  s_mov_b64 exec, -1
  v_mov_b32 v77, -1
  v_add_u32 v78, {L_QUEUE}, v76
  ds_write_b32 v78, v77
  ds_write_b32 v78, v77 offset:256
""")
    stamp(g,1)
    if fuseq:
        if early: emit_qproj_compute(g,'fq',sWS,sT)
        else: emit_qproj(g,'fq',sWS,sT,'q')
    stamp(g,2)
    emit_qgather(g,'m',sWS,sT,sG,"L_fail_aux")
    stamp(g,3)
    g("  s_waitcnt lgkmcnt(0)\n  s_barrier")
    if fuset: emit_wo_stage(g,'m')
    g(f"""
  s_mov_b32 s{sKN}, 1
  s_mul_i32 s{sTMP+8}, s{sG}, {CNT_STRIDE}
  s_add_u32 s{sTMP+8}, s{sTMP+8}, {WS_CNT}
  v_mov_b32 v8, s{sTMP+8}
  v_mov_b32 v9, 1
  v_mov_b32 v10, {L_CNT+12}
""")
    if usecnt:
      g(f"""
  s_mov_b32 s{sTMP+9}, 0
L_cinit:
  global_load_dwordx2 v[14:15], v8, s[{sWS}:{sWS+1}] sc1
  s_waitcnt vmcnt(0)
  v_readfirstlane_b32 s{sTMP}, v15
  s_nop 0
  s_cmp_eq_u32 s{sTMP}, s{sT}
  s_cbranch_scc1 L_cinit_ok
""")
      spin_guard(g,sTMP+9,"L_fail_aux")
      g(f"""
  s_sleep 8
  s_branch L_cinit
L_cinit_ok:
""")
    g(f"""
L_sched:
  s_mov_b32 s{sTMP+9}, 0
L_sched_poll:
  ds_read_b32 v11, v10
  s_waitcnt lgkmcnt(0)
  v_readfirstlane_b32 s{sTMP}, v11
  s_nop 0
  s_cmp_ge_u32 s{sTMP}, s{sKN}
  s_cbranch_scc1 L_sched_go
""")
    spin_guard(g,sTMP+9,"L_fail_aux",limit=1000000)
    g(f"""
  s_sleep 4
  s_branch L_sched_poll
L_sched_go:
""")
    ndyn=sum(c for c,_ in tab)
    if ndyn==0:
        g(f"  s_mov_b32 s{sTMP+1}, -2")
    else:
        if opt(o,'rr',False):
            g(f"  s_sub_u32 s{sTMP}, s{sKN}, 1\n  s_lshl_b32 s{sTMP}, s{sTMP}, 3\n  s_add_u32 s{sTMP}, s{sTMP}, s{sJ}\n  s_mov_b32 s{sTMP+1}, -2")
        else:
            g(f"""
  s_mov_b64 exec, 1
  global_atomic_add v11, v8, v9, s[{sWS}:{sWS+1}] sc0 sc1
  s_mov_b64 exec, -1
  s_waitcnt vmcnt(0)
  v_readfirstlane_b32 s{sTMP}, v11
  s_mov_b32 s{sTMP+1}, -2
""")
        cbase=0; ubase=8*size0
        for n,(cnt,sz) in enumerate(tab):
            g(f"""
  s_cmp_lt_u32 s{sTMP}, {cbase+cnt}
  s_cbranch_scc0 L_tab_{n}
  s_sub_u32 s{sTMP+2}, s{sTMP}, {cbase}
  s_mul_i32 s{sTMP+2}, s{sTMP+2}, {sz}
  s_add_u32 s{sTMP+2}, s{sTMP+2}, {ubase}
  s_lshl_b32 s{sTMP+2}, s{sTMP+2}, 8
  s_or_b32 s{sTMP+1}, s{sTMP+2}, {sz}
  s_branch L_tab_done
L_tab_{n}:""")
            cbase+=cnt; ubase+=cnt*sz
        assert ubase==256,(ubase)
        g("L_tab_done:")
    g(f"""
  s_lshl_b32 s{sTMP+2}, s{sKN}, 2
  s_add_u32 s{sTMP+2}, s{sTMP+2}, {L_QUEUE}
  v_mov_b32 v12, s{sTMP+2}
  v_mov_b32 v13, s{sTMP+1}
  ds_write_b32 v12, v13
  s_add_u32 s{sKN}, s{sKN}, 1
  s_cmp_eq_u32 s{sTMP+1}, -2
  s_cbranch_scc0 L_sched
  s_waitcnt vmcnt(0) lgkmcnt(0)
  s_branch L_done
L_fail_aux:
  v_mov_b32 v24, 0xdeae
  v_mov_b32 v25, 12
  s_mov_b64 exec, 1
  global_store_dword v25, v24, s[{sDBG}:{sDBG+1}]
  s_mov_b64 exec, -1
""")
    fail_and_done(g,name,True)
    return khead(name)+uniq(g.text(),'_m'), kd(name,NARCH,NACC), name

def k_role(o):
    g=G(); name='role_kernel'
    g("  s_cmp_ge_u32 s2, 256\n  s_cbranch_scc1 L_exit")
    load_ptrs(g)
    load_tags(g,sWS,sT,sTB,sTMP)
    g(f"  s_cmp_eq_u32 s{sW}, 0\n  s_cbranch_scc0 L_nostage\n  v_mov_b32 v0, v{vLANE}")
    emit_wo_stage(g,'r')
    g(f"  v_mov_b32 v{vLANE}, v0\n  s_waitcnt vmcnt(0)\nL_nostage:\n  s_barrier")
    emit_role(g,o,1,'B'); emit_role(g,o,0,'A')
    g("  s_waitcnt vmcnt(0)")
    fail_and_done(g,name)
    return khead(name)+uniq(g.text(),'_k3'), kd(name,NARCH,0), name

def k_final(o):
    g=G(); name='final_kernel'
    g("  s_cmp_ge_u32 s2, 256\n  s_cbranch_scc1 L_exit")
    load_ptrs(g)
    load_tags(g,sWS,sT,sTB,sTMP)
    emit_final(g,o,'f',False)
    g("  s_waitcnt vmcnt(0)")
    fail_and_done(g,name)
    return khead(name)+uniq(g.text(),'_k4'), kd(name,NARCH,0), name

HEADER=open('cdna_kernels/'+KN+'.s.ref').read().split('; Override launch geometry')[0]

def build(o):
    global STAMPS
    STAMPS=opt(o,'stamps',False)
    global WQPOL
    WQPOL=o.get('wqpol','nt')
    global WQTEST
    WQTEST=opt(o,'wqtest',0)
    fuseq=opt(o,'fuseq',False); fuset=opt(o,'fuset',False)
    single=fuseq and fuset
    o['single']=single
    ks=[]; launch=[]
    if not fuseq:
        ks.append(k_qproj(o)); launch.append(f"; @launch kernel=qproj_kernel grid=(256,1,1) block=(64,1,1) lds={LDS_SIZE}")
    m=k_main(o); ks.append(m)
    if single: launch.append(f"; @launch grid=(256,1,1) block=(320,1,1) lds={LDS_SIZE}")
    else: launch.append(f"; @launch kernel={m[2]} grid=(256,1,1) block=(320,1,1) lds={LDS_SIZE}")
    if not fuset:
        ks.append(k_role(o)); launch.append(f"; @launch kernel=role_kernel grid=(256,1,1) block=(256,1,1) lds={LDS_SIZE}")
        ks.append(k_final(o)); launch.append(f"; @launch kernel=final_kernel grid=(256,1,1) block=(256,1,1) lds={LDS_SIZE}")
    src=HEADER+"\n".join(launch)+'\n.amdgcn_target "amdgcn-amd-amdhsa--gfx950"\n.text\n'
    src+="".join(k[0] for k in ks)
    src+='.section .rodata,"a"\n'+"".join(k[1] for k in ks)
    if opt(o,'meta',False):
        src+=".amdgpu_metadata\n---\namdhsa.version: [1, 2]\namdhsa.kernels:\n"
        for k in ks:
            src+=f"  - .name: {k[2]}\n    .symbol: {k[2]}.kd\n    .kernarg_segment_size: 104\n    .kernarg_segment_align: 8\n    .group_segment_fixed_size: 0\n    .private_segment_fixed_size: 0\n    .wavefront_size: 64\n    .sgpr_count: 96\n    .vgpr_count: 256\n    .max_flat_workgroup_size: 320\n    .args:\n      - {{.name: kernargs, .size: 104, .offset: 0, .value_kind: by_value}}\n"
        src+="...\n.end_amdgpu_metadata\n"
    return src,launch

if __name__=='__main__':
    out=sys.argv[1]; o=dict(a.split('=',1) for a in sys.argv[2:])
    src,launch=build(o)
    open(out,'w').write(src)
    print("\n".join(launch))
```

```python
import sys
import gen as G1
from gen import *

L_X2=0xE200
sJOFF=31; sRET=33; sX2=34
sPHB=[35,36]; sTGT=41
CTR=L_CNT+16

def stamp(g,i): G1.stamp(g,i)

def claim(g):
    g(f"""
  v_mov_b32 v13, {CTR}
  v_mov_b32 v14, 1
  s_mov_b64 exec, 1
  ds_add_rtn_u32 v12, v13, v14
  s_mov_b64 exec, -1""")

ROT=0; sROT=42
MAP=0
def tile_off(g,si,so):
    if MAP==7:
        if ROT: g(f"  s_add_u32 s{si}, s{si}, s{sROT}\n  s_and_b32 s{si}, s{si}, 127")
        g(f"  s_lshl_b32 s{si}, s{si}, 13\n  s_add_u32 s{so}, s{si}, s{sJOFF}")
    else:
        g(f"""  s_lshr_b32 s{sTMP+1}, s{si}, {MAP}
  s_lshl_b32 s{sTMP+1}, s{sTMP+1}, {16+MAP}
  s_and_b32 s{si}, s{si}, {(1<<MAP)-1}
  s_lshl_b32 s{si}, s{si}, 13
  s_add_u32 s{so}, s{si}, s{sTMP+1}
  s_add_u32 s{so}, s{so}, s{sJOFF}""")

DYN_S=128; DYN_LC=2; DYN_LOOK=6
def decode(g,u):
    dyn = DYN_S<128
    g(f"""
  s_waitcnt lgkmcnt(0)
  v_readfirstlane_b32 s{sTMP}, v12
  s_nop 0
  s_lshr_b32 s{sTMP+1}, s{sTMP}, 7""")
    if dyn: g(f"  s_min_u32 s{sTMP+1}, s{sTMP+1}, 2")
    g(f"""
  s_cmp_eq_u32 s{sTMP+1}, s{sPH}
  s_cbranch_scc0 L_newph_{u}
L_phok_{u}:""")
    if dyn:
        g(f"""
  s_cmp_ge_u32 s{sTMP}, {256+DYN_S}
  s_cbranch_scc1 L_dyn_{u}""")
    g(f"  s_and_b32 s{sTMP}, s{sTMP}, 127")
    tile_off(g,sTMP,sOFF)
    if dyn: g(f"L_dyn_done_{u}:")

def dynpath(g,u):
    if DYN_S>=128: return
    g(f"""
L_dyn_{u}:
  s_sub_u32 s{sTMP}, s{sTMP}, {256+DYN_S}
  s_lshr_b32 s{sTMP+1}, s{sTMP}, {DYN_LC}          ; chunk k
  s_and_b32 s{sTMP}, s{sTMP}, {(1<<DYN_LC)-1}
  s_lshl_b32 s{sTMP+1}, s{sTMP+1}, 2
  s_add_u32 s{sTMP+1}, s{sTMP+1}, {L_QUEUE}
  v_mov_b32 v13, s{sTMP+1}
  s_mov_b32 s{sTMP+2}, 0
L_dyn_poll_{u}:
  ds_read_b32 v12, v13
  s_waitcnt lgkmcnt(0)
  v_readfirstlane_b32 s{sTMP+1}, v12
  s_nop 0
  s_cmp_eq_u32 s{sTMP+1}, -1
  s_cbranch_scc0 L_dyn_got_{u}
""")
    spin_guard(g,sTMP+2,"L_fail")
    if G1.STAMPS: g(f"  s_add_u32 s{G1.sST+11}, s{G1.sST+11}, 1")
    g(f"""
  s_branch L_dyn_poll_{u}
L_dyn_got_{u}:
  s_cmp_eq_u32 s{sTMP+1}, -2
  s_cbranch_scc1 L_dyn_end_{u}
  s_add_u32 s{sTMP}, s{sTMP}, s{sTMP+1}
  s_lshl_b32 s{sOFF}, s{sTMP}, 13
  s_branch L_dyn_done_{u}
L_dyn_end_{u}:
  s_mov_b32 s{sPH}, 3
  s_mov_b32 s{sK+2}, 0
  s_mov_b32 s{sV+2}, 0
  s_mov_b32 s{sOFF}, 0
  s_branch L_dyn_done_{u}""")

def newph(g,u):
    g(f"""
L_newph_{u}:
  s_mov_b32 s{sPH}, s{sTMP+1}
  s_cmp_eq_u32 s{sPH}, 1
  s_cbranch_scc0 L_np2_{u}
  s_lshl_b32 s{sTMP+2}, s{sG}, 1
  s_add_u32 s{sTMP+2}, s{sTMP+2}, 1
  s_mov_b32 s{sTMP+3}, s{sTMP}""")
    set_srd_head(g,sKB,sVB,sTMP+2)
    g(f"""
  s_mov_b32 s{sTMP}, s{sTMP+3}
  s_branch L_phok_{u}
L_np2_{u}:
  s_cmp_eq_u32 s{sPH}, 2
  s_cbranch_scc0 L_np3_{u}
  s_mov_b32 s{sTMP+3}, s{sTMP}""")
    set_srd_head(g,sKA,sVA,sG)
    g(f"""
  s_mov_b32 s{sTMP}, s{sTMP+3}
  s_branch L_phok_{u}
L_np3_{u}:
  s_mov_b32 s{sPH}, 3
  s_mov_b32 s{sK+2}, 0
  s_mov_b32 s{sV+2}, 0
  s_branch L_phok_{u}""")

def body(g,o,b,u,kwait,vwait,load,src='reg',vearly=False):
    pol=o.get('pol','nt'); t=vT
    g(f"L_body_{u}:")
    if src=='lds':
        if HELPER: lds_wait_flag(g,XRDY,'x')
        else: g(f"  s_waitcnt vmcnt({kwait})")
        g(f"""
  v_lshlrev_b32 v13, 4, v{vLANE}
  v_add_u32 v13, s{sX2}, v13""")
        for j in range(8): g(f"  ds_read_b128 a[{aK[b]+4*j}:{aK[b]+4*j+3}], v13 offset:{j*1024}")
        for r in range(8): g(f"  ds_read_b128 v[{vV[b]+4*r}:{vV[b]+4*r+3}], v13 offset:{8192+r*1024}")
        g("  s_waitcnt lgkmcnt(0)")
    else:
        g(f"  s_waitcnt vmcnt({kwait})")
    if load is not None: claim(g)
    for j in range(8):
        c="0" if j==0 else f"v[{vS}:{vS+3}]"
        g(f"  v_mfma_f32_16x16x32_bf16 v[{vS}:{vS+3}], a[{aK[b]+4*j}:{aK[b]+4*j+3}], a[{aQ+4*j}:{aQ+4*j+3}], {c}")
    if load is not None:
        decode(g,u)
        g(f"  s_mov_b32 s{sPHB[load]}, s{sPH}")
        emit_k_loads(g,load,pol)
        if vearly: emit_v_loads(g,load,pol)
    else:
        g("  s_nop 7")
    g(f"""
  v_max3_f32 v{t}, v{vS}, v{vS+1}, v{vS+2}
  v_max_f32 v{t}, v{t}, v{vS+3}
  v_mov_b32 v{t+1}, v{t}
  s_nop 1
  v_permlane16_swap_b32 v{t}, v{t+1}
  v_max_f32 v{t}, v{t}, v{t+1}
  v_mov_b32 v{t+1}, v{t}
  s_nop 1
  v_permlane32_swap_b32 v{t}, v{t+1}
  v_max_f32 v{t}, v{t}, v{t+1}
  v_cmp_gt_f32 vcc, v{t}, v{vM}
  s_cbranch_vccnz L_rare_{u}
L_back_{u}:
  v_fma_f32 v{t+2}, v{vS}, s{sC}, -v{vMC}
  v_fma_f32 v{t+3}, v{vS+1}, s{sC}, -v{vMC}
  v_fma_f32 v{t+4}, v{vS+2}, s{sC}, -v{vMC}
  v_fma_f32 v{t+5}, v{vS+3}, s{sC}, -v{vMC}
  v_exp_f32 v{t+2}, v{t+2}
  v_exp_f32 v{t+3}, v{t+3}
  v_exp_f32 v{t+4}, v{t+4}
  v_exp_f32 v{t+5}, v{t+5}
  v_add_f32 v{t+6}, v{t+2}, v{t+3}
  v_cvt_pk_bf16_f32 v{vP}, v{t+2}, v{t+3}
  v_add_f32 v{t+7}, v{t+4}, v{t+5}
  v_cvt_pk_bf16_f32 v{vP+1}, v{t+4}, v{t+5}
  v_add_f32 v{t+6}, v{t+6}, v{t+7}
  v_mov_b32 v{vP+2}, v{vP}
  v_mov_b32 v{vP+3}, v{vP+1}
  v_add_f32 v{vL}, v{vL}, v{t+6}
  s_nop 0
  v_permlane16_swap_b32 v{vP}, v{vP+2}
  v_permlane16_swap_b32 v{vP+1}, v{vP+3}""")
    if vwait is not None: g(f"  s_waitcnt vmcnt({vwait})")
    for t2 in range(2):
        R=[vV[b]+4*(4*t2+rr) for rr in range(4)]
        for dw in range(4):
            g(f"  v_perm_b32 v{vB+4*dw}, v{R[1]+dw}, v{R[0]+dw}, s{sSLO}")
            g(f"  v_perm_b32 v{vB+4*dw+1}, v{R[3]+dw}, v{R[2]+dw}, s{sSLO}")
            g(f"  v_perm_b32 v{vB+4*dw+2}, v{R[1]+dw}, v{R[0]+dw}, s{sSHI}")
            g(f"  v_perm_b32 v{vB+4*dw+3}, v{R[3]+dw}, v{R[2]+dw}, s{sSHI}")
        for jj in range(8):
            a=vACC+4*jj
            g(f"  v_mfma_f32_4x4x4_16b_bf16 v[{a}:{a+3}], v[{vP+2*t2}:{vP+2*t2+1}], v[{vB+2*jj}:{vB+2*jj+1}], v[{a}:{a+3}]")
    if load is not None and not vearly: emit_v_loads(g,load,pol)

def rare(g,u):
    t=vT
    g(f"""
L_rare_{u}:
  v_max_f32 v{t+1}, v{t}, v{vM}
  v_sub_f32 v{t+2}, v{vM}, v{t+1}
  v_mul_f32 v{t+2}, s{sC}, v{t+2}
  v_exp_f32 v{t+2}, v{t+2}
  v_mov_b32 v{vM}, v{t+1}
  v_mul_f32 v{vMC}, s{sC}, v{t+1}
  v_mul_f32 v{vL}, v{vL}, v{t+2}
  s_nop 0
  v_mov_b32_dpp v{t+3}, v{t+2} quad_perm:[0,0,2,2] row_mask:0xf bank_mask:0xf
  v_mov_b32_dpp v{t+4}, v{t+2} quad_perm:[1,1,3,3] row_mask:0xf bank_mask:0xf
""")
    for jj in range(8):
        g(f"  v_mul_f32 v{vACC+4*jj}, v{vACC+4*jj}, v{t+3}")
        g(f"  v_mul_f32 v{vACC+4*jj+1}, v{vACC+4*jj+1}, v{t+4}")
    g(f"  s_branch L_back_{u}")

def phase_check(g,ret,deep=False):
    src = sPHB[ret] if deep else sPH
    g(f"""
  s_mov_b32 s{sTGT}, s{src}
  s_cmp_eq_u32 s{sTGT}, s{sCPH}
  s_mov_b32 s{sRET}, {ret}
  s_cbranch_scc0 L_flush""")

def reset_state(g):
    g(f"""
  v_mov_b32 v{vM}, 0xff800000
  v_mov_b32 v{vMC}, 0xff800000
  v_mov_b32 v{vL}, 0""")
    for r in range(32): g(f"  v_mov_b32 v{vACC+r}, 0")

def read_q(g):
    t=vT
    g(f"""
  v_and_b32 v{t}, 1, v{vLANE}
  s_cmp_eq_u32 s{sCPH}, 2
  s_cselect_b32 s{sTMP}, 512, 0
  v_mul_u32_u24 v{t}, s{sTMP}, v{t}
  s_lshl_b32 s{sTMP}, s{sCPH}, 9
  s_add_u32 s{sTMP}, s{sTMP}, {L_QC}
  v_add_u32 v{t}, s{sTMP}, v{t}
  v_lshrrev_b32 v{t+1}, 4, v{vLANE}
  v_lshl_add_u32 v{t}, v{t+1}, 4, v{t}
""")
    for j in range(8):
        g(f"  ds_read_b128 a[{aQ+4*j}:{aQ+4*j+3}], v{t} offset:{j*64}")
    g("  s_waitcnt lgkmcnt(0)")

def flush(g,o):
    h=G(); G1.emit_flush(h,o,0)
    txt=h.text()
    cut="  ; destination indices:"
    txt=txt[:txt.index(cut)].replace("L_flush_b0","L_flush").replace("L_nomerge_b0","L_nomerge")
    g(txt)
    t=vT; A=vB; D=vACC
    g(f"""
  s_lshl_b32 s{sTMP}, s{sCPH}, 6
  s_add_u32 s{sTMP}, s{sTMP}, {L_ST}
  v_mov_b32 v20, s{sTMP}
  s_lshl_b32 s{sTMP}, s{sCPH}, 13
  s_add_u32 s{sTMP}, s{sTMP}, {L_FL}
  v_lshlrev_b32 v21, 4, v{vLANE}
  v_add_u32 v22, s{sTMP}, v21""")
    for w in range(4): g(f"  ds_read_b128 v[{A+4*w}:{A+4*w+3}], v20 offset:{16*w}")
    for w in range(4): g(f"  ds_read_b128 v[{D+4*w}:{D+4*w+3}], v22 offset:{2048*w}")
    for w in range(4): g(f"  ds_read_b128 v[{D+16+4*w}:{D+16+4*w+3}], v22 offset:{2048*w+1024}")
    g(f"""
  s_and_b32 s{sTMP+2}, s{sG}, 7
  s_lshl_b32 s{sTMP+2}, s{sTMP+2}, 1          ; hq0
  s_lshr_b32 s{sTMP+3}, s{sG}, 3              ; b
  s_cmp_eq_u32 s{sCPH}, 2
  s_cselect_b32 s{sTMP+4}, 0, 16              ; p*16
  s_cselect_b32 s{sTMP+5}, 0, s{sCPH}
  s_add_u32 s{sTMP+2}, s{sTMP+2}, s{sTMP+4}
  s_add_u32 s{sTMP+2}, s{sTMP+2}, s{sTMP+5}   ; p*16+hq
  s_lshl_b32 s{sTMP+2}, s{sTMP+2}, 2
  s_add_u32 s{sTMP+2}, s{sTMP+2}, s{sTMP+3}   ; *4 + b
  s_lshl_b32 s{sTMP+2}, s{sTMP+2}, 3
  s_add_u32 s{sTMP+2}, s{sTMP+2}, s{sJ}
  s_lshl_b32 s{sTMP}, s{sTMP+2}, 10
  s_add_u32 s{sTMP}, s{sTMP}, {WS_PART}
  v_add_u32 v21, s{sTMP}, v21
  s_lshl_b32 s{sTMP}, s{sTMP+2}, 4
  s_add_u32 s{sTMP}, s{sTMP}, {WS_STAT}
  v_mov_b32 v23, s{sTMP}
  v_mov_b32 v{vX}, s{sTB}
  s_waitcnt lgkmcnt(8)
  v_max3_f32 v16, v{A}, v{A+4}, v{A+8}
  v_max3_f32 v17, v{A+2}, v{A+6}, v{A+10}
  v_max_f32 v16, v16, v{A+12}                 ; M0
  v_max_f32 v17, v17, v{A+14}                 ; M1""")
    for w in range(4): g(f"  v_sub_f32 v{A+4*w}, v{A+4*w}, v16\n  v_sub_f32 v{A+4*w+2}, v{A+4*w+2}, v17")
    for w in range(4): g(f"  v_exp_f32 v{A+4*w}, v{A+4*w}\n  v_exp_f32 v{A+4*w+2}, v{A+4*w+2}")
    g(f"""  s_nop 0
  v_mul_f32 v18, v{A}, v{A+1}
  v_mul_f32 v19, v{A+2}, v{A+3}""")
    for w in range(1,4): g(f"  v_fmac_f32 v18, v{A+4*w}, v{A+4*w+1}\n  v_fmac_f32 v19, v{A+4*w+2}, v{A+4*w+3}")
    g("  s_waitcnt lgkmcnt(4)")
    for k in range(4): g(f"  v_mul_f32 v{8+k}, v{A}, v{D+k}")
    for w in range(1,4):
        for k in range(4): g(f"  v_fmac_f32 v{8+k}, v{A+4*w}, v{D+4*w+k}")
    tag_embed(g,[8,9,10,11],vX,sTMP)
    g(f"""
  global_store_dwordx4 v21, v[8:11], s[{sWS}:{sWS+1}] sc1
  s_cmp_eq_u32 s{sCPH}, 2
  s_cbranch_scc0 L_m_one
  s_waitcnt lgkmcnt(0)""")
    for k in range(4): g(f"  v_mul_f32 v{12+k}, v{A+2}, v{D+16+k}")
    for w in range(1,4):
        for k in range(4): g(f"  v_fmac_f32 v{12+k}, v{A+4*w+2}, v{D+16+4*w+k}")
    tag_embed(g,[12,13,14,15],vX,sTMP)
    g(f"""
  v_add_u32 v21, 32768, v21
  global_store_dwordx4 v21, v[12:15], s[{sWS}:{sWS+1}] sc1
  v_mov_b32 v{D+4}, v17
  v_mov_b32 v{D+5}, s{sT}
  v_mov_b32 v{D+6}, v19
  v_mov_b32 v{D+7}, s{sT}
  s_mov_b64 exec, 1
  global_store_dwordx4 v23, v[{D+4}:{D+7}], s[{sWS}:{sWS+1}] offset:512 sc1
  s_mov_b64 exec, -1
L_m_one:
  v_mov_b32 v{D}, v16
  v_mov_b32 v{D+1}, s{sT}
  v_mov_b32 v{D+2}, v18
  v_mov_b32 v{D+3}, s{sT}
  s_mov_b64 exec, 1
  global_store_dwordx4 v23, v[{D}:{D+3}], s[{sWS}:{sWS+1}] sc1
  s_mov_b64 exec, -1
  s_waitcnt lgkmcnt(0)
L_nomerge:
  s_add_u32 s{sCPH}, s{sCPH}, 1
  s_cmp_eq_u32 s{sCPH}, 3
  s_cbranch_scc1 L_tail
  s_nop 0""")
    reset_state(g)
    g(f"""
  s_cmp_lt_u32 s{sCPH}, s{sTGT}
  s_cbranch_scc1 L_flush""")
    lds_wait_flag(g,QFLAG,'qf')
    read_q(g)
    g(f"""
  s_cmp_eq_u32 s{sRET}, 0
  s_cbranch_scc1 L_body_b0
  s_branch L_body_b1""")

QFLAG=L_CNT+20
QRDY=L_CNT+24
XRDY=L_CNT+28
HELPER=False
def lds_wait_flag(g,addr,u,fail='L_fail'):
    g(f"""
  v_mov_b32 v13, {addr}
  s_mov_b32 s{sTMP+2}, 0
L_fw_{u}:
  ds_read_b32 v12, v13
  s_waitcnt lgkmcnt(0)
  v_readfirstlane_b32 s{sTMP}, v12
  s_nop 0
  s_cmp_eq_u32 s{sTMP}, 1
  s_cbranch_scc1 L_fwok_{u}""")
    spin_guard(g,sTMP+2,fail,limit=2000000)
    g(f"  s_branch L_fw_{u}\nL_fwok_{u}:")
def qgather2(g,o):
    NS=opt(o,'npoll',6); R0=8
    g(f"""
  s_lshl_b32 s44, s{sG}, 11           ; 2g*1024
  s_add_u32 s44, s44, {WS_QG}
  v_lshlrev_b32 v1, 4, v0
  v_add_u32 v1, s44, v1               ; A vectors (p=0)
  v_add_u32 v2, 0x10000, v1           ; B vectors (p=1)
  v_lshlrev_b32 v3, 3, v0
  v_add_u32 v3, {L_QC}, v3
  s_mov_b32 s45, 0""")
    for i in range(NS):
        g(f"  global_load_dwordx4 v[{R0+4*i}:{R0+4*i+3}], v2, s[{sWS}:{sWS+1}] sc1")
        if i<NS-1: g(f"  s_sleep {opt(o,'pollgap',2)}")
    g("L_qg_loop:")
    for i in range(NS):
        r=R0+4*i
        g(f"""
  s_waitcnt vmcnt({NS-1})
  v_xor_b32 v4, s{sT}, v{r+1}
  v_xor_b32 v5, s{sT}, v{r+3}
  v_or_b32 v4, v4, v5
  v_cmp_ne_u32 vcc, 0, v4
  s_cbranch_vccz L_qg_ok{i}
  global_load_dwordx4 v[{r}:{r+3}], v2, s[{sWS}:{sWS+1}] sc1""")
    spin_guard(g,45,"L_fail_aux")
    g("  s_branch L_qg_loop")
    for i in range(NS):
        r=R0+4*i
        g(f"""
L_qg_ok{i}:
  v_mov_b32 v{r+1}, v{r+2}
  ds_write_b64 v3, v[{r}:{r+1}]
  s_branch L_qg_first""")
    g("L_qg_first:")
    stamp(g,3)
    if HELPER: g(f"  s_waitcnt lgkmcnt(0)\n  v_mov_b32 v4, {QRDY}\n  v_mov_b32 v5, 1\n  ds_write_b32 v4, v5")
    else: g("  s_waitcnt lgkmcnt(0)\n  s_barrier")
    g(f"""
  s_waitcnt vmcnt(0)
  s_mov_b32 s45, 0
L_qg2_poll:
  global_load_dwordx4 v[12:15], v2, s[{sWS}:{sWS+1}] offset:1024 sc1
  global_load_dwordx4 v[16:19], v1, s[{sWS}:{sWS+1}] sc1
  global_load_dwordx4 v[20:23], v1, s[{sWS}:{sWS+1}] offset:1024 sc1
  s_waitcnt vmcnt(0)
  v_xor_b32 v13, s{sT}, v13
  v_xor_b32 v15, s{sT}, v15
  v_xor_b32 v17, s{sT}, v17
  v_xor_b32 v19, s{sT}, v19
  v_xor_b32 v21, s{sT}, v21
  v_xor_b32 v23, s{sT}, v23
  v_or3_b32 v13, v13, v15, v17
  v_or3_b32 v13, v13, v19, v21
  v_or_b32 v13, v13, v23
  v_cmp_ne_u32 vcc, 0, v13
  s_cbranch_vccz L_qg2_ok""")
    spin_guard(g,45,"L_fail_aux")
    g(f"""
  s_sleep 8
  s_branch L_qg2_poll
L_qg2_ok:
  v_mov_b32 v13, v14
  v_mov_b32 v17, v18
  v_mov_b32 v21, v22
  ds_write_b64 v3, v[12:13] offset:512
  ds_write_b64 v3, v[16:17] offset:1024
  ds_write_b64 v3, v[20:21] offset:1536
  s_waitcnt lgkmcnt(0)
  v_mov_b32 v4, {QFLAG}
  v_mov_b32 v5, 1
  ds_write_b32 v4, v5""")

def sched(g):
    C=1<<DYN_LC; cpj=(128-DYN_S)//C; assert cpj*C==128-DYN_S and cpj&(cpj-1)==0
    lcpj=cpj.bit_length()-1; nch=8*cpj
    assert nch+8+4 < 128
    sKQ=62
    g(f"""
  s_mul_i32 s{sTMP+8}, s{sG}, {CNT_STRIDE}
  s_add_u32 s{sTMP+8}, s{sTMP+8}, {WS_CNT}
  v_mov_b32 v8, s{sTMP+8}
  v_mov_b32 v9, 1
  v_mov_b32 v10, {CTR}
  s_mov_b32 s{sTMP+9}, 0
L_cinit:
  global_load_dwordx2 v[14:15], v8, s[{sWS}:{sWS+1}] sc1
  s_waitcnt vmcnt(0)
  v_readfirstlane_b32 s{sTMP}, v15
  s_nop 0
  s_cmp_eq_u32 s{sTMP}, s{sT}
  s_cbranch_scc1 L_cinit_ok""")
    spin_guard(g,sTMP+9,"L_fail_aux")
    g(f"""
  s_sleep 8
  s_branch L_cinit
L_cinit_ok:
  s_mov_b32 s{sKQ}, 0
  s_mov_b32 s{sKQ+1}, {256+DYN_S-DYN_LOOK}
L_sched:
  s_mov_b32 s{sTMP+9}, 0
L_sched_poll:
  ds_read_b32 v11, v10
  s_waitcnt lgkmcnt(0)
  v_readfirstlane_b32 s{sTMP}, v11
  s_nop 0
  s_cmp_ge_u32 s{sTMP}, s{sKQ+1}
  s_cbranch_scc1 L_sched_go""")
    spin_guard(g,sTMP+9,"L_fail_aux",limit=1000000)
    g(f"""
  s_sleep 2
  s_branch L_sched_poll
L_sched_go:
  s_mov_b64 exec, 1
  global_atomic_add v11, v8, v9, s[{sWS}:{sWS+1}] sc0 sc1
  s_mov_b64 exec, -1
  s_waitcnt vmcnt(0)
  v_readfirstlane_b32 s{sTMP}, v11
  s_lshl_b32 s{sTMP+3}, s{sKQ}, 2
  s_add_u32 s{sTMP+3}, s{sTMP+3}, {L_QUEUE}
  v_mov_b32 v12, s{sTMP+3}
  s_cmp_lt_u32 s{sTMP}, {nch}
  s_cbranch_scc0 L_sched_end
  s_lshr_b32 s{sTMP+1}, s{sTMP}, {lcpj}        ; j'
  s_lshl_b32 s{sTMP+1}, s{sTMP+1}, 7
  s_and_b32 s{sTMP+2}, s{sTMP}, {cpj-1}
  s_lshl_b32 s{sTMP+2}, s{sTMP+2}, {DYN_LC}
  s_add_u32 s{sTMP+1}, s{sTMP+1}, s{sTMP+2}
  s_add_u32 s{sTMP+1}, s{sTMP+1}, {DYN_S}
  v_mov_b32 v13, s{sTMP+1}
  ds_write_b32 v12, v13
  s_add_u32 s{sKQ}, s{sKQ}, 1
  s_add_u32 s{sKQ+1}, s{sKQ+1}, {C}
  s_branch L_sched
L_sched_end:
  v_mov_b32 v13, -2
  ds_write_b32 v12, v13
  ds_write_b32 v12, v13 offset:4
  ds_write_b32 v12, v13 offset:8
  ds_write_b32 v12, v13 offset:12
  ds_write_b32 v12, v13 offset:16
  s_mov_b32 s34, s{sKQ}""")

def tags_from_epoch(g):
    h=G(); load_tags(h,sWS,sT,sTB,sTMP); L=h.text().split('\n')
    L=[l for l in L if 's_load_dword' not in l]
    g("\n".join(L))

def aux_b(g,o):
    sL=61
    g(f"""
  v_mov_b32 v10, {CTR}
  s_mov_b32 s{sTMP+9}, 0
L_bw_poll:
  ds_read_b32 v11, v10
  s_waitcnt lgkmcnt(0)
  v_readfirstlane_b32 s{sTMP}, v11
  s_nop 0
  s_cmp_ge_u32 s{sTMP}, {256+opt(o,'bstart',40)}
  s_cbranch_scc1 L_bw_go""")
    spin_guard(g,sTMP+9,"L_fail_aux",limit=1000000)
    g("""
  s_sleep 16
  s_branch L_bw_poll
L_bw_go:""")
    abl=opt(o,'abl',9)
    if abl>=1: emit_wo_stage(g,'b',which=(1,))
    if abl<2:
        g("  s_waitcnt vmcnt(0)"); return
    g(f"  v_mov_b32 v{vLANE}, v0\n  s_mov_b32 s{sL}, 0\nL_b1:")
    emit_role(g,o,1,'Bx',wreg=sL,fail="L_fail_aux",sleep=opt(o,'bsleep',32),part=1)
    g(f"  s_add_u32 s{sL}, s{sL}, 1\n  s_cmp_lt_u32 s{sL}, 4\n  s_cbranch_scc1 L_b1\n  s_waitcnt vmcnt(0) lgkmcnt(0)\n  s_mov_b32 s{sL}, 0\nL_b2:")
    if abl<3: return
    emit_role(g,o,1,'Bx',wreg=sL,part=2)
    g(f"  s_add_u32 s{sL}, s{sL}, 1\n  s_cmp_lt_u32 s{sL}, 4\n  s_cbranch_scc1 L_b2")
    if not opt(o,'bfinlate',False): aux_bfinal(g,o)

def aux_bfinal(g,o):
    g(f"  v_mov_b32 v{vLANE}, v0")
    emit_final(g,o,'fb',False,lo=112,hi=224,loopw=61,fail="L_fail_aux",done="L_bfin_done",fb=L_FB+256,fsleep=opt(o,'bfsleep',16))
    g("L_bfin_done:")

def wo_touch(g,o):
    g(f"""
  s_load_dwordx2 s[48:49], s[0:1], 32
  s_load_dwordx2 s[52:53], s[0:1], 72
  s_lshr_b32 s44, s2, 2
  s_mul_i32 s44, s44, {64*896}
  v_lshlrev_b32 v2, 12, v0
  s_waitcnt lgkmcnt(0)
  s_and_b32 s49, s49, 0xffff
  s_mov_b32 s50, 3670016
  s_mov_b32 s51, 0x20000
  s_and_b32 s53, s53, 0xffff
  s_mov_b32 s54, 3670016
  s_mov_b32 s55, 0x20000
  s_mov_b64 exec, 0x7fff
  buffer_load_dword v3, v2, s[48:51], s44 offen nt
  buffer_load_dword v4, v2, s[52:55], s44 offen nt
  s_mov_b64 exec, -1
  s_waitcnt vmcnt(0)""")

def lds_init(g,extra):
    if DYN_S<128:
        g(f"""
  v_lshlrev_b32 v76, 2, v0
  v_mov_b32 v77, -1
  v_add_u32 v78, {L_QUEUE}, v76
  ds_write_b32 v78, v77
  ds_write_b32 v78, v77 offset:256""")
    g(f"""
  v_lshlrev_b32 v76, 2, v0
  v_mov_b32 v77, 0
  v_add_u32 v78, {L_CNT}, v76
  s_mov_b64 exec, 0xffff
  ds_write_b32 v78, v77
  s_mov_b64 exec, -1
  s_waitcnt lgkmcnt(0)
  v_mov_b32 v77, {12 if extra else 8}
  v_mov_b32 v78, {CTR}
  ds_write_b32 v78, v77
""")

def helper_wave(g,o):
    pol=o.get('pol','nt')
    g(f"""
L_help:
  v_mov_b32 v0, v{vLANE}""")
    lds_init(g,True)
    g(f"""
  v_and_b32 v{vOK}, 15, v{vLANE}
  v_lshlrev_b32 v{vOK}, 9, v{vOK}
  v_lshrrev_b32 v{vT}, 4, v{vLANE}
  v_lshl_add_u32 v{vOK}, v{vT}, 4, v{vOK}
  v_lshrrev_b32 v{vT}, 5, v{vLANE}
  v_lshlrev_b32 v{vT}, 12, v{vT}
  v_and_b32 v{vOV}, 31, v{vLANE}
  v_lshl_add_u32 v{vOV}, v{vOV}, 4, v{vT}
  s_lshl_b32 s{sTMP+2}, s{sG}, 1""")
    set_srd_head(g,sKB,sVB,sTMP+2)
    g(f"""
  s_lshl_b32 s{sJOFF}, s{sJ}, {13+MAP}
  s_mul_i32 s{sROT}, s2, {ROT}
  s_waitcnt lgkmcnt(0)
  s_barrier
  s_sleep {opt(o,'helpdelay',16)}""")
    for w in range(4):
        g(f"  s_mov_b32 s{sTMP}, {8+w}"); tile_off(g,sTMP,sOFF)
        base=L_X2+w*16384
        for j in range(8):
            g(f"  s_mov_b32 m0, {base+j*1024-j*64}\n  s_nop 0\n  buffer_load_dwordx4 v{vOK}, s[{sK}:{sK+3}], s{sOFF} offen offset:{j*64} {pol} lds")
        for r in range(8):
            g(f"  s_mov_b32 m0, {base+8192+r*1024-r*512}\n  s_nop 0\n  buffer_load_dwordx4 v{vOV}, s[{sV}:{sV+3}], s{sOFF} offen offset:{r*512} {pol} lds")
    g(f"""
  s_waitcnt vmcnt(0)
  v_mov_b32 v4, {XRDY}
  v_mov_b32 v5, 1
  ds_write_b32 v4, v5
  s_waitcnt lgkmcnt(0)
  s_branch L_exit""")

def k_main2(o):
    g=G(); name=KN+'_kernel'
    pol=o.get('pol','nt'); pace=opt(o,'pace',32); extra=opt(o,'extra',False); vearly=opt(o,'vearly',o.get('sched','s2')=='s2')
    g("  s_cmp_ge_u32 s2, 256\n  s_cbranch_scc1 L_exit")
    emit_qproj_ptrs(g)
    if opt(o,'remap',False):
        G1.RQ=82; G1.RO=83
        g(f"""
  s_lshr_b32 s84, s2, 3               ; a
  s_and_b32 s85, s2, 7                ; x
  s_lshr_b32 s82, s84, 1
  s_and_b32 s82, s82, 7
  s_lshl_b32 s82, s82, 4              ; (a'>>1)<<4
  s_lshl_b32 s86, s85, 1
  s_or_b32 s82, s82, s86
  s_and_b32 s86, s84, 1
  s_or_b32 s82, s82, s86
  s_and_b32 s86, s2, 128
  s_or_b32 s82, s82, s86              ; q role = p<<7 | c
  s_lshr_b32 s83, s84, 2
  s_lshl_b32 s83, s83, 3
  s_add_u32 s83, s83, s85
  s_lshl_b32 s83, s83, 2
  s_and_b32 s86, s84, 3
  s_or_b32 s83, s83, s86""")
    else:
        G1.RQ=2; G1.RO=2
    load_ptrs(g)
    G1.stamp_init(g); stamp(g,0)
    g(f"  s_load_dword s{sT}, s[{sWS}:{sWS+1}], {WS_EPOCH}")
    global HELPER
    HELPER=opt(o,'helper',False)
    if HELPER:
        extra=True
        g(f"  s_cmp_eq_u32 s{sW}, 5\n  s_cbranch_scc1 L_help")
    g(f"""
  s_cmp_eq_u32 s{sW}, 4
  s_cbranch_scc1 L_aux
  v_and_b32 v{vOK}, 15, v{vLANE}
  v_lshlrev_b32 v{vOK}, 9, v{vOK}
  v_lshrrev_b32 v{vT}, 4, v{vLANE}
  v_lshl_add_u32 v{vOK}, v{vT}, 4, v{vOK}        ; (l&15)*512 + (l>>4)*16
  v_lshrrev_b32 v{vT}, 5, v{vLANE}
  v_lshlrev_b32 v{vT}, 12, v{vT}
  v_and_b32 v{vOV}, 31, v{vLANE}
  v_lshl_add_u32 v{vOV}, v{vOV}, 4, v{vT}        ; (l>>5)*4096 + (l&31)*16
  s_lshl_b32 s{sTMP+2}, s{sG}, 1
""")
    set_srd_head(g,sKB,sVB,sTMP+2)
    g(f"""
  s_lshl_b32 s{sJOFF}, s{sJ}, {13+MAP}
  s_mul_i32 s{sROT}, s2, {ROT}
  s_mov_b32 s{sTMP}, s{sW}""")
    tile_off(g,sTMP,sOFF)
    g(f"""
  s_lshl_b32 s{sX2}, s{sW}, 14
  s_add_u32 s{sX2}, s{sX2}, {L_X2}
  s_barrier
""")
    def pw(n):
        if pace<n: g(f"  s_waitcnt vmcnt({pace})")
    emit_k_loads(g,0,pol); pw(8); emit_v_loads(g,0,pol)
    g(f"  s_add_u32 s{sTMP}, s{sW}, 4"); tile_off(g,sTMP,sOFF)
    pw(16); emit_k_loads(g,1,pol); pw(24); emit_v_loads(g,1,pol)
    if extra and not HELPER:
        g(f"  s_add_u32 s{sTMP}, s{sW}, 8"); tile_off(g,sTMP,sOFF)
        pw(32)
        for j in range(8):
            g(f"  s_add_u32 m0, s{sX2}, {j*1024-j*64}\n  s_nop 0\n  buffer_load_dwordx4 v{vOK}, s[{sK}:{sK+3}], s{sOFF} offen offset:{j*64} {pol} lds")
        pw(40)
        for r in range(8):
            g(f"  s_add_u32 m0, s{sX2}, {8192+r*1024-r*512}\n  s_nop 0\n  buffer_load_dwordx4 v{vOV}, s[{sV}:{sV+3}], s{sOFF} offen offset:{r*512} {pol} lds")
    g(f"""
  s_mov_b32 s{sPH}, 0
  s_mov_b32 s{sCPH}, 0
  s_mov_b32 s{sC}, {f2h(SCALE)}
  s_mov_b32 s{sSLO}, 0x05040100
  s_mov_b32 s{sSHI}, 0x07060302
""")
    tags_from_epoch(g)
    reset_state(g)
    stamp(g,1)
    if HELPER: lds_wait_flag(g,QRDY,'q')
    else: g("  s_barrier")
    read_q(g)
    stamp(g,2)
    deep=o.get('sched','s2')=='s3'
    if deep:
        g(f"  s_mov_b32 s{sPHB[0]}, 0\n  s_mov_b32 s{sPHB[1]}, 0")
        body(g,o,0,'b0',24,24,0); phase_check(g,1,True)
        body(g,o,1,'b1',24,24,1); phase_check(g,0,True)
        g("  s_branch L_body_b0")
    else:
        if extra and HELPER:
            body(g,o,0,'s0',24,24,0)
            body(g,o,1,'s1',24,16,None)
            body(g,o,1,'s2',16,None,None,src='lds')
            phase_check(g,0)
            g("  s_branch L_body_b0")
        elif extra:
            body(g,o,0,'s0',40,40,0)
            body(g,o,1,'s1',40,32,None)
            body(g,o,1,'s2',16,None,None,src='lds')
            phase_check(g,0)
            g("  s_branch L_body_b0")
        else:
            body(g,o,0,'s0',24,24,0)
            body(g,o,1,'s1',24,16,None)
            phase_check(g,0)
            g("  s_branch L_body_b0")
        body(g,o,0,'b0',8,16 if vearly else 8,1,vearly=vearly); phase_check(g,1)
        body(g,o,1,'b1',8,16 if vearly else 8,0,vearly=vearly); phase_check(g,0)
        g("  s_branch L_body_b0")
    us=([] if deep else ['s0','s1']+(['s2'] if extra else []))+['b0','b1']
    for u in us: rare(g,u)
    for u in ([] if deep else ['s0'])+['b0','b1']: newph(g,u); dynpath(g,u)
    flush(g,o)
    g("L_tail:")
    stamp(g,6)
    if opt(o,'tailwait',False): g("  s_waitcnt vmcnt(0)")
    auxb=opt(o,'auxb',False) and DYN_S<128
    if auxb:
        stamp(g,7); emit_role(g,o,0,'A',sleep=opt(o,'rsleep',1)); stamp(g,8); emit_final(g,o,'f',True,lo=0,hi=112,fsleep=opt(o,'fsleep',1))
    else:
        emit_role(g,o,1,'B',sleep=opt(o,'rsleep',1)); stamp(g,7); emit_role(g,o,0,'A',sleep=opt(o,'rsleep',1)); stamp(g,8); emit_final(g,o,'f',True,fsleep=opt(o,'fsleep',1))
    g("  s_waitcnt vmcnt(0)")
    g("  s_branch L_done")
    g(f"""
L_aux:
  v_mov_b32 v0, v{vLANE}
  s_setprio 3""")
    emit_qproj_issue(g)
    b0=opt(o,'b0wait',63)
    if b0<63: g(f"  s_waitcnt vmcnt({b0})")
    g("  s_barrier")
    stamp(g,8)
    tags_from_epoch(g)
    if not HELPER: lds_init(g,extra)
    stamp(g,1)
    emit_qproj_compute(g,'fq',sWS,sT)
    stamp(g,2)
    if opt(o,'qg2',True): qgather2(g,o)
    else:
        emit_qgather(g,'m',sWS,sT,sG,"L_fail_aux")
        stamp(g,3)
        g(f"  v_mov_b32 v4, {QFLAG}\n  v_mov_b32 v5, 1\n  ds_write_b32 v4, v5\n  s_waitcnt lgkmcnt(0)\n  s_barrier")
    if DYN_S<128:
        g(f"""
  s_cmp_eq_u32 s{sJ}, 0
  s_cbranch_scc0 L_noinit
  s_mul_i32 s{sTMP}, s{sG}, {CNT_STRIDE}
  s_add_u32 s{sTMP}, s{sTMP}, {WS_CNT}
  v_mov_b32 v72, s{sTMP}
  v_mov_b32 v74, 0
  v_mov_b32 v75, s{sT}
  s_mov_b64 exec, 1
  global_store_dwordx2 v72, v[74:75], s[{sWS}:{sWS+1}] sc1
  s_mov_b64 exec, -1
L_noinit:""")
    wolate=opt(o,'wolate',False) and DYN_S<128
    if auxb:
        aux_b(g,o)
        sched(g)
        emit_wo_stage(g,'m',which=(0,))
        if opt(o,'bfinlate',False) and opt(o,'abl',9)>=4: aux_bfinal(g,o)
    else:
        if opt(o,'wotouch',False): wo_touch(g,o)
        if not wolate: emit_wo_stage(g,'m')
        if DYN_S<128: sched(g)
        if wolate and not opt(o,'nowo',False): emit_wo_stage(g,'m')
    g(f"""
  s_waitcnt vmcnt(0) lgkmcnt(0)
  s_branch L_done
L_fail_aux:
  v_mov_b32 v24, 0xdeae
  v_mov_b32 v25, 12
  s_mov_b64 exec, 1
  global_store_dword v25, v24, s[{sDBG}:{sDBG+1}]
  s_mov_b64 exec, -1
""")
    if HELPER:
        g("  s_branch L_done")
        helper_wave(g,o)
    if opt(o,'dbgst',False):
        h=G(); fail_and_done(h,name,False); t=h.text()
        extra_code=f"""L_done:
  s_memrealtime s[80:81]
  s_waitcnt lgkmcnt(0)
  s_mov_b32 s73, s80
  s_cmp_eq_u32 s{sW}, 0
  s_cbranch_scc0 L_exit
  s_not_b32 s80, s64
  v_mov_b32 v24, 0
  v_mov_b32 v25, s80
  s_mov_b64 exec, 1
  global_atomic_umax v24, v25, s[{sDBG}:{sDBG+1}] sc1
"""
        for k,slot in ((2,1),(3,2),(4,3),(5,4),(9,5)):
            extra_code+=f"  v_mov_b32 v25, s{64+k}\n  global_atomic_umax v24, v25, s[{sDBG}:{sDBG+1}] offset:{4*slot} sc1\n"
            extra_code+=f"  s_sub_u32 s80, s{64+k}, s64\n  v_mov_b32 v26, s80\n  global_atomic_add v24, v26, s[{sDBG}:{sDBG+1}] offset:{4*(slot+7)} sc1\n"
        extra_code+="  s_waitcnt vmcnt(0)\n  s_mov_b64 exec, -1\n"
        t=t.replace("L_done:\n",extra_code)
        g(t)
    else:
        fail_and_done(g,name,True)
    lds = L_X2+65536 if extra else LDS_SIZE
    return khead(name)+uniq(g.text(),'_m'), kd(name,NARCH,NACC), name, lds

def build2(o):
    global MAP, DYN_S, DYN_LC, DYN_LOOK
    DYN_S=opt(o,'dyns',128); DYN_LC=opt(o,'dynlc',2); DYN_LOOK=opt(o,'look',6)
    MAP=opt(o,'map',7)
    global ROT
    ROT=opt(o,'rot',0)
    G1.STAMPS=opt(o,'stamps',False); G1.TAILST=bool(o.get('tailst')); G1.WQPOL=o.get('wqpol','nt'); G1.WOPOL=o.get('wopol','nt'); G1.WQTEST=0; G1.WQROT=opt(o,'wqrot',0)
    k=k_main2(o)
    src=HEADER+f"; @launch grid=(256,1,1) block=({384 if HELPER else 320},1,1) lds={k[3]}"+'\n.amdgcn_target "amdgcn-amd-amdhsa--gfx950"\n.text\n'
    src+=k[0]+'.section .rodata,"a"\n'+k[1]
    if opt(o,'meta',False):
        src+=".amdgpu_metadata\n---\namdhsa.version: [1, 2]\namdhsa.kernels:\n"
        src+=f"  - .name: {k[2]}\n    .symbol: {k[2]}.kd\n    .kernarg_segment_size: 104\n    .kernarg_segment_align: 8\n    .group_segment_fixed_size: 0\n    .private_segment_fixed_size: 0\n    .wavefront_size: 64\n    .sgpr_count: 96\n    .vgpr_count: 256\n    .max_flat_workgroup_size: 384\n    .args:\n      - {{.name: kernargs, .size: 104, .offset: 0, .value_kind: by_value}}\n"
        src+="...\n.end_amdgpu_metadata\n"
    return src
if __name__=='__main__':
    out=sys.argv[1]; o=dict(a.split('=',1) for a in sys.argv[2:])
    open(out,'w').write(build2(o))
```

```python
import sys
import gen as G1
from gen import *

L_X2=0xE200
sJOFF=31; sRET=33; sX2=34
sPHB=[35,36]; sTGT=41
CTR=L_CNT+16

def stamp(g,i): G1.stamp(g,i)

def claim(g):
    g(f"""
  v_mov_b32 v13, {CTR}
  v_mov_b32 v14, 1
  s_mov_b64 exec, 1
  ds_add_rtn_u32 v12, v13, v14
  s_mov_b64 exec, -1""")

ROT=0; sROT=42
MAP=0
def tile_off(g,si,so):
    if MAP==7:
        if ROT: g(f"  s_add_u32 s{si}, s{si}, s{sROT}\n  s_and_b32 s{si}, s{si}, 127")
        g(f"  s_lshl_b32 s{si}, s{si}, 13\n  s_add_u32 s{so}, s{si}, s{sJOFF}")
    else:
        g(f"""  s_lshr_b32 s{sTMP+1}, s{si}, {MAP}
  s_lshl_b32 s{sTMP+1}, s{sTMP+1}, {16+MAP}
  s_and_b32 s{si}, s{si}, {(1<<MAP)-1}
  s_lshl_b32 s{si}, s{si}, 13
  s_add_u32 s{so}, s{si}, s{sTMP+1}
  s_add_u32 s{so}, s{so}, s{sJOFF}""")

SATOM=False; SCHSLEEP=2
WJIT=False; STEAL=0
WDYN=False; sDYN=87; sCL=88; sCOFF=89; sSUB=90; sSTL=91
CINITF=L_CNT+32; ENDF=L_CNT+36
DYN_S=128; DYN_LC=2; DYN_LOOK=6
def decode(g,u):
    dyn = DYN_S<128
    if WDYN:
        g(f"  s_waitcnt lgkmcnt(0)\n  s_cmp_eq_u32 s{sDYN}, 0\n  s_cbranch_scc0 L_wd_{u}")
    g(f"""
  s_waitcnt lgkmcnt(0)
  v_readfirstlane_b32 s{sTMP}, v12
  s_nop 0
  s_lshr_b32 s{sTMP+1}, s{sTMP}, 7""")
    if dyn: g(f"  s_min_u32 s{sTMP+1}, s{sTMP+1}, 2")
    g(f"""
  s_cmp_eq_u32 s{sTMP+1}, s{sPH}
  s_cbranch_scc0 L_newph_{u}
L_phok_{u}:""")
    if dyn:
        g(f"""
  s_cmp_ge_u32 s{sTMP}, {256+DYN_S}
  s_cbranch_scc1 L_dyn_{u}""")
    g(f"  s_and_b32 s{sTMP}, s{sTMP}, 127")
    tile_off(g,sTMP,sOFF)
    if dyn: g(f"L_dyn_done_{u}:")

def dynpath_w(g,u):
    P=128-DYN_S; pw=P//4; assert pw*4==P and pw&(pw-1)==0
    lpw=pw.bit_length()-1
    g(f"L_dyn_{u}:")
    lds_wait_flag(g,CINITF,'ci'+u)
    g(f"""
  s_mov_b32 s{sDYN}, 1
  s_mov_b32 s{sCL}, 1
  s_atomic_add s{sCL}, s[{sWS}:{sWS+1}], s{sCOFF} glc
  s_waitcnt lgkmcnt(0)
L_wd_{u}:
  s_cmp_lt_u32 s{sCL}, {8*pw}
  s_cbranch_scc0 L_dyn_end_{u}
  s_lshr_b32 s{sTMP}, s{sCL}, {lpw}            ; j'
  s_lshl_b32 s{sTMP}, s{sTMP}, 7
  s_and_b32 s{sTMP+1}, s{sCL}, {pw-1}
  s_add_u32 s{sTMP}, s{sTMP}, s{sTMP+1}
  s_mul_i32 s{sTMP+1}, s{sSUB}, {pw}
  s_add_u32 s{sTMP}, s{sTMP}, s{sTMP+1}
  s_add_u32 s{sTMP}, s{sTMP}, {DYN_S}
  s_lshl_b32 s{sOFF}, s{sTMP}, 13
  s_branch L_dyn_done_{u}
L_dyn_end_{u}:""")
    if STEAL:
        g(f"""
  s_cmp_ge_u32 s{sSTL}, {STEAL}
  s_cbranch_scc1 L_dyn_fin_{u}
  s_add_u32 s{sSTL}, s{sSTL}, 1
  s_add_u32 s{sSUB}, s{sSUB}, 1
  s_and_b32 s{sSUB}, s{sSUB}, 3
  s_lshl_b32 s{sCOFF}, s{sG}, 2
  s_add_u32 s{sCOFF}, s{sCOFF}, s{sSUB}
  s_mul_i32 s{sCOFF}, s{sCOFF}, {CNT_STRIDE}
  s_add_u32 s{sCOFF}, s{sCOFF}, {WS_CNT}
  s_mov_b32 s{sCL}, 1
  s_atomic_add s{sCL}, s[{sWS}:{sWS+1}], s{sCOFF} glc
  s_waitcnt lgkmcnt(0)
  s_branch L_wd_{u}
L_dyn_fin_{u}:""")
    g(f"""
  s_mov_b32 s{sPH}, 3
  s_mov_b32 s{sK+2}, 0
  s_mov_b32 s{sV+2}, 0
  s_mov_b32 s{sOFF}, 0
  v_mov_b32 v13, {ENDF}
  v_mov_b32 v12, 1
  ds_write_b32 v13, v12
  s_branch L_dyn_done_{u}""")

def dynpath(g,u):
    if DYN_S>=128: return
    if WDYN: return dynpath_w(g,u)
    g(f"""
L_dyn_{u}:
  s_sub_u32 s{sTMP}, s{sTMP}, {256+DYN_S}
  s_lshr_b32 s{sTMP+1}, s{sTMP}, {DYN_LC}          ; chunk k
  s_and_b32 s{sTMP}, s{sTMP}, {(1<<DYN_LC)-1}
  s_lshl_b32 s{sTMP+1}, s{sTMP+1}, 2
  s_add_u32 s{sTMP+1}, s{sTMP+1}, {L_QUEUE}
  v_mov_b32 v13, s{sTMP+1}
  s_mov_b32 s{sTMP+2}, 0
L_dyn_poll_{u}:
  ds_read_b32 v12, v13
  s_waitcnt lgkmcnt(0)
  v_readfirstlane_b32 s{sTMP+1}, v12
  s_nop 0
  s_cmp_eq_u32 s{sTMP+1}, -1
  s_cbranch_scc0 L_dyn_got_{u}
""")
    spin_guard(g,sTMP+2,"L_fail")
    if G1.STAMPS: g(f"  s_add_u32 s{G1.sST+11}, s{G1.sST+11}, 1")
    g(f"""
  s_branch L_dyn_poll_{u}
L_dyn_got_{u}:
  s_cmp_eq_u32 s{sTMP+1}, -2
  s_cbranch_scc1 L_dyn_end_{u}
  s_add_u32 s{sTMP}, s{sTMP}, s{sTMP+1}
  s_lshl_b32 s{sOFF}, s{sTMP}, 13
  s_branch L_dyn_done_{u}
L_dyn_end_{u}:
  s_mov_b32 s{sPH}, 3
  s_mov_b32 s{sK+2}, 0
  s_mov_b32 s{sV+2}, 0
  s_mov_b32 s{sOFF}, 0
  s_branch L_dyn_done_{u}""")

def newph(g,u):
    g(f"""
L_newph_{u}:
  s_mov_b32 s{sPH}, s{sTMP+1}
  s_cmp_eq_u32 s{sPH}, 1
  s_cbranch_scc0 L_np2_{u}
  s_lshl_b32 s{sTMP+2}, s{sG}, 1
  s_add_u32 s{sTMP+2}, s{sTMP+2}, 1
  s_mov_b32 s{sTMP+3}, s{sTMP}""")
    set_srd_head(g,sKB,sVB,sTMP+2)
    g(f"""
  s_mov_b32 s{sTMP}, s{sTMP+3}
  s_branch L_phok_{u}
L_np2_{u}:
  s_cmp_eq_u32 s{sPH}, 2
  s_cbranch_scc0 L_np3_{u}
  s_mov_b32 s{sTMP+3}, s{sTMP}""")
    set_srd_head(g,sKA,sVA,sG)
    g(f"""
  s_mov_b32 s{sTMP}, s{sTMP+3}
  s_branch L_phok_{u}
L_np3_{u}:
  s_mov_b32 s{sPH}, 3
  s_mov_b32 s{sK+2}, 0
  s_mov_b32 s{sV+2}, 0
  s_branch L_phok_{u}""")

def body(g,o,b,u,kwait,vwait,load,src='reg',vearly=False):
    pol=o.get('pol','nt'); t=vT
    g(f"L_body_{u}:")
    if src=='lds':
        if HELPER: lds_wait_flag(g,XRDY,'x')
        else: g(f"  s_waitcnt vmcnt({kwait})")
        g(f"""
  v_lshlrev_b32 v13, 4, v{vLANE}
  v_add_u32 v13, s{sX2}, v13""")
        for j in range(8): g(f"  ds_read_b128 a[{aK[b]+4*j}:{aK[b]+4*j+3}], v13 offset:{j*1024}")
        for r in range(8): g(f"  ds_read_b128 v[{vV[b]+4*r}:{vV[b]+4*r+3}], v13 offset:{8192+r*1024}")
        g("  s_waitcnt lgkmcnt(0)")
    elif WDYN and load is not None:
        g(f"""
  s_cmp_eq_u32 s{sDYN}, 0
  s_cbranch_scc1 L_st_{u}""")
        if WJIT: g(f"  s_waitcnt vmcnt({kwait})")
        g(f"""  s_mov_b32 s{sCL}, 1
  s_atomic_add s{sCL}, s[{sWS}:{sWS+1}], s{sCOFF} glc""")
        if not WJIT: g(f"  s_waitcnt vmcnt({kwait})")
        g(f"""  s_branch L_mf_{u}
L_st_{u}:
  s_waitcnt vmcnt({kwait})""")
        claim(g)
        g(f"L_mf_{u}:")
    else:
        g(f"  s_waitcnt vmcnt({kwait})")
    if load is not None and not WDYN: claim(g)
    for j in range(8):
        c="0" if j==0 else f"v[{vS}:{vS+3}]"
        g(f"  v_mfma_f32_16x16x32_bf16 v[{vS}:{vS+3}], a[{aK[b]+4*j}:{aK[b]+4*j+3}], a[{aQ+4*j}:{aQ+4*j+3}], {c}")
    if load is not None:
        decode(g,u)
        g(f"  s_mov_b32 s{sPHB[load]}, s{sPH}")
        emit_k_loads(g,load,pol)
        if vearly: emit_v_loads(g,load,pol)
    else:
        g("  s_nop 7")
    g(f"""
  v_max3_f32 v{t}, v{vS}, v{vS+1}, v{vS+2}
  v_max_f32 v{t}, v{t}, v{vS+3}
  v_mov_b32 v{t+1}, v{t}
  s_nop 1
  v_permlane16_swap_b32 v{t}, v{t+1}
  v_max_f32 v{t}, v{t}, v{t+1}
  v_mov_b32 v{t+1}, v{t}
  s_nop 1
  v_permlane32_swap_b32 v{t}, v{t+1}
  v_max_f32 v{t}, v{t}, v{t+1}
  v_cmp_gt_f32 vcc, v{t}, v{vM}
  s_cbranch_vccnz L_rare_{u}
L_back_{u}:
  v_fma_f32 v{t+2}, v{vS}, s{sC}, -v{vMC}
  v_fma_f32 v{t+3}, v{vS+1}, s{sC}, -v{vMC}
  v_fma_f32 v{t+4}, v{vS+2}, s{sC}, -v{vMC}
  v_fma_f32 v{t+5}, v{vS+3}, s{sC}, -v{vMC}
  v_exp_f32 v{t+2}, v{t+2}
  v_exp_f32 v{t+3}, v{t+3}
  v_exp_f32 v{t+4}, v{t+4}
  v_exp_f32 v{t+5}, v{t+5}
  v_add_f32 v{t+6}, v{t+2}, v{t+3}
  v_cvt_pk_bf16_f32 v{vP}, v{t+2}, v{t+3}
  v_add_f32 v{t+7}, v{t+4}, v{t+5}
  v_cvt_pk_bf16_f32 v{vP+1}, v{t+4}, v{t+5}
  v_add_f32 v{t+6}, v{t+6}, v{t+7}
  v_mov_b32 v{vP+2}, v{vP}
  v_mov_b32 v{vP+3}, v{vP+1}
  v_add_f32 v{vL}, v{vL}, v{t+6}
  s_nop 0
  v_permlane16_swap_b32 v{vP}, v{vP+2}
  v_permlane16_swap_b32 v{vP+1}, v{vP+3}""")
    if vwait is not None: g(f"  s_waitcnt vmcnt({vwait})")
    for t2 in range(2):
        R=[vV[b]+4*(4*t2+rr) for rr in range(4)]
        for dw in range(4):
            g(f"  v_perm_b32 v{vB+4*dw}, v{R[1]+dw}, v{R[0]+dw}, s{sSLO}")
            g(f"  v_perm_b32 v{vB+4*dw+1}, v{R[3]+dw}, v{R[2]+dw}, s{sSLO}")
            g(f"  v_perm_b32 v{vB+4*dw+2}, v{R[1]+dw}, v{R[0]+dw}, s{sSHI}")
            g(f"  v_perm_b32 v{vB+4*dw+3}, v{R[3]+dw}, v{R[2]+dw}, s{sSHI}")
        for jj in range(8):
            a=vACC+4*jj
            g(f"  v_mfma_f32_4x4x4_16b_bf16 v[{a}:{a+3}], v[{vP+2*t2}:{vP+2*t2+1}], v[{vB+2*jj}:{vB+2*jj+1}], v[{a}:{a+3}]")
    if load is not None and not vearly: emit_v_loads(g,load,pol)

def rare(g,u):
    t=vT
    g(f"""
L_rare_{u}:
  v_max_f32 v{t+1}, v{t}, v{vM}
  v_sub_f32 v{t+2}, v{vM}, v{t+1}
  v_mul_f32 v{t+2}, s{sC}, v{t+2}
  v_exp_f32 v{t+2}, v{t+2}
  v_mov_b32 v{vM}, v{t+1}
  v_mul_f32 v{vMC}, s{sC}, v{t+1}
  v_mul_f32 v{vL}, v{vL}, v{t+2}
  s_nop 0
  v_mov_b32_dpp v{t+3}, v{t+2} quad_perm:[0,0,2,2] row_mask:0xf bank_mask:0xf
  v_mov_b32_dpp v{t+4}, v{t+2} quad_perm:[1,1,3,3] row_mask:0xf bank_mask:0xf
""")
    for jj in range(8):
        g(f"  v_mul_f32 v{vACC+4*jj}, v{vACC+4*jj}, v{t+3}")
        g(f"  v_mul_f32 v{vACC+4*jj+1}, v{vACC+4*jj+1}, v{t+4}")
    g(f"  s_branch L_back_{u}")

def phase_check(g,ret,deep=False):
    src = sPHB[ret] if deep else sPH
    g(f"""
  s_mov_b32 s{sTGT}, s{src}
  s_cmp_eq_u32 s{sTGT}, s{sCPH}
  s_mov_b32 s{sRET}, {ret}
  s_cbranch_scc0 L_flush""")

def reset_state(g):
    g(f"""
  v_mov_b32 v{vM}, 0xff800000
  v_mov_b32 v{vMC}, 0xff800000
  v_mov_b32 v{vL}, 0""")
    for r in range(32): g(f"  v_mov_b32 v{vACC+r}, 0")

def read_q(g):
    t=vT
    g(f"""
  v_and_b32 v{t}, 1, v{vLANE}
  s_cmp_eq_u32 s{sCPH}, 2
  s_cselect_b32 s{sTMP}, 512, 0
  v_mul_u32_u24 v{t}, s{sTMP}, v{t}
  s_lshl_b32 s{sTMP}, s{sCPH}, 9
  s_add_u32 s{sTMP}, s{sTMP}, {L_QC}
  v_add_u32 v{t}, s{sTMP}, v{t}
  v_lshrrev_b32 v{t+1}, 4, v{vLANE}
  v_lshl_add_u32 v{t}, v{t+1}, 4, v{t}
""")
    for j in range(8):
        g(f"  ds_read_b128 a[{aQ+4*j}:{aQ+4*j+3}], v{t} offset:{j*64}")
    g("  s_waitcnt lgkmcnt(0)")

def flush(g,o):
    h=G(); G1.emit_flush(h,o,0)
    txt=h.text()
    cut="  ; destination indices:"
    txt=txt[:txt.index(cut)].replace("L_flush_b0","L_flush").replace("L_nomerge_b0","L_nomerge")
    g(txt)
    t=vT; A=vB; D=vACC
    g(f"""
  s_lshl_b32 s{sTMP}, s{sCPH}, 6
  s_add_u32 s{sTMP}, s{sTMP}, {L_ST}
  v_mov_b32 v20, s{sTMP}
  s_lshl_b32 s{sTMP}, s{sCPH}, 13
  s_add_u32 s{sTMP}, s{sTMP}, {L_FL}
  v_lshlrev_b32 v21, 4, v{vLANE}
  v_add_u32 v22, s{sTMP}, v21""")
    for w in range(4): g(f"  ds_read_b128 v[{A+4*w}:{A+4*w+3}], v20 offset:{16*w}")
    for w in range(4): g(f"  ds_read_b128 v[{D+4*w}:{D+4*w+3}], v22 offset:{2048*w}")
    for w in range(4): g(f"  ds_read_b128 v[{D+16+4*w}:{D+16+4*w+3}], v22 offset:{2048*w+1024}")
    g(f"""
  s_and_b32 s{sTMP+2}, s{sG}, 7
  s_lshl_b32 s{sTMP+2}, s{sTMP+2}, 1          ; hq0
  s_lshr_b32 s{sTMP+3}, s{sG}, 3              ; b
  s_cmp_eq_u32 s{sCPH}, 2
  s_cselect_b32 s{sTMP+4}, 0, 16              ; p*16
  s_cselect_b32 s{sTMP+5}, 0, s{sCPH}
  s_add_u32 s{sTMP+2}, s{sTMP+2}, s{sTMP+4}
  s_add_u32 s{sTMP+2}, s{sTMP+2}, s{sTMP+5}   ; p*16+hq
  s_lshl_b32 s{sTMP+2}, s{sTMP+2}, 2
  s_add_u32 s{sTMP+2}, s{sTMP+2}, s{sTMP+3}   ; *4 + b
  s_lshl_b32 s{sTMP+2}, s{sTMP+2}, 3
  s_add_u32 s{sTMP+2}, s{sTMP+2}, s{sJ}
  s_lshl_b32 s{sTMP}, s{sTMP+2}, 10
  s_add_u32 s{sTMP}, s{sTMP}, {WS_PART}
  v_add_u32 v21, s{sTMP}, v21
  s_lshl_b32 s{sTMP}, s{sTMP+2}, 4
  s_add_u32 s{sTMP}, s{sTMP}, {WS_STAT}
  v_mov_b32 v23, s{sTMP}
  v_mov_b32 v{vX}, s{sTB}
  s_waitcnt lgkmcnt(8)
  v_max3_f32 v16, v{A}, v{A+4}, v{A+8}
  v_max3_f32 v17, v{A+2}, v{A+6}, v{A+10}
  v_max_f32 v16, v16, v{A+12}                 ; M0
  v_max_f32 v17, v17, v{A+14}                 ; M1""")
    for w in range(4): g(f"  v_sub_f32 v{A+4*w}, v{A+4*w}, v16\n  v_sub_f32 v{A+4*w+2}, v{A+4*w+2}, v17")
    for w in range(4): g(f"  v_exp_f32 v{A+4*w}, v{A+4*w}\n  v_exp_f32 v{A+4*w+2}, v{A+4*w+2}")
    g(f"""  s_nop 0
  v_mul_f32 v18, v{A}, v{A+1}
  v_mul_f32 v19, v{A+2}, v{A+3}""")
    for w in range(1,4): g(f"  v_fmac_f32 v18, v{A+4*w}, v{A+4*w+1}\n  v_fmac_f32 v19, v{A+4*w+2}, v{A+4*w+3}")
    g("  s_waitcnt lgkmcnt(4)")
    for k in range(4): g(f"  v_mul_f32 v{8+k}, v{A}, v{D+k}")
    for w in range(1,4):
        for k in range(4): g(f"  v_fmac_f32 v{8+k}, v{A+4*w}, v{D+4*w+k}")
    tag_embed(g,[8,9,10,11],vX,sTMP)
    g(f"""
  global_store_dwordx4 v21, v[8:11], s[{sWS}:{sWS+1}] sc1
  s_cmp_eq_u32 s{sCPH}, 2
  s_cbranch_scc0 L_m_one
  s_waitcnt lgkmcnt(0)""")
    for k in range(4): g(f"  v_mul_f32 v{12+k}, v{A+2}, v{D+16+k}")
    for w in range(1,4):
        for k in range(4): g(f"  v_fmac_f32 v{12+k}, v{A+4*w+2}, v{D+16+4*w+k}")
    tag_embed(g,[12,13,14,15],vX,sTMP)
    g(f"""
  v_add_u32 v21, 32768, v21
  global_store_dwordx4 v21, v[12:15], s[{sWS}:{sWS+1}] sc1
  v_mov_b32 v{D+4}, v17
  v_mov_b32 v{D+5}, s{sT}
  v_mov_b32 v{D+6}, v19
  v_mov_b32 v{D+7}, s{sT}
  s_mov_b64 exec, 1
  global_store_dwordx4 v23, v[{D+4}:{D+7}], s[{sWS}:{sWS+1}] offset:512 sc1
  s_mov_b64 exec, -1
L_m_one:
  v_mov_b32 v{D}, v16
  v_mov_b32 v{D+1}, s{sT}
  v_mov_b32 v{D+2}, v18
  v_mov_b32 v{D+3}, s{sT}
  s_mov_b64 exec, 1
  global_store_dwordx4 v23, v[{D}:{D+3}], s[{sWS}:{sWS+1}] sc1
  s_mov_b64 exec, -1
  s_waitcnt lgkmcnt(0)
L_nomerge:
  s_add_u32 s{sCPH}, s{sCPH}, 1
  s_cmp_eq_u32 s{sCPH}, 3
  s_cbranch_scc1 L_tail
  s_nop 0""")
    reset_state(g)
    g(f"""
  s_cmp_lt_u32 s{sCPH}, s{sTGT}
  s_cbranch_scc1 L_flush""")
    lds_wait_flag(g,QFLAG,'qf')
    read_q(g)
    g(f"""
  s_cmp_eq_u32 s{sRET}, 0
  s_cbranch_scc1 L_body_b0
  s_branch L_body_b1""")

QFLAG=L_CNT+20
QRDY=L_CNT+24
XRDY=L_CNT+28
HELPER=False
NOQ=False
def lds_wait_flag(g,addr,u,fail='L_fail'):
    g(f"""
  v_mov_b32 v13, {addr}
  s_mov_b32 s{sTMP+2}, 0
L_fw_{u}:
  ds_read_b32 v12, v13
  s_waitcnt lgkmcnt(0)
  v_readfirstlane_b32 s{sTMP}, v12
  s_nop 0
  s_cmp_eq_u32 s{sTMP}, 1
  s_cbranch_scc1 L_fwok_{u}""")
    spin_guard(g,sTMP+2,fail,limit=2000000)
    g(f"  s_branch L_fw_{u}\nL_fwok_{u}:")
def qgather2(g,o):
    NS=opt(o,'npoll',6); R0=8
    g(f"""
  s_lshl_b32 s44, s{sG}, 11           ; 2g*1024
  s_add_u32 s44, s44, {WS_QG}
  v_lshlrev_b32 v1, 4, v0
  v_add_u32 v1, s44, v1               ; A vectors (p=0)
  v_add_u32 v2, 0x10000, v1           ; B vectors (p=1)
  v_lshlrev_b32 v3, 3, v0
  v_add_u32 v3, {L_QC}, v3
  s_mov_b32 s45, 0""")
    for i in range(NS):
        g(f"  global_load_dwordx4 v[{R0+4*i}:{R0+4*i+3}], v2, s[{sWS}:{sWS+1}] sc1")
        if i<NS-1: g(f"  s_sleep {opt(o,'pollgap',2)}")
    g("L_qg_loop:")
    for i in range(NS):
        r=R0+4*i
        g(f"""
  s_waitcnt vmcnt({NS-1})
  v_xor_b32 v4, s{sT}, v{r+1}
  v_xor_b32 v5, s{sT}, v{r+3}
  v_or_b32 v4, v4, v5
  v_cmp_ne_u32 vcc, 0, v4
  s_cbranch_vccz L_qg_ok{i}
  global_load_dwordx4 v[{r}:{r+3}], v2, s[{sWS}:{sWS+1}] sc1""")
    spin_guard(g,45,"L_fail_aux")
    g("  s_branch L_qg_loop")
    for i in range(NS):
        r=R0+4*i
        g(f"""
L_qg_ok{i}:
  v_mov_b32 v{r+1}, v{r+2}
  ds_write_b64 v3, v[{r}:{r+1}]
  s_branch L_qg_first""")
    g("L_qg_first:")
    stamp(g,3)
    if HELPER: g(f"  s_waitcnt lgkmcnt(0)\n  v_mov_b32 v4, {QRDY}\n  v_mov_b32 v5, 1\n  ds_write_b32 v4, v5")
    elif not NOQ: g("  s_waitcnt lgkmcnt(0)\n  s_barrier")
    g(f"""
  s_waitcnt vmcnt(0)
  s_mov_b32 s45, 0
L_qg2_poll:
  global_load_dwordx4 v[12:15], v2, s[{sWS}:{sWS+1}] offset:1024 sc1
  global_load_dwordx4 v[16:19], v1, s[{sWS}:{sWS+1}] sc1
  global_load_dwordx4 v[20:23], v1, s[{sWS}:{sWS+1}] offset:1024 sc1
  s_waitcnt vmcnt(0)
  v_xor_b32 v13, s{sT}, v13
  v_xor_b32 v15, s{sT}, v15
  v_xor_b32 v17, s{sT}, v17
  v_xor_b32 v19, s{sT}, v19
  v_xor_b32 v21, s{sT}, v21
  v_xor_b32 v23, s{sT}, v23
  v_or3_b32 v13, v13, v15, v17
  v_or3_b32 v13, v13, v19, v21
  v_or_b32 v13, v13, v23
  v_cmp_ne_u32 vcc, 0, v13
  s_cbranch_vccz L_qg2_ok""")
    spin_guard(g,45,"L_fail_aux")
    g(f"""
  s_sleep 8
  s_branch L_qg2_poll
L_qg2_ok:
  v_mov_b32 v13, v14
  v_mov_b32 v17, v18
  v_mov_b32 v21, v22
  ds_write_b64 v3, v[12:13] offset:512
  ds_write_b64 v3, v[16:17] offset:1024
  ds_write_b64 v3, v[20:21] offset:1536
  s_waitcnt lgkmcnt(0)
  v_mov_b32 v4, {QFLAG}
  v_mov_b32 v5, 1
  ds_write_b32 v4, v5""")

def sched(g):
    C=1<<DYN_LC; cpj=(128-DYN_S)//C; assert cpj*C==128-DYN_S and cpj&(cpj-1)==0
    lcpj=cpj.bit_length()-1; nch=8*cpj
    assert nch+8+4 < 128
    sKQ=62
    g(f"""
  s_mul_i32 s{sTMP+8}, s{sG}, {CNT_STRIDE}
  s_add_u32 s{sTMP+8}, s{sTMP+8}, {WS_CNT}
  v_mov_b32 v8, s{sTMP+8}
  v_mov_b32 v9, 1
  v_mov_b32 v10, {CTR}
  s_mov_b32 s{sTMP+9}, 0
L_cinit:
  global_load_dwordx2 v[14:15], v8, s[{sWS}:{sWS+1}] sc1
  s_waitcnt vmcnt(0)
  v_readfirstlane_b32 s{sTMP}, v15
  s_nop 0
  s_cmp_eq_u32 s{sTMP}, s{sT}
  s_cbranch_scc1 L_cinit_ok""")
    spin_guard(g,sTMP+9,"L_fail_aux")
    g(f"""
  s_sleep 8
  s_branch L_cinit
L_cinit_ok:
  s_mov_b32 s{sKQ}, 0
  s_mov_b32 s{sKQ+1}, {256+DYN_S-DYN_LOOK}
L_sched:
  s_mov_b32 s{sTMP+9}, 0
L_sched_poll:
  ds_read_b32 v11, v10
  s_waitcnt lgkmcnt(0)
  v_readfirstlane_b32 s{sTMP}, v11
  s_nop 0
  s_cmp_ge_u32 s{sTMP}, s{sKQ+1}
  s_cbranch_scc1 L_sched_go""")
    spin_guard(g,sTMP+9,"L_fail_aux",limit=1000000)
    g(f"""
  s_sleep {SCHSLEEP}
  s_branch L_sched_poll
L_sched_go:""")
    if SATOM:
        g(f"""  s_mov_b32 s{sTMP}, 1
  s_atomic_add s{sTMP}, s[{sWS}:{sWS+1}], s{sTMP+8} glc
  s_waitcnt lgkmcnt(0)""")
    else:
        g(f"""  s_mov_b64 exec, 1
  global_atomic_add v11, v8, v9, s[{sWS}:{sWS+1}] sc0 sc1
  s_mov_b64 exec, -1
  s_waitcnt vmcnt(0)
  v_readfirstlane_b32 s{sTMP}, v11""")
    g(f"""
  s_lshl_b32 s{sTMP+3}, s{sKQ}, 2
  s_add_u32 s{sTMP+3}, s{sTMP+3}, {L_QUEUE}
  v_mov_b32 v12, s{sTMP+3}
  s_cmp_lt_u32 s{sTMP}, {nch}
  s_cbranch_scc0 L_sched_end
  s_lshr_b32 s{sTMP+1}, s{sTMP}, {lcpj}        ; j'
  s_lshl_b32 s{sTMP+1}, s{sTMP+1}, 7
  s_and_b32 s{sTMP+2}, s{sTMP}, {cpj-1}
  s_lshl_b32 s{sTMP+2}, s{sTMP+2}, {DYN_LC}
  s_add_u32 s{sTMP+1}, s{sTMP+1}, s{sTMP+2}
  s_add_u32 s{sTMP+1}, s{sTMP+1}, {DYN_S}
  v_mov_b32 v13, s{sTMP+1}
  ds_write_b32 v12, v13
  s_add_u32 s{sKQ}, s{sKQ}, 1
  s_add_u32 s{sKQ+1}, s{sKQ+1}, {C}
  s_branch L_sched
L_sched_end:
  v_mov_b32 v13, -2
  ds_write_b32 v12, v13
  ds_write_b32 v12, v13 offset:4
  ds_write_b32 v12, v13 offset:8
  ds_write_b32 v12, v13 offset:12
  ds_write_b32 v12, v13 offset:16
  s_mov_b32 s34, s{sKQ}""")

def tags_from_epoch(g):
    h=G(); load_tags(h,sWS,sT,sTB,sTMP); L=h.text().split('\n')
    L=[l for l in L if 's_load_dword' not in l]
    g("\n".join(L))

def aux_b(g,o):
    sL=61
    g(f"""
  v_mov_b32 v10, {CTR}
  s_mov_b32 s{sTMP+9}, 0
L_bw_poll:
  ds_read_b32 v11, v10
  s_waitcnt lgkmcnt(0)
  v_readfirstlane_b32 s{sTMP}, v11
  s_nop 0
  s_cmp_ge_u32 s{sTMP}, {256+opt(o,'bstart',40)}
  s_cbranch_scc1 L_bw_go""")
    spin_guard(g,sTMP+9,"L_fail_aux",limit=1000000)
    g("""
  s_sleep 16
  s_branch L_bw_poll
L_bw_go:""")
    abl=opt(o,'abl',9)
    if abl>=1: emit_wo_stage(g,'b',which=(1,))
    if abl<2:
        g("  s_waitcnt vmcnt(0)"); return
    g(f"  v_mov_b32 v{vLANE}, v0\n  s_mov_b32 s{sL}, 0\nL_b1:")
    emit_role(g,o,1,'Bx',wreg=sL,fail="L_fail_aux",sleep=opt(o,'bsleep',32),part=1)
    g(f"  s_add_u32 s{sL}, s{sL}, 1\n  s_cmp_lt_u32 s{sL}, 4\n  s_cbranch_scc1 L_b1\n  s_waitcnt vmcnt(0) lgkmcnt(0)\n  s_mov_b32 s{sL}, 0\nL_b2:")
    if abl<3: return
    emit_role(g,o,1,'Bx',wreg=sL,part=2)
    g(f"  s_add_u32 s{sL}, s{sL}, 1\n  s_cmp_lt_u32 s{sL}, 4\n  s_cbranch_scc1 L_b2")
    if not opt(o,'bfinlate',False): aux_bfinal(g,o)

def aux_bfinal(g,o):
    g(f"  v_mov_b32 v{vLANE}, v0")
    emit_final(g,o,'fb',False,lo=112,hi=224,loopw=61,fail="L_fail_aux",done="L_bfin_done",fb=L_FB+256,fsleep=opt(o,'bfsleep',16))
    g("L_bfin_done:")

def wo_touch(g,o):
    g(f"""
  s_load_dwordx2 s[48:49], s[0:1], 32
  s_load_dwordx2 s[52:53], s[0:1], 72
  s_lshr_b32 s44, s2, 2
  s_mul_i32 s44, s44, {64*896}
  v_lshlrev_b32 v2, 12, v0
  s_waitcnt lgkmcnt(0)
  s_and_b32 s49, s49, 0xffff
  s_mov_b32 s50, 3670016
  s_mov_b32 s51, 0x20000
  s_and_b32 s53, s53, 0xffff
  s_mov_b32 s54, 3670016
  s_mov_b32 s55, 0x20000
  s_mov_b64 exec, 0x7fff
  buffer_load_dword v3, v2, s[48:51], s44 offen nt
  buffer_load_dword v4, v2, s[52:55], s44 offen nt
  s_mov_b64 exec, -1
  s_waitcnt vmcnt(0)""")

def lds_init(g,extra):
    if DYN_S<128:
        g(f"""
  v_lshlrev_b32 v76, 2, v0
  v_mov_b32 v77, -1
  v_add_u32 v78, {L_QUEUE}, v76
  ds_write_b32 v78, v77
  ds_write_b32 v78, v77 offset:256""")
    g(f"""
  v_lshlrev_b32 v76, 2, v0
  v_mov_b32 v77, 0
  v_add_u32 v78, {L_CNT}, v76
  s_mov_b64 exec, 0xffff
  ds_write_b32 v78, v77
  s_mov_b64 exec, -1
  s_waitcnt lgkmcnt(0)
  v_mov_b32 v77, {12 if extra else 8}
  v_mov_b32 v78, {CTR}
  ds_write_b32 v78, v77
""")

def helper_wave(g,o):
    pol=o.get('pol','nt')
    g(f"""
L_help:
  v_mov_b32 v0, v{vLANE}""")
    lds_init(g,True)
    g(f"""
  v_and_b32 v{vOK}, 15, v{vLANE}
  v_lshlrev_b32 v{vOK}, 9, v{vOK}
  v_lshrrev_b32 v{vT}, 4, v{vLANE}
  v_lshl_add_u32 v{vOK}, v{vT}, 4, v{vOK}
  v_lshrrev_b32 v{vT}, 5, v{vLANE}
  v_lshlrev_b32 v{vT}, 12, v{vT}
  v_and_b32 v{vOV}, 31, v{vLANE}
  v_lshl_add_u32 v{vOV}, v{vOV}, 4, v{vT}
  s_lshl_b32 s{sTMP+2}, s{sG}, 1""")
    set_srd_head(g,sKB,sVB,sTMP+2)
    g(f"""
  s_lshl_b32 s{sJOFF}, s{sJ}, {13+MAP}
  s_mul_i32 s{sROT}, s2, {ROT}
  s_waitcnt lgkmcnt(0)
  s_barrier
  s_sleep {opt(o,'helpdelay',16)}""")
    for w in range(4):
        g(f"  s_mov_b32 s{sTMP}, {8+w}"); tile_off(g,sTMP,sOFF)
        base=L_X2+w*16384
        for j in range(8):
            g(f"  s_mov_b32 m0, {base+j*1024-j*64}\n  s_nop 0\n  buffer_load_dwordx4 v{vOK}, s[{sK}:{sK+3}], s{sOFF} offen offset:{j*64} {pol} lds")
        for r in range(8):
            g(f"  s_mov_b32 m0, {base+8192+r*1024-r*512}\n  s_nop 0\n  buffer_load_dwordx4 v{vOV}, s[{sV}:{sV+3}], s{sOFF} offen offset:{r*512} {pol} lds")
    g(f"""
  s_waitcnt vmcnt(0)
  v_mov_b32 v4, {XRDY}
  v_mov_b32 v5, 1
  ds_write_b32 v4, v5
  s_waitcnt lgkmcnt(0)
  s_branch L_exit""")

def k_main2(o):
    g=G(); name=KN+'_kernel'
    pol=o.get('pol','nt'); pace=opt(o,'pace',32); extra=opt(o,'extra',False); vearly=opt(o,'vearly',o.get('sched','s2')=='s2')
    g("  s_cmp_ge_u32 s2, 256\n  s_cbranch_scc1 L_exit")
    emit_qproj_ptrs(g)
    if opt(o,'remap',False):
        G1.RQ=82; G1.RO=83
        g(f"""
  s_lshr_b32 s84, s2, 3               ; a
  s_and_b32 s85, s2, 7                ; x
  s_lshr_b32 s82, s84, 1
  s_and_b32 s82, s82, 7
  s_lshl_b32 s82, s82, 4              ; (a'>>1)<<4
  s_lshl_b32 s86, s85, 1
  s_or_b32 s82, s82, s86
  s_and_b32 s86, s84, 1
  s_or_b32 s82, s82, s86
  s_and_b32 s86, s2, 128
  s_or_b32 s82, s82, s86              ; q role = p<<7 | c
  s_lshr_b32 s83, s84, 2
  s_lshl_b32 s83, s83, 3
  s_add_u32 s83, s83, s85
  s_lshl_b32 s83, s83, 2
  s_and_b32 s86, s84, 3
  s_or_b32 s83, s83, s86""")
    else:
        G1.RQ=2; G1.RO=2
    load_ptrs(g)
    G1.stamp_init(g); stamp(g,0)
    g(f"  s_load_dword s{sT}, s[{sWS}:{sWS+1}], {WS_EPOCH}")
    global HELPER
    HELPER=opt(o,'helper',False)
    global NOQ
    NOQ=opt(o,'noqwait',False)
    if HELPER:
        extra=True
        g(f"  s_cmp_eq_u32 s{sW}, 5\n  s_cbranch_scc1 L_help")
    g(f"""
  s_cmp_eq_u32 s{sW}, 4
  s_cbranch_scc1 L_aux
  v_and_b32 v{vOK}, 15, v{vLANE}
  v_lshlrev_b32 v{vOK}, 9, v{vOK}
  v_lshrrev_b32 v{vT}, 4, v{vLANE}
  v_lshl_add_u32 v{vOK}, v{vT}, 4, v{vOK}        ; (l&15)*512 + (l>>4)*16
  v_lshrrev_b32 v{vT}, 5, v{vLANE}
  v_lshlrev_b32 v{vT}, 12, v{vT}
  v_and_b32 v{vOV}, 31, v{vLANE}
  v_lshl_add_u32 v{vOV}, v{vOV}, 4, v{vT}        ; (l>>5)*4096 + (l&31)*16
  s_lshl_b32 s{sTMP+2}, s{sG}, 1
""")
    set_srd_head(g,sKB,sVB,sTMP+2)
    g(f"""
  s_lshl_b32 s{sJOFF}, s{sJ}, {13+MAP}
  s_mul_i32 s{sROT}, s2, {ROT}
  s_mov_b32 s{sTMP}, s{sW}""")
    tile_off(g,sTMP,sOFF)
    g(f"""
  s_lshl_b32 s{sX2}, s{sW}, 14
  s_add_u32 s{sX2}, s{sX2}, {L_X2}
  s_barrier
""")
    def pw(n):
        if pace<n: g(f"  s_waitcnt vmcnt({pace})")
    emit_k_loads(g,0,pol); pw(8); emit_v_loads(g,0,pol)
    g(f"  s_add_u32 s{sTMP}, s{sW}, 4"); tile_off(g,sTMP,sOFF)
    pw(16); emit_k_loads(g,1,pol); pw(24); emit_v_loads(g,1,pol)
    if extra and not HELPER:
        g(f"  s_add_u32 s{sTMP}, s{sW}, 8"); tile_off(g,sTMP,sOFF)
        pw(32)
        for j in range(8):
            g(f"  s_add_u32 m0, s{sX2}, {j*1024-j*64}\n  s_nop 0\n  buffer_load_dwordx4 v{vOK}, s[{sK}:{sK+3}], s{sOFF} offen offset:{j*64} {pol} lds")
        pw(40)
        for r in range(8):
            g(f"  s_add_u32 m0, s{sX2}, {8192+r*1024-r*512}\n  s_nop 0\n  buffer_load_dwordx4 v{vOV}, s[{sV}:{sV+3}], s{sOFF} offen offset:{r*512} {pol} lds")
    g(f"""
  s_mov_b32 s{sPH}, 0
  s_mov_b32 s{sCPH}, 0
  s_mov_b32 s{sDYN}, 0
  s_mov_b32 s{sSUB}, s{sW}
  s_mov_b32 s{sSTL}, 0
  s_lshl_b32 s{sCOFF}, s{sG}, 2
  s_add_u32 s{sCOFF}, s{sCOFF}, s{sW}
  s_mul_i32 s{sCOFF}, s{sCOFF}, {CNT_STRIDE}
  s_add_u32 s{sCOFF}, s{sCOFF}, {WS_CNT}
  s_mov_b32 s{sC}, {f2h(SCALE)}
  s_mov_b32 s{sSLO}, 0x05040100
  s_mov_b32 s{sSHI}, 0x07060302
""")
    tags_from_epoch(g)
    reset_state(g)
    stamp(g,1)
    if HELPER: lds_wait_flag(g,QRDY,'q')
    elif not opt(o,'noqwait',False): g("  s_barrier")
    read_q(g)
    stamp(g,2)
    deep=o.get('sched','s2')=='s3'
    if deep:
        g(f"  s_mov_b32 s{sPHB[0]}, 0\n  s_mov_b32 s{sPHB[1]}, 0")
        body(g,o,0,'b0',24,24,0); phase_check(g,1,True)
        body(g,o,1,'b1',24,24,1); phase_check(g,0,True)
        g("  s_branch L_body_b0")
    else:
        if extra and HELPER:
            body(g,o,0,'s0',24,24,0)
            body(g,o,1,'s1',24,16,None)
            body(g,o,1,'s2',16,None,None,src='lds')
            phase_check(g,0)
            g("  s_branch L_body_b0")
        elif extra:
            body(g,o,0,'s0',40,40,0)
            body(g,o,1,'s1',40,32,None)
            body(g,o,1,'s2',16,None,None,src='lds')
            phase_check(g,0)
            g("  s_branch L_body_b0")
        else:
            body(g,o,0,'s0',24,24,0)
            body(g,o,1,'s1',24,16,None)
            phase_check(g,0)
            g("  s_branch L_body_b0")
        body(g,o,0,'b0',8,16 if vearly else 8,1,vearly=vearly); phase_check(g,1)
        body(g,o,1,'b1',8,16 if vearly else 8,0,vearly=vearly); phase_check(g,0)
        g("  s_branch L_body_b0")
    us=([] if deep else ['s0','s1']+(['s2'] if extra else []))+['b0','b1']
    for u in us: rare(g,u)
    for u in ([] if deep else ['s0'])+['b0','b1']: newph(g,u); dynpath(g,u)
    flush(g,o)
    g("L_tail:")
    stamp(g,6)
    if opt(o,'tailwait',False): g("  s_waitcnt vmcnt(0)")
    auxb=opt(o,'auxb',False) and DYN_S<128
    if auxb:
        stamp(g,7); emit_role(g,o,0,'A',sleep=opt(o,'rsleep',1)); stamp(g,8); emit_final(g,o,'f',True,lo=0,hi=112,fsleep=opt(o,'fsleep',1))
    else:
        emit_role(g,o,1,'B',sleep=opt(o,'rsleep',1)); stamp(g,7); emit_role(g,o,0,'A',sleep=opt(o,'rsleep',1)); stamp(g,8); emit_final(g,o,'f',True,fsleep=opt(o,'fsleep',1))
    g("  s_waitcnt vmcnt(0)")
    g("  s_branch L_done")
    g(f"""
L_aux:
  v_mov_b32 v0, v{vLANE}
  s_setprio 3""")
    emit_qproj_issue(g)
    if NOQ: lds_init(g,extra); g("  s_waitcnt lgkmcnt(0)")
    b0=opt(o,'b0wait',63)
    if b0<63: g(f"  s_waitcnt vmcnt({b0})")
    g("  s_barrier")
    stamp(g,8)
    tags_from_epoch(g)
    if not HELPER and not NOQ: lds_init(g,extra)
    stamp(g,1)
    emit_qproj_compute(g,'fq',sWS,sT)
    stamp(g,2)
    if opt(o,'qg2',True): qgather2(g,o)
    else:
        emit_qgather(g,'m',sWS,sT,sG,"L_fail_aux")
        stamp(g,3)
        g(f"  v_mov_b32 v4, {QFLAG}\n  v_mov_b32 v5, 1\n  ds_write_b32 v4, v5\n  s_waitcnt lgkmcnt(0)\n  s_barrier")
    if WDYN:
        g(f"""
  s_lshl_b32 s{sTMP}, s{sG}, 2
  s_mul_i32 s{sTMP}, s{sTMP}, {CNT_STRIDE}
  s_add_u32 s{sTMP}, s{sTMP}, {WS_CNT}
  v_and_b32 v72, 3, v0
  v_mul_u32_u24 v72, {CNT_STRIDE}, v72
  v_add_u32 v72, s{sTMP}, v72
  s_cmp_eq_u32 s{sJ}, 0
  s_cbranch_scc0 L_noinit
  v_mov_b32 v74, 0
  v_mov_b32 v75, s{sT}
  s_mov_b64 exec, 0xf
  global_store_dwordx2 v72, v[74:75], s[{sWS}:{sWS+1}] sc1
  s_mov_b64 exec, -1
L_noinit:
  s_mov_b32 s{sTMP+9}, 0
L_cinit:
  global_load_dwordx2 v[74:75], v72, s[{sWS}:{sWS+1}] sc1
  s_waitcnt vmcnt(0)
  v_cmp_ne_u32 vcc, s{sT}, v75
  s_cbranch_vccz L_cinit_ok""")
        spin_guard(g,sTMP+9,"L_fail_aux")
        g(f"""
  s_sleep 8
  s_branch L_cinit
L_cinit_ok:
  v_mov_b32 v4, {CINITF}
  v_mov_b32 v5, 1
  ds_write_b32 v4, v5
  v_mov_b32 v10, {ENDF}
  s_mov_b32 s{sTMP+9}, 0
L_endw:
  ds_read_b32 v11, v10
  s_waitcnt lgkmcnt(0)
  v_readfirstlane_b32 s{sTMP}, v11
  s_nop 0
  s_cmp_eq_u32 s{sTMP}, 1
  s_cbranch_scc1 L_endw_ok""")
        spin_guard(g,sTMP+9,"L_fail_aux",limit=1000000)
        g(f"""
  s_sleep {opt(o,'endsleep',4)}
  s_branch L_endw
L_endw_ok:""")
        emit_wo_stage(g,'m')
    elif DYN_S<128:
        g(f"""
  s_cmp_eq_u32 s{sJ}, 0
  s_cbranch_scc0 L_noinit
  s_mul_i32 s{sTMP}, s{sG}, {CNT_STRIDE}
  s_add_u32 s{sTMP}, s{sTMP}, {WS_CNT}
  v_mov_b32 v72, s{sTMP}
  v_mov_b32 v74, 0
  v_mov_b32 v75, s{sT}
  s_mov_b64 exec, 1
  global_store_dwordx2 v72, v[74:75], s[{sWS}:{sWS+1}] sc1
  s_mov_b64 exec, -1
L_noinit:""")
    wolate=opt(o,'wolate',False) and DYN_S<128
    if WDYN: pass
    elif auxb:
        aux_b(g,o)
        sched(g)
        emit_wo_stage(g,'m',which=(0,))
        if opt(o,'bfinlate',False) and opt(o,'abl',9)>=4: aux_bfinal(g,o)
    else:
        if opt(o,'wotouch',False): wo_touch(g,o)
        if not wolate: emit_wo_stage(g,'m')
        if DYN_S<128: sched(g)
        if wolate and not opt(o,'nowo',False): emit_wo_stage(g,'m')
    g(f"""
  s_waitcnt vmcnt(0) lgkmcnt(0)
  s_branch L_done
L_fail_aux:
  v_mov_b32 v24, 0xdeae
  v_mov_b32 v25, 12
  s_mov_b64 exec, 1
  global_store_dword v25, v24, s[{sDBG}:{sDBG+1}]
  s_mov_b64 exec, -1
""")
    if HELPER:
        g("  s_branch L_done")
        helper_wave(g,o)
    if opt(o,'dbgst',False):
        h=G(); fail_and_done(h,name,False); t=h.text()
        extra_code=f"""L_done:
  s_memrealtime s[80:81]
  s_waitcnt lgkmcnt(0)
  s_mov_b32 s73, s80
  s_cmp_eq_u32 s{sW}, 0
  s_cbranch_scc0 L_exit
  s_not_b32 s80, s64
  v_mov_b32 v24, 0
  v_mov_b32 v25, s80
  s_mov_b64 exec, 1
  global_atomic_umax v24, v25, s[{sDBG}:{sDBG+1}] sc1
"""
        for k,slot in ((2,1),(3,2),(4,3),(5,4),(9,5)):
            extra_code+=f"  v_mov_b32 v25, s{64+k}\n  global_atomic_umax v24, v25, s[{sDBG}:{sDBG+1}] offset:{4*slot} sc1\n"
            extra_code+=f"  s_sub_u32 s80, s{64+k}, s64\n  v_mov_b32 v26, s80\n  global_atomic_add v24, v26, s[{sDBG}:{sDBG+1}] offset:{4*(slot+7)} sc1\n"
        extra_code+="  s_waitcnt vmcnt(0)\n  s_mov_b64 exec, -1\n"
        t=t.replace("L_done:\n",extra_code)
        g(t)
    else:
        fail_and_done(g,name,True)
    lds = L_X2+65536 if extra else LDS_SIZE
    return khead(name)+uniq(g.text(),'_m'), kd(name,NARCH,NACC), name, lds

def build2(o):
    global MAP, DYN_S, DYN_LC, DYN_LOOK, SATOM, SCHSLEEP
    SATOM=opt(o,'satom',False); SCHSLEEP=opt(o,'schsleep',2)
    global WDYN
    WDYN=opt(o,'wdyn',False)
    global WJIT, STEAL
    WJIT=opt(o,'wjit',False); STEAL=opt(o,'steal',0)
    DYN_S=opt(o,'dyns',128); DYN_LC=opt(o,'dynlc',2); DYN_LOOK=opt(o,'look',6)
    MAP=opt(o,'map',7)
    global ROT
    ROT=opt(o,'rot',0)
    G1.STAMPS=opt(o,'stamps',False); G1.TAILST=bool(o.get('tailst')); G1.WQPOL=o.get('wqpol','nt'); G1.WOPOL=o.get('wopol','nt'); G1.WQTEST=0; G1.WQROT=opt(o,'wqrot',0)
    k=k_main2(o)
    src=HEADER+f"; @launch grid=(256,1,1) block=({384 if HELPER else 320},1,1) lds={k[3]}"+'\n.amdgcn_target "amdgcn-amd-amdhsa--gfx950"\n.text\n'
    src+=k[0]+'.section .rodata,"a"\n'+k[1]
    if opt(o,'meta',False):
        src+=".amdgpu_metadata\n---\namdhsa.version: [1, 2]\namdhsa.kernels:\n"
        src+=f"  - .name: {k[2]}\n    .symbol: {k[2]}.kd\n    .kernarg_segment_size: 104\n    .kernarg_segment_align: 8\n    .group_segment_fixed_size: 0\n    .private_segment_fixed_size: 0\n    .wavefront_size: 64\n    .sgpr_count: 96\n    .vgpr_count: 256\n    .max_flat_workgroup_size: 384\n    .args:\n      - {{.name: kernargs, .size: 104, .offset: 0, .value_kind: by_value}}\n"
        src+="...\n.end_amdgpu_metadata\n"
    return src
if __name__=='__main__':
    out=sys.argv[1]; o=dict(a.split('=',1) for a in sys.argv[2:])
    open(out,'w').write(build2(o))
```

```python
import sys, struct, math
KN='concat_heads__gqa_block_cached__mha_block_cached__decode'
def f2h(x): return "0x%08x"%struct.unpack('<I',struct.pack('<f',x))[0]

WS_EPOCH=0x0
WS_QG=0x1000
WS_STAT=0x22000
WS_PART=0x40000
WS_Y=0x140000
WS_CNT=0x240000
CNT_STRIDE=4352
WS_STAMP=0x300000
WS_SIZE=0x400000
L_WST=0x0000
L_QC=0x7000
L_FL=0x7800
L_ST=0xD800
L_CNT=0xD900
L_QUEUE=0xDA00
L_OB=0xDC00
L_FB=0xE000
LDS_SIZE=0xE200
SCALE=math.log2(math.e)/16.0

class G:
    def __init__(s): s.L=[]
    def __call__(s,txt):
        for l in txt.strip('\n').split('\n'): s.L.append(l)
    def text(s): return "\n".join(s.L)+"\n"

def opt(o,k,d):
    v=o.get(k,d)
    return type(d)(v) if not isinstance(d,bool) else (str(v).lower() in('1','true','yes'))

def load_tags(g, sWS, sT, sTB, tmp):
    g(f"""
  s_load_dword s{sT}, s[{sWS}:{sWS+1}], {WS_EPOCH}
  s_waitcnt lgkmcnt(0)
  s_add_u32 s{sT}, s{sT}, 1
  s_and_b32 s{tmp}, s{sT}, 0xff
  s_add_u32 s{sTB}, s{tmp}, 0x35
  s_and_b32 s{sTB}, s{sTB}, 0xff
  s_lshl_b32 s{sTB}, s{sTB}, 8
  s_or_b32 s{sTB}, s{sTB}, s{tmp}
  s_add_u32 s{tmp+1}, s{tmp}, 0x6b
  s_and_b32 s{tmp+1}, s{tmp+1}, 0xff
  s_lshl_b32 s{tmp+1}, s{tmp+1}, 16
  s_or_b32 s{sTB}, s{sTB}, s{tmp+1}
  s_add_u32 s{tmp+1}, s{tmp}, 0xa1
  s_lshl_b32 s{tmp+1}, s{tmp+1}, 24
  s_or_b32 s{sTB}, s{sTB}, s{tmp+1}
""")

STAMPS=False
WAL=False; L_WO=0xE200
SOFTBAR=None
RQ=2; RO=2
TAILST=False
WQPOL='nt'
WOPOL='nt'
WQTEST=0
WQROT=0
sST=64
def stamp(g,idx,cond_phase=False):
    if not STAMPS: return
    g(f"  s_memrealtime s[80:81]\n  s_waitcnt lgkmcnt(0)\n  s_mov_b32 s{sST+idx}, s80")
def stamp_init(g):
    if not STAMPS: return
    for i in range(16): g(f"  s_mov_b32 s{sST+i}, 0")
def stamp_write(g,nwaves=5):
    if not STAMPS: return
    g(f"""
  s_getreg_b32 s{sST+15}, hwreg(HW_REG_XCC_ID)
  s_mul_i32 s80, s2, {nwaves}
  s_add_u32 s80, s80, s{sW}
  s_lshl_b32 s80, s80, 6
  s_add_u32 s80, s80, {WS_STAMP}
  v_mov_b32 v25, s80""")
    for q in range(4):
        for i in range(4): g(f"  v_mov_b32 v{28+i}, s{sST+4*q+i}")
        g(f"  s_mov_b64 exec, 1\n  global_store_dwordx4 v25, v[28:31], s[{sWS}:{sWS+1}] offset:{16*q}\n  s_mov_b64 exec, -1\n  s_nop 1")
    g("  s_waitcnt vmcnt(0)")

def spin_guard(g, sCnt, lbl_fail, limit=200000):
    g(f"""
  s_add_u32 s{sCnt}, s{sCnt}, 1
  s_cmp_gt_u32 s{sCnt}, {limit}
  s_cbranch_scc1 {lbl_fail}
""")

def emit_qproj_ptrs(g):
    g(f"""
  s_lshr_b32 s44, s2, 7
  s_mul_i32 s45, s44, 40
  s_add_u32 s46, s0, s45
  s_addc_u32 s47, s1, 0
  s_load_dwordx2 s[48:49], s[46:47], 0     ; x
  s_load_dwordx2 s[52:53], s[46:47], 24    ; wq
""")
def emit_qproj(g, u, sWS, sT, lbl):
    emit_qproj_ptrs(g); g("  s_waitcnt lgkmcnt(0)")
    emit_qproj_issue(g); emit_qproj_compute(g,u,sWS,sT)
def emit_qproj_issue(g):
    g(f"""
  v_lshrrev_b32 v1, 2, v0
  v_lshlrev_b32 v1, 13, v1            ; (l>>2)*8192
  v_and_b32 v2, 3, v0
  v_lshlrev_b32 v3, 4, v2             ; (l&3)*16
  v_add_u32 v1, v1, v3
  v_mul_u32_u24 v4, 896, v2           ; (l&3)*896
  v_lshrrev_b32 v5, 4, v0             ; g
  v_lshlrev_b32 v6, 4, v5             ; g*16
  v_add_u32 v4, v4, v6
  s_and_b32 s45, s{RQ}, 127
  s_lshl_b32 s45, s45, 6
  s_and_b32 s49, s49, 0xffff
  s_mov_b32 s50, 3584
  s_mov_b32 s51, 0x20000
  s_and_b32 s53, s53, 0xffff
  s_mov_b32 s54, 3670016
  s_mov_b32 s55, 0x20000
  s_mov_b32 m0, {L_WST}
  s_nop 0
""")
    XA=16
    if WQTEST==1:
        g("  v_lshlrev_b32 v1, 4, v0\n  s_and_b32 s45, s2, 127\n  s_mul_i32 s45, s45, 28672")
    if WQTEST==2:
        g("  v_lshrrev_b32 v1, 5, v0\n  v_lshlrev_b32 v1, 13, v1\n  v_and_b32 v7, 31, v0\n  v_lshl_add_u32 v1, v7, 4, v1\n  s_and_b32 s45, s2, 7\n  s_mul_i32 s45, s45, 458752\n  s_lshr_b32 s44, s2, 3\n  s_and_b32 s44, s44, 15\n  s_lshl_b32 s44, s44, 9\n  s_add_u32 s45, s45, s44")
    for s_ in range(14):
        g(f"  buffer_load_dwordx4 v[{XA+4*s_}:{XA+4*s_+3}], v4, s[48:51], 0 offen offset:{s_*64}")
    if WQROT:
        g(f"""  s_mul_i32 s56, s2, {WQROT}
  s_mul_hi_u32 s57, s56, 0x9249250
  s_mul_i32 s57, s57, 28
  s_sub_u32 s56, s56, s57
  s_cmp_ge_u32 s56, 28
  s_cselect_b32 s57, 28, 0
  s_sub_u32 s56, s56, s57""")
        for ld in range(28):
            g(f"""  s_lshl_b32 s57, s56, 17
  s_add_u32 s57, s57, s45
  s_lshl_b32 s58, s56, 10
  s_add_u32 m0, s58, {L_WST}
  s_add_u32 s56, s56, 1
  buffer_load_dwordx4 v1, s[52:55], s57 offen {WQPOL} lds
  s_cmp_eq_u32 s56, 28
  s_cselect_b32 s56, 0, s56""")
    else:
      for ld in range(28):
        g(f"  buffer_load_dwordx4 v1, s[52:55], s45 offen {WQPOL} lds")
        if ld<27:
            g(f"  s_add_u32 s45, s45, {[16*8192,1024,2*8192][WQTEST]}\n  s_add_u32 m0, m0, 1024\n  s_nop 0")
    stamp(g,7)
def emit_qproj_compute(g,u,sWS,sT):
    XA=16
    g(f"""
  v_lshrrev_b32 v6, 2, v0
  v_and_b32 v6, 3, v6
  v_lshl_add_u32 v6, v5, 3, v6        ; 8g + r
  v_lshlrev_b32 v6, 6, v6
  v_lshl_add_u32 v6, v2, 3, v6
  v_add_u32 v6, {L_WST}, v6
  s_waitcnt vmcnt(0)
""")
    stamp(g,4)
    TB=72
    first=True
    for batch in range(2):
        for ss in range(7):
            s=batch*7+ss
            for cb in range(2):
                r=TB+8*ss+4*cb
                g(f"  ds_read_b64_tr_b16 v[{r}:{r+1}], v6 offset:{s*2048+cb*32}")
                g(f"  ds_read_b64_tr_b16 v[{r+2}:{r+3}], v6 offset:{s*2048+cb*32+256}")
        g("  s_waitcnt lgkmcnt(0)")
        for ss in range(7):
            s=batch*7+ss
            for cb in range(2):
                r=TB+8*ss+4*cb; d=8+4*cb
                c = "0" if s==0 else f"v[{d}:{d+3}]"
                g(f"  v_mfma_f32_16x16x32_bf16 v[{d}:{d+3}], v[{XA+4*s}:{XA+4*s+3}], v[{r}:{r+3}], {c}")
    g(f"""
  s_nop 7
  v_cmp_eq_u32 vcc, 1, v5
  v_cmp_eq_u32 s[56:57], 2, v5
  v_cmp_eq_u32 s[58:59], 3, v5
  s_nop 1
  v_cndmask_b32 v8, v8, v9, vcc
  v_cndmask_b32 v12, v12, v13, vcc
  v_cndmask_b32 v8, v8, v10, s[56:57]
  v_cndmask_b32 v12, v12, v14, s[56:57]
  v_cndmask_b32 v8, v8, v11, s[58:59]
  v_cndmask_b32 v12, v12, v15, s[58:59]
  v_and_b32 v7, 1, v0                 ; parity
  v_cmp_eq_u32 vcc, 0, v7
  v_mov_b32 v9, 0
  v_mov_b32 v13, 0
  s_nop 1
  v_mov_b32_dpp v9, v8 row_shl:1 row_mask:0xf bank_mask:0xf     ; val0[n+1]
  v_mov_b32_dpp v13, v12 row_shr:1 row_mask:0xf bank_mask:0xf   ; val1[n-1]
  s_nop 1
  v_cndmask_b32 v10, v13, v8, vcc
  v_cndmask_b32 v11, v12, v9, vcc
  v_cvt_pk_bf16_f32 v10, v10, v11
  v_mov_b32 v11, s{sT}
  s_lshr_b32 s44, s{RQ}, 7
  s_lshl_b32 s44, s44, 16             ; p*4*16*1024
  s_lshr_b32 s45, s{RQ}, 3
  s_and_b32 s45, s45, 15
  s_lshl_b32 s45, s45, 10             ; hq*1024
  s_add_u32 s44, s44, s45
  s_and_b32 s45, s{RQ}, 7
  s_lshl_b32 s45, s45, 7              ; ds*16*8
  s_add_u32 s44, s44, s45
  s_add_u32 s44, s44, {WS_QG}
  v_lshlrev_b32 v12, 14, v5           ; b*16*1024
  v_lshlrev_b32 v13, 6, v7            ; cb*8*8
  v_add_u32 v12, v12, v13
  v_and_b32 v13, 15, v0
  v_lshrrev_b32 v13, 1, v13
  v_lshl_add_u32 v12, v13, 3, v12
  v_add_u32 v12, s44, v12
  global_store_dwordx2 v12, v[10:11], s[{sWS}:{sWS+1}] sc1
""")

def emit_qgather(g, u, sWS, sT, sG, lblfail):
    g(f"""
  s_lshl_b32 s44, s{sG}, 11           ; 2g*1024
  s_add_u32 s44, s44, {WS_QG}
  v_lshlrev_b32 v1, 4, v0
  v_add_u32 v1, s44, v1               ; A vectors (p=0)
  v_add_u32 v2, 0x10000, v1           ; B vectors (p=1)
  s_mov_b32 s45, 0
L_qg_poll_{u}:
  global_load_dwordx4 v[8:11], v2, s[{sWS}:{sWS+1}] sc1
  global_load_dwordx4 v[12:15], v2, s[{sWS}:{sWS+1}] offset:1024 sc1
  global_load_dwordx4 v[16:19], v1, s[{sWS}:{sWS+1}] sc1
  global_load_dwordx4 v[20:23], v1, s[{sWS}:{sWS+1}] offset:1024 sc1
  s_waitcnt vmcnt(0)
""")
    if STAMPS:
        g(f"  s_add_u32 s{sST+5}, s{sST+5}, 1\n  s_cmp_eq_u32 s{sST+5}, 1\n  s_cbranch_scc0 L_qst_{u}")
        stamp(g,6)
        g(f"L_qst_{u}:")
    g(f"""
  v_xor_b32 v9, s{sT}, v9
  v_xor_b32 v11, s{sT}, v11
  v_xor_b32 v13, s{sT}, v13
  v_xor_b32 v15, s{sT}, v15
  v_xor_b32 v17, s{sT}, v17
  v_xor_b32 v19, s{sT}, v19
  v_xor_b32 v21, s{sT}, v21
  v_xor_b32 v23, s{sT}, v23
  v_or3_b32 v9, v9, v11, v13
  v_or3_b32 v15, v15, v17, v19
  v_or3_b32 v9, v9, v21, v23
  v_or_b32 v9, v9, v15
  v_cmp_ne_u32 vcc, 0, v9
  s_cbranch_vccz L_qg_ok_{u}
""")
    spin_guard(g,45,lblfail)
    g(f"""
  s_sleep 2
  s_branch L_qg_poll_{u}
L_qg_ok_{u}:
  v_lshlrev_b32 v3, 3, v0
  v_add_u32 v3, {L_QC}, v3
  v_mov_b32 v9, v10
  v_mov_b32 v13, v14
  v_mov_b32 v17, v18
  v_mov_b32 v21, v22
  ds_write_b64 v3, v[8:9]
  ds_write_b64 v3, v[12:13] offset:512
  ds_write_b64 v3, v[16:17] offset:1024
  ds_write_b64 v3, v[20:21] offset:1536
""")

def emit_wo_stage_al(g,u,which):
    g(f"""
  s_load_dwordx2 s[48:49], s[0:1], 32
  s_load_dwordx2 s[52:53], s[0:1], 72
  s_lshr_b32 s44, s{RO}, 2               ; h*4+dq
  s_mul_i32 s44, s44, {64*896}
  s_and_b32 s45, s{RO}, 3
  s_lshl_b32 s46, s45, 8
  s_add_u32 s44, s44, s46
  v_lshrrev_b32 v2, 4, v0
  v_mul_u32_u24 v2, 896, v2
  v_and_b32 v3, 15, v0
  v_lshl_add_u32 v4, v3, 4, v2        ; (l>>4)*896 + (l&15)*16
  s_cmp_eq_u32 s45, 3
  s_cselect_b32 s46, 8, 16
  v_cmp_le_u32 vcc, s46, v3
  v_mov_b32 v5, 0x7ffffff0
  s_nop 0
  v_cndmask_b32 v4, v4, v5, vcc
  s_waitcnt lgkmcnt(0)
  s_and_b32 s49, s49, 0xffff
  s_mov_b32 s50, 3670016
  s_mov_b32 s51, 0x20000
  s_and_b32 s53, s53, 0xffff
  s_mov_b32 s54, 3670016
  s_mov_b32 s55, 0x20000
""")
    for ld in range(16):
        if 0 in which: g(f"  s_mov_b32 m0, {L_WO+ld*1024}\n  s_nop 0\n  buffer_load_dwordx4 v4, s[48:51], s44 offen {WOPOL} lds")
        if 1 in which: g(f"  s_mov_b32 m0, {L_WO+16384+ld*1024}\n  s_nop 0\n  buffer_load_dwordx4 v4, s[52:55], s44 offen {WOPOL} lds")
        if ld<15: g(f"  s_add_u32 s44, s44, {4*896}")

def emit_wo_stage(g, u, which=(0,1)):
    if WAL: return emit_wo_stage_al(g,u,which)
    g(f"""
  s_load_dwordx2 s[48:49], s[0:1], 32
  s_load_dwordx2 s[52:53], s[0:1], 72
  s_lshr_b32 s44, s{RO}, 2               ; h*4+dq
  s_mul_i32 s44, s44, {64*896}
  s_and_b32 s45, s{RO}, 3
  s_mul_i32 s45, s45, 224
  s_add_u32 s44, s44, s45
  ; per lane: c = lane ; row = c/14, chunk = c%14
  v_mul_u32_u24 v2, 4682, v0          ; c*4682 >> 16 = c/14 for c<64
  v_lshrrev_b32 v2, 16, v2            ; row
  v_mul_u32_u24 v3, 14, v2
  v_sub_u32 v3, v0, v3                ; chunk
  s_waitcnt lgkmcnt(0)
  s_and_b32 s49, s49, 0xffff
  s_mov_b32 s50, 3670016
  s_mov_b32 s51, 0x20000
  s_and_b32 s53, s53, 0xffff
  s_mov_b32 s54, 3670016
  s_mov_b32 s55, 0x20000
""")
    for ld in range(14):
        g(f"""
  v_mul_u32_u24 v4, 896, v2
  v_lshl_add_u32 v4, v3, 4, v4""")
        if 0 in which: g(f"""  s_mov_b32 m0, {L_WST+ld*1024}
  s_nop 0
  buffer_load_dwordx4 v4, s[48:51], s44 offen {WOPOL} lds""")
        if 1 in which: g(f"""  s_mov_b32 m0, {L_WST+14336+ld*1024}
  s_nop 0
  buffer_load_dwordx4 v4, s[52:55], s44 offen {WOPOL} lds""")
        if ld<13:
            g(f"""
  v_add_u32 v3, 8, v3
  v_add_u32 v2, 4, v2
  v_cmp_le_u32 vcc, 14, v3
  v_subrev_u32 v5, 14, v3
  v_add_u32 v6, 1, v2
  v_cndmask_b32 v3, v3, v5, vcc
  v_cndmask_b32 v2, v2, v6, vcc""")

sW=3; SW_=3; sG=4; sJ=5; sT=6; sTB=7
sK=8
sV=12
sKA=16; sVA=18; sKB=20; sVB=22; sWS=24; sDBG=26; sOUT=28
sOFF=30; sCNT=31; sPH=32; sNXT=33; sKN=34; sTRIG=35; sSKIP=36; sCPH=37
sC=38; sSLO=39; sSHI=40
sTMP=44
sERR=60
vOK=1; vOV=2; vM=3; vMC=4; vL=5; vLANE=6; vX=7
vS=8; vT=12; vP=20; vB=24; vACC=40; vV=[72,104]
NARCH=136
aK=[0,32]; aQ=64
NACC=96

def chunk_table(o):
    tab=o.get('tab','dyn')
    if tab=='static': return 32, []
    if tab=='dyn': return 12, [(8,8),(8,5),(8,3),(8,2),(16,1)]
    a,b=tab.split(':'); lst=[tuple(int(x) for x in t.split('x')) for t in b.split(',')] if b else []
    return int(a), lst

def emit_k_loads(g,buf,pol):
    for j in range(8):
        r=aK[buf]+4*j
        g(f"  buffer_load_dwordx4 a[{r}:{r+3}], v{vOK}, s[{sK}:{sK+3}], s{sOFF} offen offset:{j*64} {pol}")
VSKEW=0
def emit_v_loads(g,buf,pol):
    if VSKEW:
        g(f"  s_add_u32 s84, s{sOFF}, {VSKEW*8192}\n  s_and_b32 s84, s84, 0xfffff\n  s_and_b32 s85, s{sOFF}, 0xfff00000\n  s_or_b32 s84, s84, s85")
        for r8 in range(8):
            r=vV[buf]+4*r8
            g(f"  buffer_load_dwordx4 v[{r}:{r+3}], v{vOV}, s[{sV}:{sV+3}], s84 offen offset:{r8*512} {pol}")
        return
    for r8 in range(8):
        r=vV[buf]+4*r8
        g(f"  buffer_load_dwordx4 v[{r}:{r+3}], v{vOV}, s[{sV}:{sV+3}], s{sOFF} offen offset:{r8*512} {pol}")

def set_srd_head(g, sKp, sVp, sIdx):
    g(f"""
  s_lshl_b32 s{sTMP}, s{sIdx}, 23
  s_lshr_b32 s{sTMP+1}, s{sIdx}, 9
  s_add_u32 s{sK}, s{sKp}, s{sTMP}
  s_addc_u32 s{sK+1}, s{sKp+1}, s{sTMP+1}
  s_and_b32 s{sK+1}, s{sK+1}, 0xffff
  s_add_u32 s{sV}, s{sVp}, s{sTMP}
  s_addc_u32 s{sV+1}, s{sVp+1}, s{sTMP+1}
  s_and_b32 s{sV+1}, s{sV+1}, 0xffff
  s_mov_b32 s{sK+2}, 0x800000
  s_mov_b32 s{sV+2}, 0x800000
  s_mov_b32 s{sK+3}, 0x20000
  s_mov_b32 s{sV+3}, 0x20000
""")

def emit_advance(g,o,u):
    size0,tab=chunk_table(o)
    g(f"""
  s_cmp_eq_u32 s{sPH}, 2
  s_cbranch_scc1 L_adv_dyn_{u}
  s_add_u32 s{sPH}, s{sPH}, 1
  s_mov_b32 s{sNXT}, 1
  s_cmp_eq_u32 s{sPH}, 2
  s_cbranch_scc1 L_adv_p2_{u}
  s_lshl_b32 s{sTMP+2}, s{sG}, 1
  s_add_u32 s{sTMP+2}, s{sTMP+2}, 1
""")
    set_srd_head(g,sKB,sVB,sTMP+2)
    g(f"""
  s_lshl_b32 s{sOFF}, s{sJ}, 20
  s_lshl_b32 s{sTMP}, s{sW}, 18
  s_add_u32 s{sOFF}, s{sOFF}, s{sTMP}
  s_mov_b32 s{sCNT}, 32
  s_branch L_adv_done_{u}
L_adv_p2_{u}:
""")
    set_srd_head(g,sKA,sVA,sG)
    g(f"""
  ; first chunk static: start unit = j*size0, per wave size0 tiles
  s_mul_i32 s{sOFF}, s{sJ}, {size0*64*512}
  s_mul_i32 s{sTMP}, s{sW}, {size0*16*512}
  s_add_u32 s{sOFF}, s{sOFF}, s{sTMP}
  s_mov_b32 s{sCNT}, {size0}
  s_mov_b32 s{sKN}, 1
  s_mov_b32 s{sTRIG}, 3
  s_branch L_adv_done_{u}
L_adv_dyn_{u}:
  s_lshl_b32 s{sTMP}, s{sKN}, 2
  s_add_u32 s{sTMP}, s{sTMP}, {L_QUEUE}
  v_mov_b32 v{vX}, s{sTMP}
  s_mov_b32 s{sTMP+2}, 0
L_adv_poll_{u}:
  ds_read_b32 v{vT}, v{vX}
  s_waitcnt lgkmcnt(0)
  v_readfirstlane_b32 s{sTMP+1}, v{vT}
  s_nop 0
  s_cmp_eq_u32 s{sTMP+1}, -1
  s_cbranch_scc0 L_adv_got_{u}
""")
    spin_guard(g,sTMP+2,"L_fail")
    if STAMPS: g(f"  s_add_u32 s{sST+11}, s{sST+11}, 1")
    g(f"""
  s_sleep 1
  s_branch L_adv_poll_{u}
L_adv_got_{u}:
  s_add_u32 s{sKN}, s{sKN}, 1
  s_cmp_eq_u32 s{sTMP+1}, -2
  s_cbranch_scc1 L_adv_end_{u}
  s_and_b32 s{sCNT}, s{sTMP+1}, 0xff
  s_lshr_b32 s{sOFF}, s{sTMP+1}, 8
  s_lshl_b32 s{sOFF}, s{sOFF}, 15
  s_mul_i32 s{sTMP}, s{sW}, s{sCNT}
  s_lshl_b32 s{sTMP}, s{sTMP}, 13
  s_add_u32 s{sOFF}, s{sOFF}, s{sTMP}
  s_branch L_adv_done_{u}
L_adv_end_{u}:
  s_mov_b32 s{sNXT}, 2
  s_mov_b32 s{sK+2}, 0
  s_mov_b32 s{sV+2}, 0
  s_mov_b32 s{sCNT}, 0x10000
  s_mov_b32 s{sTRIG}, 0
  s_mov_b32 s{sOFF}, 0
L_adv_done_{u}:
""")

def emit_body(g,o,b):
    pol=o.get('pol','nt'); vearly=opt(o,'vearly',False)
    nb=b^1; u=f"b{b}"
    g(f"L_body_{u}:")
    g(f"  s_waitcnt vmcnt(8)")
    for j in range(8):
        c="0" if j==0 else f"v[{vS}:{vS+3}]"
        g(f"  v_mfma_f32_16x16x32_bf16 v[{vS}:{vS+3}], a[{aK[b]+4*j}:{aK[b]+4*j+3}], a[{aQ+4*j}:{aQ+4*j+3}], {c}")
    g(f"""
  s_cmp_eq_u32 s{sSKIP}, 0
  s_cbranch_scc0 L_nokld_{u}
  s_cmp_eq_u32 s{sCNT}, 0
  s_cbranch_scc0 L_kld_{u}""")
    emit_advance(g,o,u)
    g(f"L_kld_{u}:")
    emit_k_loads(g,nb,pol)
    if vearly: emit_v_loads(g,nb,pol)
    g(f"L_nokld_{u}:")
    t=vT
    g(f"""
  s_nop 5
  v_max3_f32 v{t}, v{vS}, v{vS+1}, v{vS+2}
  v_max_f32 v{t}, v{t}, v{vS+3}
  v_mov_b32 v{t+1}, v{t}
  s_nop 1
  v_permlane16_swap_b32 v{t}, v{t+1}
  v_max_f32 v{t}, v{t}, v{t+1}
  v_mov_b32 v{t+1}, v{t}
  s_nop 1
  v_permlane32_swap_b32 v{t}, v{t+1}
  v_max_f32 v{t}, v{t}, v{t+1}
  v_cmp_gt_f32 vcc, v{t}, v{vM}
  s_cbranch_vccnz L_rare_{u}
L_back_{u}:
  v_fma_f32 v{t+2}, v{vS}, s{sC}, -v{vMC}
  v_fma_f32 v{t+3}, v{vS+1}, s{sC}, -v{vMC}
  v_fma_f32 v{t+4}, v{vS+2}, s{sC}, -v{vMC}
  v_fma_f32 v{t+5}, v{vS+3}, s{sC}, -v{vMC}
  v_exp_f32 v{t+2}, v{t+2}
  v_exp_f32 v{t+3}, v{t+3}
  v_exp_f32 v{t+4}, v{t+4}
  v_exp_f32 v{t+5}, v{t+5}
  v_add_f32 v{t+6}, v{t+2}, v{t+3}
  v_cvt_pk_bf16_f32 v{vP}, v{t+2}, v{t+3}
  v_add_f32 v{t+7}, v{t+4}, v{t+5}
  v_cvt_pk_bf16_f32 v{vP+1}, v{t+4}, v{t+5}
  v_add_f32 v{t+6}, v{t+6}, v{t+7}
  v_mov_b32 v{vP+2}, v{vP}
  v_mov_b32 v{vP+3}, v{vP+1}
  v_add_f32 v{vL}, v{vL}, v{t+6}
  s_nop 0
  v_permlane16_swap_b32 v{vP}, v{vP+2}
  v_permlane16_swap_b32 v{vP+1}, v{vP+3}
  s_waitcnt vmcnt({16 if vearly else 8})
""")
    for t2 in range(2):
        R=[vV[b]+4*(4*t2+rr) for rr in range(4)]
        for dw in range(4):
            g(f"  v_perm_b32 v{vB+4*dw}, v{R[1]+dw}, v{R[0]+dw}, s{sSLO}")
            g(f"  v_perm_b32 v{vB+4*dw+1}, v{R[3]+dw}, v{R[2]+dw}, s{sSLO}")
            g(f"  v_perm_b32 v{vB+4*dw+2}, v{R[1]+dw}, v{R[0]+dw}, s{sSHI}")
            g(f"  v_perm_b32 v{vB+4*dw+3}, v{R[3]+dw}, v{R[2]+dw}, s{sSHI}")
        for jj in range(8):
            a=vACC+4*jj
            g(f"  v_mfma_f32_4x4x4_16b_bf16 v[{a}:{a+3}], v[{vP+2*t2}:{vP+2*t2+1}], v[{vB+2*jj}:{vB+2*jj+1}], v[{a}:{a+3}]")
    g(f"""
  s_cmp_eq_u32 s{sSKIP}, 0
  s_cbranch_scc0 L_novld_{u}""")
    if not vearly: emit_v_loads(g,nb,pol)
    g(f"""
  s_add_u32 s{sOFF}, s{sOFF}, 8192
  s_sub_u32 s{sCNT}, s{sCNT}, 1
  s_cmp_lt_u32 s{sCNT}, s{sTRIG}
  s_cbranch_scc0 L_novld_{u}
  v_mov_b32 v{vX}, {L_CNT+12}
  v_mov_b32 v{vT}, s{sKN}
  ds_max_u32 v{vX}, v{vT}
L_novld_{u}:
  s_mov_b32 s{sSKIP}, 0
  s_cmp_eq_u32 s{sNXT}, 0
  s_cbranch_scc0 L_flush_{u}
""")
    if b==1: g("  s_branch L_body_b0")

def emit_rare(g,b):
    u=f"b{b}"; t=vT
    g(f"""
L_rare_{u}:
  v_max_f32 v{t+1}, v{t}, v{vM}
  v_sub_f32 v{t+2}, v{vM}, v{t+1}
  v_mul_f32 v{t+2}, s{sC}, v{t+2}
  v_exp_f32 v{t+2}, v{t+2}
  v_mov_b32 v{vM}, v{t+1}
  v_mul_f32 v{vMC}, s{sC}, v{t+1}
  v_mul_f32 v{vL}, v{vL}, v{t+2}
  s_nop 0
  v_mov_b32_dpp v{t+3}, v{t+2} quad_perm:[0,0,2,2] row_mask:0xf bank_mask:0xf
  v_mov_b32_dpp v{t+4}, v{t+2} quad_perm:[1,1,3,3] row_mask:0xf bank_mask:0xf
""")
    for jj in range(8):
        g(f"  v_mul_f32 v{vACC+4*jj}, v{vACC+4*jj}, v{t+3}")
        g(f"  v_mul_f32 v{vACC+4*jj+1}, v{vACC+4*jj+1}, v{t+4}")
    g(f"  s_branch L_back_{u}")

def tag_embed(g, regs, vTagv, sSel):
    for k,r in enumerate(regs):
        g(f"  s_mov_b32 s{sSel}, {hex(0x07060500|k)}\n  v_perm_b32 v{r}, v{r}, v{vTagv}, s{sSel}")

def emit_flush(g,o,b):
    u=f"b{b}"; t=vT
    g(f"""
L_flush_{u}:
  s_nop 4""")
    if STAMPS:
        g(f"  s_memrealtime s[80:81]\n  s_waitcnt lgkmcnt(0)\n  s_cmp_eq_u32 s{sCPH}, 0\n  s_cselect_b32 s{sST+3}, s80, s{sST+3}\n  s_cmp_eq_u32 s{sCPH}, 1\n  s_cselect_b32 s{sST+4}, s80, s{sST+4}\n  s_cmp_eq_u32 s{sCPH}, 2\n  s_cselect_b32 s{sST+5}, s80, s{sST+5}")
    for jj in range(8):
        a=vACC+4*jj
        g(f"  v_permlane32_swap_b32 v{a}, v{a+1}")
    for jj in range(8):
        a=vACC+4*jj
        g(f"  v_add_f32 v{vB+jj}, v{a}, v{a+1}")
    g(f"""
  v_mov_b32 v{t}, v{vL}
  s_nop 1
  v_permlane16_swap_b32 v{vL}, v{t}
  v_add_f32 v{vL}, v{vL}, v{t}
  v_mov_b32 v{t}, v{vL}
  s_nop 1
  v_permlane32_swap_b32 v{vL}, v{t}
  v_add_f32 v{vL}, v{vL}, v{t}
  s_lshl_b32 s{sTMP}, s{sCPH}, 13
  s_lshl_b32 s{sTMP+1}, s{sW}, 11
  s_add_u32 s{sTMP}, s{sTMP}, s{sTMP+1}
  s_add_u32 s{sTMP}, s{sTMP}, {L_FL}
  v_lshlrev_b32 v{t}, 5, v{vLANE}
  v_add_u32 v{t}, s{sTMP}, v{t}
  ds_write_b128 v{t}, v[{vB}:{vB+3}]
  ds_write_b128 v{t}, v[{vB+4}:{vB+7}] offset:16
  s_lshl_b32 s{sTMP}, s{sCPH}, 6
  s_lshl_b32 s{sTMP+1}, s{sW}, 4
  s_add_u32 s{sTMP}, s{sTMP}, s{sTMP+1}
  s_add_u32 s{sTMP}, s{sTMP}, {L_ST}
  v_and_b32 v{t+1}, 1, v{vLANE}
  v_lshlrev_b32 v{t+1}, 3, v{t+1}
  v_add_u32 v{t+1}, s{sTMP}, v{t+1}
  v_mov_b32 v{t+2}, v{vMC}
  v_mov_b32 v{t+3}, v{vL}
  ds_write_b64 v{t+1}, v[{t+2}:{t+3}]
  s_waitcnt lgkmcnt(0)
  s_lshl_b32 s{sTMP}, s{sCPH}, 2
  s_add_u32 s{sTMP}, s{sTMP}, {L_CNT}
  v_mov_b32 v{t}, s{sTMP}
  v_mov_b32 v{t+1}, 1
  s_mov_b64 exec, 1
  ds_add_rtn_u32 v{t+2}, v{t}, v{t+1}
  s_mov_b64 exec, -1
  s_waitcnt lgkmcnt(0)
  v_readfirstlane_b32 s{sTMP}, v{t+2}
  s_nop 0
  s_cmp_eq_u32 s{sTMP}, 3
  s_cbranch_scc0 L_nomerge_{u}
""")
    g(f"""
  s_and_b32 s{sTMP+2}, s{sG}, 7
  s_lshl_b32 s{sTMP+2}, s{sTMP+2}, 1          ; hq0
  s_lshr_b32 s{sTMP+3}, s{sG}, 3              ; b
  s_cmp_eq_u32 s{sCPH}, 2
  s_cselect_b32 s{sTMP+4}, 0, 16              ; p*16
  s_cselect_b32 s{sTMP+5}, 0, s{sCPH}
  s_cselect_b32 s{sTMP+6}, 2, 1
  s_add_u32 s{sTMP+2}, s{sTMP+2}, s{sTMP+4}
  s_add_u32 s{sTMP+2}, s{sTMP+2}, s{sTMP+5}   ; p*16+hq
  s_lshl_b32 s{sTMP+2}, s{sTMP+2}, 2
  s_add_u32 s{sTMP+2}, s{sTMP+2}, s{sTMP+3}   ; *4 + b
  s_lshl_b32 s{sTMP+2}, s{sTMP+2}, 3
  s_add_u32 s{sTMP+2}, s{sTMP+2}, s{sJ}
  s_mov_b32 s{sTMP+7}, 0                      ; hh
  v_mov_b32 v{vX}, s{sTB}
L_merge_{u}:
  s_lshl_b32 s{sTMP}, s{sCPH}, 6
  s_lshl_b32 s{sTMP+1}, s{sTMP+7}, 3
  s_add_u32 s{sTMP}, s{sTMP}, s{sTMP+1}
  s_add_u32 s{sTMP}, s{sTMP}, {L_ST}
  v_mov_b32 v{t}, s{sTMP}
  ds_read_b64 v[{vB}:{vB+1}], v{t}
  ds_read_b64 v[{vB+2}:{vB+3}], v{t} offset:16
  ds_read_b64 v[{vB+4}:{vB+5}], v{t} offset:32
  ds_read_b64 v[{vB+6}:{vB+7}], v{t} offset:48
  s_lshl_b32 s{sTMP}, s{sCPH}, 13
  s_lshl_b32 s{sTMP+1}, s{sTMP+7}, 10
  s_add_u32 s{sTMP}, s{sTMP}, s{sTMP+1}
  s_add_u32 s{sTMP}, s{sTMP}, {L_FL}
  v_lshlrev_b32 v{t+1}, 4, v{vLANE}
  v_add_u32 v{t+1}, s{sTMP}, v{t+1}
  ds_read_b128 v[{vACC}:{vACC+3}], v{t+1}
  ds_read_b128 v[{vACC+4}:{vACC+7}], v{t+1} offset:2048
  ds_read_b128 v[{vACC+8}:{vACC+11}], v{t+1} offset:4096
  ds_read_b128 v[{vACC+12}:{vACC+15}], v{t+1} offset:6144
  s_waitcnt lgkmcnt(0)
  v_max3_f32 v{t+2}, v{vB}, v{vB+2}, v{vB+4}
  v_max_f32 v{t+2}, v{t+2}, v{vB+6}           ; M
  v_sub_f32 v{vB}, v{vB}, v{t+2}
  v_sub_f32 v{vB+2}, v{vB+2}, v{t+2}
  v_sub_f32 v{vB+4}, v{vB+4}, v{t+2}
  v_sub_f32 v{vB+6}, v{vB+6}, v{t+2}
  v_exp_f32 v{vB}, v{vB}
  v_exp_f32 v{vB+2}, v{vB+2}
  v_exp_f32 v{vB+4}, v{vB+4}
  v_exp_f32 v{vB+6}, v{vB+6}
  s_nop 0
  v_mul_f32 v{t+3}, v{vB}, v{vB+1}
  v_fmac_f32 v{t+3}, v{vB+2}, v{vB+3}
  v_fmac_f32 v{t+3}, v{vB+4}, v{vB+5}
  v_fmac_f32 v{t+3}, v{vB+6}, v{vB+7}         ; L
""")
    for k in range(4):
        g(f"""  v_mul_f32 v{vB+8+k}, v{vB}, v{vACC+k}
  v_fmac_f32 v{vB+8+k}, v{vB+2}, v{vACC+4+k}
  v_fmac_f32 v{vB+8+k}, v{vB+4}, v{vACC+8+k}
  v_fmac_f32 v{vB+8+k}, v{vB+6}, v{vACC+12+k}""")
    tag_embed(g,[vB+8,vB+9,vB+10,vB+11],vX,sTMP)
    g(f"""
  s_lshl_b32 s{sTMP}, s{sTMP+2}, 10
  s_add_u32 s{sTMP}, s{sTMP}, {WS_PART}
  v_lshlrev_b32 v{t}, 4, v{vLANE}
  v_add_u32 v{t}, s{sTMP}, v{t}
  global_store_dwordx4 v{t}, v[{vB+8}:{vB+11}], s[{sWS}:{sWS+1}] sc1
  v_mov_b32 v{vB+12}, v{t+2}
  v_mov_b32 v{vB+13}, s{sT}
  v_mov_b32 v{vB+14}, v{t+3}
  v_mov_b32 v{vB+15}, s{sT}
  s_lshl_b32 s{sTMP}, s{sTMP+2}, 4
  s_add_u32 s{sTMP}, s{sTMP}, {WS_STAT}
  v_mov_b32 v{t}, s{sTMP}
  s_mov_b64 exec, 1
  global_store_dwordx4 v{t}, v[{vB+12}:{vB+15}], s[{sWS}:{sWS+1}] sc1
  s_mov_b64 exec, -1
  s_add_u32 s{sTMP+7}, s{sTMP+7}, 1
  s_add_u32 s{sTMP+2}, s{sTMP+2}, 32
  s_cmp_lt_u32 s{sTMP+7}, s{sTMP+6}
  s_cbranch_scc1 L_merge_{u}
L_nomerge_{u}:
  s_cmp_eq_u32 s{sNXT}, 2
  s_cbranch_scc1 L_tail
  s_add_u32 s{sCPH}, s{sCPH}, 1
  s_mov_b32 s{sNXT}, 0
""")
    emit_reset_and_q(g)
    g(f"  s_branch L_body_b{b^1}")

def emit_reset_and_q(g):
    t=vT
    g(f"""
  v_and_b32 v{t}, 1, v{vLANE}
  s_cmp_eq_u32 s{sCPH}, 2
  s_cselect_b32 s{sTMP}, 512, 0
  v_mul_u32_u24 v{t}, s{sTMP}, v{t}
  s_lshl_b32 s{sTMP}, s{sCPH}, 9
  s_add_u32 s{sTMP}, s{sTMP}, {L_QC}
  v_add_u32 v{t}, s{sTMP}, v{t}
  v_lshrrev_b32 v{t+1}, 4, v{vLANE}
  v_lshl_add_u32 v{t}, v{t+1}, 4, v{t}
""")
    for j in range(8):
        g(f"  ds_read_b128 a[{aQ+4*j}:{aQ+4*j+3}], v{t} offset:{j*64}")
    g(f"""
  v_mov_b32 v{vM}, 0xff800000
  v_mov_b32 v{vMC}, 0xff800000
  v_mov_b32 v{vL}, 0""")
    for r in range(32): g(f"  v_mov_b32 v{vACC+r}, 0")
    g("  s_waitcnt lgkmcnt(0)")

def emit_role(g,o,p,u,wreg=None,fail='L_fail',sleep=1,part=0,pre=None):
    t=vT; D0=24; D1=28; S0=32; S1=36
    sW=wreg if wreg is not None else SW_
    if part in (0,1): _role_p1(g,o,p,u,sW,fail,sleep,pre)
    if part==0:
        if o.get('tailst') and p==0: stamp(g,11)
        if SOFTBAR is not None: SOFTBAR(g,u)
        else: g("  s_barrier")
        if o.get('tailst') and p==0: stamp(g,12)
    if part in (0,2): _role_p2(g,o,p,u,sW)

def _role_addr(g,p,sW):
    t=vT
    g(f"""
  s_lshr_b32 s{sTMP}, s{RO}, 4                   ; h
  s_add_u32 s{sTMP}, s{sTMP}, {p*16}
  s_lshl_b32 s{sTMP}, s{sTMP}, 2
  s_add_u32 s{sTMP}, s{sTMP}, s{sW}           ; (p*16+h)*4 + b
  s_lshl_b32 s{sTMP}, s{sTMP}, 3
  s_lshl_b32 s{sTMP+1}, s{sTMP}, 4
  s_add_u32 s{sTMP+1}, s{sTMP+1}, {WS_STAT}
  s_lshl_b32 s{sTMP+2}, s{sTMP}, 10
  s_add_u32 s{sTMP+2}, s{sTMP+2}, {WS_PART}
  s_lshr_b32 s{sTMP+3}, s{RO}, 2
  s_and_b32 s{sTMP+3}, s{sTMP+3}, 3           ; dq
  s_lshl_b32 s{sTMP+3}, s{sTMP+3}, 8
  s_add_u32 s{sTMP+2}, s{sTMP+2}, s{sTMP+3}
  v_lshrrev_b32 v{t}, 4, v{vLANE}             ; grp
  v_and_b32 v{t+1}, 15, v{vLANE}
  v_lshlrev_b32 v{t+2}, 4, v{t}
  v_add_u32 v{t+2}, s{sTMP+1}, v{t+2}
  v_lshlrev_b32 v{t+3}, 10, v{t}
  v_lshl_add_u32 v{t+3}, v{t+1}, 4, v{t+3}
  v_add_u32 v{t+3}, s{sTMP+2}, v{t+3}
  v_add_u32 v{t+4}, 4096, v{t+3}              ; j=grp+4
  s_mov_b32 s{sTMP+4}, 0
  s_mov_b32 s{sTMP+5}, 0x0c0c0400
  s_mov_b32 s{sTMP+6}, 0x04000c0c
""")

def _role_pre(g,p,sW,R):
    t=vT
    _role_addr(g,p,sW)
    g(f"""
  global_load_dwordx4 v[{R+8}:{R+11}], v{t+2}, s[{sWS}:{sWS+1}] sc1
  global_load_dwordx4 v[{R+12}:{R+15}], v{t+2}, s[{sWS}:{sWS+1}] offset:64 sc1
  global_load_dwordx4 v[{R}:{R+3}], v{t+3}, s[{sWS}:{sWS+1}] sc1
  global_load_dwordx4 v[{R+4}:{R+7}], v{t+4}, s[{sWS}:{sWS+1}] sc1""")

def _role_p1(g,o,p,u,sW,fail,sleep,pre=None):
    t=vT; D0=24; D1=28; S0=32; S1=36
    _role_addr(g,p,sW)
    if pre is not None:
        for k in range(16): g(f"  v_mov_b32 v{24+k}, v{pre+k}")
        g(f"  s_branch L_role_chk_{u}")
    g(f"""
L_role_poll_{u}:
  global_load_dwordx4 v[{S0}:{S0+3}], v{t+2}, s[{sWS}:{sWS+1}] sc1
  global_load_dwordx4 v[{S1}:{S1+3}], v{t+2}, s[{sWS}:{sWS+1}] offset:64 sc1
  global_load_dwordx4 v[{D0}:{D0+3}], v{t+3}, s[{sWS}:{sWS+1}] sc1
  global_load_dwordx4 v[{D1}:{D1+3}], v{t+4}, s[{sWS}:{sWS+1}] sc1
  s_waitcnt vmcnt(0)
L_role_chk_{u}:
  v_perm_b32 v{t+5}, v{D0+1}, v{D0}, s{sTMP+5}      ; [b0(D0), b0(D0+1), 0, 0]
  v_perm_b32 v{t+6}, v{D0+3}, v{D0+2}, s{sTMP+6}    ; [0,0,b0(D0+2), b0(D0+3)]
  v_or_b32 v{t+5}, v{t+5}, v{t+6}
  v_perm_b32 v{t+6}, v{D1+1}, v{D1}, s{sTMP+5}
  v_perm_b32 v{t+7}, v{D1+3}, v{D1+2}, s{sTMP+6}
  v_or_b32 v{t+6}, v{t+6}, v{t+7}
  v_xor_b32 v{t+5}, s{sTB}, v{t+5}
  v_xor_b32 v{t+6}, s{sTB}, v{t+6}
  v_or_b32 v{t+5}, v{t+5}, v{t+6}
  v_xor_b32 v{t+6}, s{sT}, v{S0+1}
  v_xor_b32 v{t+7}, s{sT}, v{S1+1}
  v_or3_b32 v{t+5}, v{t+5}, v{t+6}, v{t+7}
  v_xor_b32 v{t+6}, s{sT}, v{S0+3}
  v_xor_b32 v{t+7}, s{sT}, v{S1+3}
  v_or3_b32 v{t+5}, v{t+5}, v{t+6}, v{t+7}
  v_cmp_ne_u32 vcc, 0, v{t+5}
  s_cbranch_vccz L_role_ok_{u}
""")
    spin_guard(g,sTMP+4,fail)
    g(f"""
  s_sleep {sleep}
  s_branch L_role_poll_{u}
L_role_ok_{u}:""")
    if o.get('tailst') and p==0: stamp(g,10)
    g(f"""
  v_max_f32 v{t+5}, v{S0}, v{S1}
  v_mov_b32 v{t+6}, v{t+5}
  s_nop 1
  v_permlane16_swap_b32 v{t+5}, v{t+6}
  v_max_f32 v{t+5}, v{t+5}, v{t+6}
  v_mov_b32 v{t+6}, v{t+5}
  s_nop 1
  v_permlane32_swap_b32 v{t+5}, v{t+6}
  v_max_f32 v{t+5}, v{t+5}, v{t+6}            ; M
  v_sub_f32 v{S0}, v{S0}, v{t+5}
  v_sub_f32 v{S1}, v{S1}, v{t+5}
  v_exp_f32 v{S0}, v{S0}
  v_exp_f32 v{S1}, v{S1}
  s_nop 0
  v_mul_f32 v{t+5}, v{S0}, v{S0+2}
  v_fmac_f32 v{t+5}, v{S1}, v{S1+2}           ; partial L
""")
    for k in range(4):
        g(f"  v_mul_f32 v{D0+k}, v{S0}, v{D0+k}\n  v_fmac_f32 v{D0+k}, v{S1}, v{D1+k}")
    vals=[D0,D0+1,D0+2,D0+3,t+5]
    tmp=[D1,D1+1,D1+2,D1+3,t+6]
    for sw in ('v_permlane16_swap_b32','v_permlane32_swap_b32'):
        for v,w_ in zip(vals,tmp): g(f"  v_mov_b32 v{w_}, v{v}")
        g("  s_nop 1")
        for v,w_ in zip(vals,tmp): g(f"  {sw} v{v}, v{w_}")
        for v,w_ in zip(vals,tmp): g(f"  v_add_f32 v{v}, v{v}, v{w_}")
    g(f"""
  v_rcp_f32 v{t+5}, v{t+5}
  s_nop 0
  v_mul_f32 v{D0}, v{D0}, v{t+5}
  v_mul_f32 v{D0+1}, v{D0+1}, v{t+5}
  v_mul_f32 v{D0+2}, v{D0+2}, v{t+5}
  v_mul_f32 v{D0+3}, v{D0+3}, v{t+5}
  v_cvt_pk_bf16_f32 v{D0}, v{D0}, v{D0+1}
  v_cvt_pk_bf16_f32 v{D0+1}, v{D0+2}, v{D0+3}
  s_lshl_b32 s{sTMP}, s{sW}, 7
  s_add_u32 s{sTMP}, s{sTMP}, {L_OB+p*512}
  v_lshlrev_b32 v{t+1}, 3, v{t+1}
  v_add_u32 v{t+1}, s{sTMP}, v{t+1}
  ds_write_b64 v{t+1}, v[{D0}:{D0+1}]
  s_waitcnt lgkmcnt(0)""")

def _role_p2(g,o,p,u,sW):
    t=vT
    PITCH=256 if WAL else 224; WBASE=(L_WO+p*16384) if WAL else (L_WST+p*14336); YC=128 if WAL else 112
    g(f"""
  v_lshrrev_b32 v{t}, 4, v{vLANE}             ; grp
  v_and_b32 v{t+1}, 3, v{vLANE}
  v_lshlrev_b32 v{t+2}, 7, v{t+1}
  v_lshl_add_u32 v{t+2}, v{t}, 4, v{t+2}
  v_add_u32 v{t+2}, {L_OB+p*512}, v{t+2}
  ds_read_b128 v[40:43], v{t+2}
  ds_read_b128 v[44:47], v{t+2} offset:64
  v_lshrrev_b32 v{t+3}, 2, v{vLANE}
  v_and_b32 v{t+3}, 3, v{t+3}
  v_lshl_add_u32 v{t+3}, v{t}, 3, v{t+3}
  v_mul_u32_u24 v{t+3}, {PITCH}, v{t+3}
  v_lshl_add_u32 v{t+3}, v{t+1}, 3, v{t+3}
  s_lshl_b32 s{sTMP}, s{sW}, 6
  s_add_u32 s{sTMP}, s{sTMP}, {WBASE}
  v_add_u32 v{t+3}, s{sTMP}, v{t+3}
""")
    TBq=48
    for c in range(2):
        for s in range(2):
            r=TBq+8*c+4*s
            g(f"  ds_read_b64_tr_b16 v[{r}:{r+1}], v{t+3} offset:{c*32+s*32*PITCH}")
            g(f"  ds_read_b64_tr_b16 v[{r+2}:{r+3}], v{t+3} offset:{c*32+s*32*PITCH+4*PITCH}")
    g("  s_waitcnt lgkmcnt(0)")
    for c in range(2):
        d=64+4*c
        g(f"  v_mfma_f32_16x16x32_bf16 v[{d}:{d+3}], v[40:43], v[{TBq+8*c}:{TBq+8*c+3}], 0")
    for c in range(2):
        d=64+4*c
        g(f"  v_mfma_f32_16x16x32_bf16 v[{d}:{d+3}], v[44:47], v[{TBq+8*c+4}:{TBq+8*c+7}], v[{d}:{d+3}]")
    g(f"""
  v_and_b32 v{t+4}, 1, v{t}
  v_cmp_eq_u32 vcc, 1, v{t+4}
  s_nop 6
  v_cndmask_b32 v64, v64, v68, vcc
  v_cndmask_b32 v65, v65, v69, vcc
  v_cndmask_b32 v66, v66, v70, vcc
  v_cndmask_b32 v67, v67, v71, vcc
  v_mov_b32 v{vX}, s{sTB}
""")
    tag_embed(g,[64,65,66,67],vX,sTMP)
    g(f"""
  s_and_b32 s{sTMP}, s{RO}, 3
  s_add_u32 s{sTMP}, s{sTMP}, {p*4}
  s_lshl_b32 s{sTMP}, s{sTMP}, 6
  s_lshr_b32 s{sTMP+1}, s{RO}, 2
  s_add_u32 s{sTMP}, s{sTMP}, s{sTMP+1}
  s_mul_i32 s{sTMP}, s{sTMP}, {YC*16}
  s_lshl_b32 s{sTMP+1}, s{sW}, 9              ; 2w*16*16
  s_add_u32 s{sTMP}, s{sTMP}, s{sTMP+1}
  s_add_u32 s{sTMP}, s{sTMP}, {WS_Y}
  v_and_b32 v{t+5}, 15, v{vLANE}
  v_lshlrev_b32 v{t+5}, 4, v{t+5}
  v_lshl_add_u32 v{t+5}, v{t+4}, 8, v{t+5}    ; + (g&1)*256
  v_add_u32 v{t+5}, s{sTMP}, v{t+5}
""")
    if WAL:
        g(f"""  ; valid lanes: l<32 ; last quarter has only 4 column blocks (waves 0,1)
  s_and_b32 s{sTMP+2}, s{RO}, 3
  s_cmp_eq_u32 s{sTMP+2}, 3
  s_cselect_b32 s{sTMP+3}, 2, 4
  s_cmp_lt_u32 s{sW}, s{sTMP+3}
  s_cselect_b32 s{sTMP+2}, -1, 0
  s_cbranch_scc0 L_noy_{u}""")
    else:
        g(f"""  ; valid lanes: l<32 and cb<7  (w==3 -> only l<16)
  s_cmp_eq_u32 s{sW}, 3
  s_cselect_b32 s{sTMP+2}, 0xffff, -1""")
    g(f"""
  s_mov_b32 s{sTMP+3}, 0
  s_mov_b64 exec, s[{sTMP+2}:{sTMP+3}]
  global_store_dwordx4 v{t+5}, v[64:67], s[{sWS}:{sWS+1}] sc1
  s_mov_b64 exec, -1
""")
    if WAL: g(f"L_noy_{u}:")

def emit_final(g,o,u,update_epoch,lo=0,hi=224,loopw=None,fail='L_fail',done='L_done',fb=None,fsleep=1):
    t=vT
    FB=fb if fb is not None else L_FB
    sW=loopw if loopw is not None else SW_
    if lo>0: g(f"  s_cmp_lt_u32 s2, {lo}\n  s_cbranch_scc1 {done}")
    g(f"""
  ; ---- finalizer f=s2<224 : p=f/112, r=f%112, cq=r/28, cc=(r%28)*4
  s_cmp_ge_u32 s2, {hi}
  s_cbranch_scc1 {done}
  s_cmp_ge_u32 s2, 112
  s_cselect_b32 s{sTMP}, 1, 0                 ; p
  s_mul_i32 s{sTMP+1}, s{sTMP}, 112
  s_sub_u32 s{sTMP+1}, s2, s{sTMP+1}          ; r
""")
    if WAL:
        g(f"""  s_lshr_b32 s{sTMP+2}, s{sTMP+1}, 5          ; cq = r/32
  s_and_b32 s{sTMP+3}, s{sTMP+1}, 31
  s_lshl_b32 s{sTMP+3}, s{sTMP+3}, 2          ; cc""")
    else:
        g(f"""  s_mul_i32 s{sTMP+2}, s{sTMP+1}, 2341
  s_lshr_b32 s{sTMP+2}, s{sTMP+2}, 16         ; cq = r/28
  s_mul_i32 s{sTMP+3}, s{sTMP+2}, 28
  s_sub_u32 s{sTMP+3}, s{sTMP+1}, s{sTMP+3}
  s_lshl_b32 s{sTMP+3}, s{sTMP+3}, 2          ; cc""")
    YP=2048 if WAL else 1792; YC=128 if WAL else 112
    if loopw is not None: g(f"  s_mov_b32 s{loopw}, 0\nL_finw_{u}:")
    g(f"""
  s_lshl_b32 s{sTMP+4}, s{sTMP}, 2
  s_add_u32 s{sTMP+4}, s{sTMP+4}, s{sTMP+2}
  s_lshl_b32 s{sTMP+4}, s{sTMP+4}, 6
  s_lshl_b32 s{sTMP+5}, s{sW}, 4
  s_add_u32 s{sTMP+4}, s{sTMP+4}, s{sTMP+5}
  s_mul_i32 s{sTMP+4}, s{sTMP+4}, {YP}
  s_lshl_b32 s{sTMP+5}, s{sTMP+3}, 4
  s_add_u32 s{sTMP+4}, s{sTMP+4}, s{sTMP+5}
  s_add_u32 s{sTMP+4}, s{sTMP+4}, {WS_Y}
  v_lshrrev_b32 v{t}, 2, v{vLANE}
  v_mul_u32_u24 v{t}, {YP}, v{t}
  v_and_b32 v{t+1}, 3, v{vLANE}
  v_lshl_add_u32 v{t}, v{t+1}, 4, v{t}
  v_add_u32 v{t}, s{sTMP+4}, v{t}
  s_mov_b32 s{sTMP+7}, 0
  s_mov_b32 s{sTMP+5}, 0x0c0c0400
  s_mov_b32 s{sTMP+6}, 0x04000c0c
L_fin_poll_{u}:
  global_load_dwordx4 v[24:27], v{t}, s[{sWS}:{sWS+1}] sc1
  s_waitcnt vmcnt(0)
  v_perm_b32 v{t+2}, v25, v24, s{sTMP+5}
  v_perm_b32 v{t+3}, v27, v26, s{sTMP+6}
  v_or_b32 v{t+2}, v{t+2}, v{t+3}
  v_cmp_ne_u32 vcc, s{sTB}, v{t+2}
  s_cbranch_vccz L_fin_ok_{u}
""")
    spin_guard(g,sTMP+7,fail)
    g(f"""
  s_sleep {fsleep}
  s_branch L_fin_poll_{u}
L_fin_ok_{u}:
""")
    if o.get('tailst'): stamp(g,13)
    for rr in (4,8):
        for k in range(4): g(f"  v_add_f32_dpp v{28+k}, v{24+k}, v{24+k} row_ror:{rr} row_mask:0xf bank_mask:0xf")
        for k in range(4): g(f"  v_mov_b32 v{24+k}, v{28+k}")
        g("  s_nop 1")
    for sw in ('v_permlane16_swap_b32','v_permlane32_swap_b32'):
        for k in range(4): g(f"  v_mov_b32 v{28+k}, v{24+k}")
        g("  s_nop 1")
        for k in range(4): g(f"  {sw} v{24+k}, v{28+k}")
        for k in range(4): g(f"  v_add_f32 v{24+k}, v{24+k}, v{28+k}")
    g(f"""
  s_lshl_b32 s{sTMP+4}, s{sW}, 6
  s_add_u32 s{sTMP+4}, s{sTMP+4}, {FB}
  v_lshlrev_b32 v{t+2}, 4, v{t+1}
  v_add_u32 v{t+2}, s{sTMP+4}, v{t+2}
  ds_write_b128 v{t+2}, v[24:27]
  s_waitcnt lgkmcnt(0)""")
    if loopw is not None:
        g(f"  s_add_u32 s{loopw}, s{loopw}, 1\n  s_cmp_lt_u32 s{loopw}, 4\n  s_cbranch_scc1 L_finw_{u}")
    else:
        g(f"  s_barrier\n  s_cmp_eq_u32 s{sW}, 0\n  s_cbranch_scc0 {done}")
    g(f"""
  v_lshrrev_b32 v{t+3}, 2, v{vLANE}
  v_and_b32 v{t+3}, 3, v{t+3}                 ; b
  v_lshlrev_b32 v{t+4}, 4, v{t+1}
  v_lshl_add_u32 v{t+4}, v{t+3}, 2, v{t+4}
  v_add_u32 v{t+4}, {FB}, v{t+4}
  ds_read_b32 v24, v{t+4}
  ds_read_b32 v25, v{t+4} offset:64
  ds_read_b32 v26, v{t+4} offset:128
  ds_read_b32 v27, v{t+4} offset:192
  s_waitcnt lgkmcnt(0)
  v_add_f32 v24, v24, v25
  v_add_f32 v26, v26, v27
  v_add_f32 v24, v24, v26
  v_cvt_pk_bf16_f32 v24, v24, v24
  s_mul_i32 s{sTMP+4}, s{sTMP}, 448
  s_mul_i32 s{sTMP+5}, s{sTMP+2}, {YC}
  s_add_u32 s{sTMP+4}, s{sTMP+4}, s{sTMP+5}
  s_add_u32 s{sTMP+4}, s{sTMP+4}, s{sTMP+3}
  s_lshl_b32 s{sTMP+4}, s{sTMP+4}, 1
  v_mul_u32_u24 v{t+4}, 1792, v{t+3}
  v_lshl_add_u32 v{t+4}, v{t+1}, 1, v{t+4}
  v_add_u32 v{t+4}, s{sTMP+4}, v{t+4}
  s_mov_b64 exec, 0xffff
  global_store_short v{t+4}, v24, s[{sOUT}:{sOUT+1}] {o.get('outpol','')}
  s_mov_b64 exec, -1
""")
    if update_epoch:
        g(f"""
  s_cmp_eq_u32 s2, 0
  s_cbranch_scc0 {done}
  v_mov_b32 v24, s{sT}
  v_mov_b32 v25, {WS_EPOCH}
  s_mov_b64 exec, 1
  global_store_dword v25, v24, s[{sWS}:{sWS+1}] sc1
  s_mov_b64 exec, -1
""")

def kd(name,nv,nacc,nsg=96):
    acc=(nv+3)//4*4
    return f""".p2align 6
.amdhsa_kernel {name}
  .amdhsa_next_free_vgpr {acc+nacc if nacc else nv}
  .amdhsa_next_free_sgpr {nsg}
  .amdhsa_accum_offset {acc}
  .amdhsa_group_segment_fixed_size 0
  .amdhsa_kernarg_size 104
  .amdhsa_user_sgpr_count 2
  .amdhsa_user_sgpr_kernarg_segment_ptr 1
  .amdhsa_system_sgpr_workgroup_id_x 1
  .amdhsa_float_denorm_mode_32 3
.end_amdhsa_kernel
"""
def khead(name): return f".globl {name}\n.p2align 8\n.type {name},@function\n{name}:\n"

def load_ptrs(g):
    g(f"""
  s_load_dwordx2 s[{sKA}:{sKA+1}], s[0:1], 8
  s_load_dwordx2 s[{sVA}:{sVA+1}], s[0:1], 16
  s_load_dwordx2 s[{sKB}:{sKB+1}], s[0:1], 48
  s_load_dwordx2 s[{sVB}:{sVB+1}], s[0:1], 56
  s_load_dwordx2 s[{sOUT}:{sOUT+1}], s[0:1], 80
  s_load_dwordx2 s[{sDBG}:{sDBG+1}], s[0:1], 88
  s_load_dwordx2 s[{sWS}:{sWS+1}], s[0:1], 96
  v_lshrrev_b32 v1, 6, v0
  v_and_b32 v{vLANE}, 63, v0
  s_nop 0
  v_readfirstlane_b32 s{sW}, v1
  s_lshr_b32 s{sG}, s2, 3
  s_and_b32 s{sJ}, s2, 7
  s_waitcnt lgkmcnt(0)
""")

def fail_and_done(g,name,stamps=False):
    if stamps and STAMPS:
        g(f"""
  s_branch L_done
L_fail:
  v_mov_b32 v24, 0xdead
  v_mov_b32 v25, 4
  s_mov_b64 exec, 1
  global_store_dword v25, v24, s[{sDBG}:{sDBG+1}]
  s_mov_b64 exec, -1
  s_endpgm
L_done:""")
        stamp(g,9)
        if not TAILST: g(f"  s_mov_b32 s{sST+10}, s{sKN}")
        stamp_write(g)
        g("L_exit:\n  s_endpgm")
        return
    g(f"""
  s_branch L_done
L_fail:
  v_mov_b32 v24, 0xdead
  v_mov_b32 v25, 4
  s_mov_b64 exec, 1
  global_store_dword v25, v24, s[{sDBG}:{sDBG+1}]
  s_mov_b64 exec, -1
L_done:
L_exit:
  s_endpgm
""")

def uniq(txt,sfx):
    import re
    return re.sub(r'\b(L_[A-Za-z0-9_]+)',lambda m:m.group(1)+sfx,txt)

def k_qproj(o):
    g=G(); name='qproj_kernel'
    g("  s_cmp_ge_u32 s2, 256\n  s_cbranch_scc1 L_exit")
    load_ptrs(g); g(f"  v_mov_b32 v0, v{vLANE}")
    load_tags(g,sWS,sT,sTB,sTMP)
    emit_qproj(g,'k1',sWS,sT,'q')
    g("  s_waitcnt vmcnt(0)")
    fail_and_done(g,name)
    return khead(name)+uniq(g.text(),'_k1'), kd(name,128,0), name

def k_main(o):
    g=G(); name=KN+'_kernel' if opt(o,'single',False) else 'main_kernel'
    fuseq=opt(o,'fuseq',False); fuset=opt(o,'fuset',False); pol=o.get('pol','nt')
    size0,tab=chunk_table(o)
    g("  s_cmp_ge_u32 s2, 256\n  s_cbranch_scc1 L_exit")
    early=opt(o,'early',True) and fuseq
    pace=opt(o,'pace',8)
    if early: emit_qproj_ptrs(g)
    load_ptrs(g)
    stamp_init(g); stamp(g,0)
    g(f"""
  s_cmp_eq_u32 s{sW}, 4
  s_cbranch_scc1 L_aux
  v_and_b32 v{vOK}, 15, v{vLANE}
  v_lshlrev_b32 v{vOK}, 9, v{vOK}
  v_lshrrev_b32 v{vT}, 4, v{vLANE}
  v_lshl_add_u32 v{vOK}, v{vT}, 4, v{vOK}        ; (l&15)*512 + (l>>4)*16
  v_lshrrev_b32 v{vT}, 5, v{vLANE}
  v_lshlrev_b32 v{vT}, 12, v{vT}
  v_and_b32 v{vOV}, 31, v{vLANE}
  v_lshl_add_u32 v{vOV}, v{vOV}, 4, v{vT}        ; (l>>5)*4096 + (l&31)*16
  s_lshl_b32 s{sTMP+2}, s{sG}, 1
""")
    set_srd_head(g,sKB,sVB,sTMP+2)
    g(f"""
  s_lshl_b32 s{sOFF}, s{sJ}, 20
  s_lshl_b32 s{sTMP}, s{sW}, 18
  s_add_u32 s{sOFF}, s{sOFF}, s{sTMP}
""")
    if early: g("  s_barrier")
    emit_k_loads(g,0,pol)
    if pace<8: g(f"  s_waitcnt vmcnt({pace})")
    emit_v_loads(g,0,pol)
    g(f"  s_add_u32 s{sOFF}, s{sOFF}, 8192")
    if pace<16: g(f"  s_waitcnt vmcnt({pace})")
    emit_k_loads(g,1,pol)
    if pace<24: g(f"  s_waitcnt vmcnt({pace})")
    emit_v_loads(g,1,pol)
    g(f"""
  s_add_u32 s{sOFF}, s{sOFF}, 8192
  s_mov_b32 s{sCNT}, 30
  s_mov_b32 s{sPH}, 0
  s_mov_b32 s{sCPH}, 0
  s_mov_b32 s{sNXT}, 0
  s_mov_b32 s{sKN}, 0
  s_mov_b32 s{sTRIG}, 0
  s_mov_b32 s{sSKIP}, 1
  s_mov_b32 s{sC}, {f2h(SCALE)}
  s_mov_b32 s{sSLO}, 0x05040100
  s_mov_b32 s{sSHI}, 0x07060302
""")
    load_tags(g,sWS,sT,sTB,sTMP)
    stamp(g,1)
    g("  s_barrier")
    emit_reset_and_q(g)
    stamp(g,2)
    emit_body(g,o,0); emit_body(g,o,1)
    emit_rare(g,0); emit_rare(g,1)
    emit_flush(g,o,0); emit_flush(g,o,1)
    g("L_tail:")
    stamp(g,6)
    if fuset:
        g("  s_waitcnt vmcnt(0)")
        emit_role(g,o,1,'B'); stamp(g,7); emit_role(g,o,0,'A'); stamp(g,8); emit_final(g,o,'f',True)
        g("  s_waitcnt vmcnt(0)")
    else:
        g("  s_waitcnt vmcnt(0)")
    g("  s_branch L_done")
    g(f"""
L_aux:
  v_mov_b32 v0, v{vLANE}
""")
    if opt(o,'prio',True): g("  s_setprio 3")
    if early:
        emit_qproj_issue(g)
        b0=opt(o,'b0wait',63)
        if b0<63: g(f"  s_waitcnt vmcnt({b0})")
        g("  s_barrier")
        stamp(g,8)
    load_tags(g,sWS,sT,sTB,sTMP)
    usecnt = sum(c for c,_ in tab)>0 and not opt(o,'rr',False)
    if usecnt: g(f"""
  s_cmp_eq_u32 s{sJ}, 0
  s_cbranch_scc0 L_noinit
  s_mul_i32 s{sTMP}, s{sG}, {CNT_STRIDE}
  s_add_u32 s{sTMP}, s{sTMP}, {WS_CNT}
  v_mov_b32 v72, s{sTMP}
  v_mov_b32 v74, 0
  v_mov_b32 v75, s{sT}
  s_mov_b64 exec, 1
  global_store_dwordx2 v72, v[74:75], s[{sWS}:{sWS+1}] sc1
  s_mov_b64 exec, -1
L_noinit:
""")
    g(f"""
  v_lshlrev_b32 v76, 2, v0
  v_mov_b32 v77, 0
  v_add_u32 v78, {L_CNT}, v76
  s_mov_b64 exec, 0xffff
  ds_write_b32 v78, v77
  s_mov_b64 exec, -1
  v_mov_b32 v77, -1
  v_add_u32 v78, {L_QUEUE}, v76
  ds_write_b32 v78, v77
  ds_write_b32 v78, v77 offset:256
""")
    stamp(g,1)
    if fuseq:
        if early: emit_qproj_compute(g,'fq',sWS,sT)
        else: emit_qproj(g,'fq',sWS,sT,'q')
    stamp(g,2)
    emit_qgather(g,'m',sWS,sT,sG,"L_fail_aux")
    stamp(g,3)
    g("  s_waitcnt lgkmcnt(0)\n  s_barrier")
    if fuset: emit_wo_stage(g,'m')
    g(f"""
  s_mov_b32 s{sKN}, 1
  s_mul_i32 s{sTMP+8}, s{sG}, {CNT_STRIDE}
  s_add_u32 s{sTMP+8}, s{sTMP+8}, {WS_CNT}
  v_mov_b32 v8, s{sTMP+8}
  v_mov_b32 v9, 1
  v_mov_b32 v10, {L_CNT+12}
""")
    if usecnt:
      g(f"""
  s_mov_b32 s{sTMP+9}, 0
L_cinit:
  global_load_dwordx2 v[14:15], v8, s[{sWS}:{sWS+1}] sc1
  s_waitcnt vmcnt(0)
  v_readfirstlane_b32 s{sTMP}, v15
  s_nop 0
  s_cmp_eq_u32 s{sTMP}, s{sT}
  s_cbranch_scc1 L_cinit_ok
""")
      spin_guard(g,sTMP+9,"L_fail_aux")
      g(f"""
  s_sleep 8
  s_branch L_cinit
L_cinit_ok:
""")
    g(f"""
L_sched:
  s_mov_b32 s{sTMP+9}, 0
L_sched_poll:
  ds_read_b32 v11, v10
  s_waitcnt lgkmcnt(0)
  v_readfirstlane_b32 s{sTMP}, v11
  s_nop 0
  s_cmp_ge_u32 s{sTMP}, s{sKN}
  s_cbranch_scc1 L_sched_go
""")
    spin_guard(g,sTMP+9,"L_fail_aux",limit=1000000)
    g(f"""
  s_sleep 4
  s_branch L_sched_poll
L_sched_go:
""")
    ndyn=sum(c for c,_ in tab)
    if ndyn==0:
        g(f"  s_mov_b32 s{sTMP+1}, -2")
    else:
        if opt(o,'rr',False):
            g(f"  s_sub_u32 s{sTMP}, s{sKN}, 1\n  s_lshl_b32 s{sTMP}, s{sTMP}, 3\n  s_add_u32 s{sTMP}, s{sTMP}, s{sJ}\n  s_mov_b32 s{sTMP+1}, -2")
        else:
            g(f"""
  s_mov_b64 exec, 1
  global_atomic_add v11, v8, v9, s[{sWS}:{sWS+1}] sc0 sc1
  s_mov_b64 exec, -1
  s_waitcnt vmcnt(0)
  v_readfirstlane_b32 s{sTMP}, v11
  s_mov_b32 s{sTMP+1}, -2
""")
        cbase=0; ubase=8*size0
        for n,(cnt,sz) in enumerate(tab):
            g(f"""
  s_cmp_lt_u32 s{sTMP}, {cbase+cnt}
  s_cbranch_scc0 L_tab_{n}
  s_sub_u32 s{sTMP+2}, s{sTMP}, {cbase}
  s_mul_i32 s{sTMP+2}, s{sTMP+2}, {sz}
  s_add_u32 s{sTMP+2}, s{sTMP+2}, {ubase}
  s_lshl_b32 s{sTMP+2}, s{sTMP+2}, 8
  s_or_b32 s{sTMP+1}, s{sTMP+2}, {sz}
  s_branch L_tab_done
L_tab_{n}:""")
            cbase+=cnt; ubase+=cnt*sz
        assert ubase==256,(ubase)
        g("L_tab_done:")
    g(f"""
  s_lshl_b32 s{sTMP+2}, s{sKN}, 2
  s_add_u32 s{sTMP+2}, s{sTMP+2}, {L_QUEUE}
  v_mov_b32 v12, s{sTMP+2}
  v_mov_b32 v13, s{sTMP+1}
  ds_write_b32 v12, v13
  s_add_u32 s{sKN}, s{sKN}, 1
  s_cmp_eq_u32 s{sTMP+1}, -2
  s_cbranch_scc0 L_sched
  s_waitcnt vmcnt(0) lgkmcnt(0)
  s_branch L_done
L_fail_aux:
  v_mov_b32 v24, 0xdeae
  v_mov_b32 v25, 12
  s_mov_b64 exec, 1
  global_store_dword v25, v24, s[{sDBG}:{sDBG+1}]
  s_mov_b64 exec, -1
""")
    fail_and_done(g,name,True)
    return khead(name)+uniq(g.text(),'_m'), kd(name,NARCH,NACC), name

def k_role(o):
    g=G(); name='role_kernel'
    g("  s_cmp_ge_u32 s2, 256\n  s_cbranch_scc1 L_exit")
    load_ptrs(g)
    load_tags(g,sWS,sT,sTB,sTMP)
    g(f"  s_cmp_eq_u32 s{sW}, 0\n  s_cbranch_scc0 L_nostage\n  v_mov_b32 v0, v{vLANE}")
    emit_wo_stage(g,'r')
    g(f"  v_mov_b32 v{vLANE}, v0\n  s_waitcnt vmcnt(0)\nL_nostage:\n  s_barrier")
    emit_role(g,o,1,'B'); emit_role(g,o,0,'A')
    g("  s_waitcnt vmcnt(0)")
    fail_and_done(g,name)
    return khead(name)+uniq(g.text(),'_k3'), kd(name,NARCH,0), name

def k_final(o):
    g=G(); name='final_kernel'
    g("  s_cmp_ge_u32 s2, 256\n  s_cbranch_scc1 L_exit")
    load_ptrs(g)
    load_tags(g,sWS,sT,sTB,sTMP)
    emit_final(g,o,'f',False)
    g("  s_waitcnt vmcnt(0)")
    fail_and_done(g,name)
    return khead(name)+uniq(g.text(),'_k4'), kd(name,NARCH,0), name

HEADER=open('cdna_kernels/'+KN+'.s.ref').read().split('; Override launch geometry')[0]

def build(o):
    global STAMPS
    STAMPS=opt(o,'stamps',False)
    global WQPOL
    WQPOL=o.get('wqpol','nt')
    global WQTEST
    WQTEST=opt(o,'wqtest',0)
    fuseq=opt(o,'fuseq',False); fuset=opt(o,'fuset',False)
    single=fuseq and fuset
    o['single']=single
    ks=[]; launch=[]
    if not fuseq:
        ks.append(k_qproj(o)); launch.append(f"; @launch kernel=qproj_kernel grid=(256,1,1) block=(64,1,1) lds={LDS_SIZE}")
    m=k_main(o); ks.append(m)
    if single: launch.append(f"; @launch grid=(256,1,1) block=(320,1,1) lds={LDS_SIZE}")
    else: launch.append(f"; @launch kernel={m[2]} grid=(256,1,1) block=(320,1,1) lds={LDS_SIZE}")
    if not fuset:
        ks.append(k_role(o)); launch.append(f"; @launch kernel=role_kernel grid=(256,1,1) block=(256,1,1) lds={LDS_SIZE}")
        ks.append(k_final(o)); launch.append(f"; @launch kernel=final_kernel grid=(256,1,1) block=(256,1,1) lds={LDS_SIZE}")
    src=HEADER+"\n".join(launch)+'\n.amdgcn_target "amdgcn-amd-amdhsa--gfx950"\n.text\n'
    src+="".join(k[0] for k in ks)
    src+='.section .rodata,"a"\n'+"".join(k[1] for k in ks)
    if opt(o,'meta',False):
        src+=".amdgpu_metadata\n---\namdhsa.version: [1, 2]\namdhsa.kernels:\n"
        for k in ks:
            src+=f"  - .name: {k[2]}\n    .symbol: {k[2]}.kd\n    .kernarg_segment_size: 104\n    .kernarg_segment_align: 8\n    .group_segment_fixed_size: 0\n    .private_segment_fixed_size: 0\n    .wavefront_size: 64\n    .sgpr_count: 96\n    .vgpr_count: 256\n    .max_flat_workgroup_size: 320\n    .args:\n      - {{.name: kernargs, .size: 104, .offset: 0, .value_kind: by_value}}\n"
        src+="...\n.end_amdgpu_metadata\n"
    return src,launch

if __name__=='__main__':
    out=sys.argv[1]; o=dict(a.split('=',1) for a in sys.argv[2:])
    src,launch=build(o)
    open(out,'w').write(src)
    print("\n".join(launch))
```

```python
import sys
import gen as G1
from gen import *

L_X2=0xE200
sJOFF=31; sRET=33; sX2=34
sPHB=[35,36]; sTGT=41; sMRG=92
CTR=L_CNT+16

def stamp(g,i): G1.stamp(g,i)

def claim(g):
    g(f"""
  v_mov_b32 v13, {CTR}
  v_mov_b32 v14, 1
  s_mov_b64 exec, 1
  ds_add_rtn_u32 v12, v13, v14
  s_mov_b64 exec, -1""")

ROT=0; sROT=42
MAP=0
def tile_off(g,si,so):
    if MAP==7:
        if ROT: g(f"  s_add_u32 s{si}, s{si}, s{sROT}\n  s_and_b32 s{si}, s{si}, 127")
        g(f"  s_lshl_b32 s{si}, s{si}, 13\n  s_add_u32 s{so}, s{si}, s{sJOFF}")
    else:
        g(f"""  s_lshr_b32 s{sTMP+1}, s{si}, {MAP}
  s_lshl_b32 s{sTMP+1}, s{sTMP+1}, {16+MAP}
  s_and_b32 s{si}, s{si}, {(1<<MAP)-1}
  s_lshl_b32 s{si}, s{si}, 13
  s_add_u32 s{so}, s{si}, s{sTMP+1}
  s_add_u32 s{so}, s{so}, s{sJOFF}""")

SATOM=False; SCHSLEEP=2
WJIT=False; STEAL=0
WDYN=False; sDYN=87; sCL=88; sCOFF=89; sSUB=90; sSTL=91
CINITF=L_CNT+32; ENDF=L_CNT+36
DYN_S=128; DYN_LC=2; DYN_LOOK=6
def decode(g,u):
    dyn = DYN_S<128
    if WDYN:
        g(f"  s_waitcnt lgkmcnt(0)\n  s_cmp_eq_u32 s{sDYN}, 0\n  s_cbranch_scc0 L_wd_{u}")
    g(f"""
  s_waitcnt lgkmcnt(0)
  v_readfirstlane_b32 s{sTMP}, v12
  s_nop 0
  s_lshr_b32 s{sTMP+1}, s{sTMP}, 7""")
    if dyn: g(f"  s_min_u32 s{sTMP+1}, s{sTMP+1}, 2")
    g(f"""
  s_cmp_eq_u32 s{sTMP+1}, s{sPH}
  s_cbranch_scc0 L_newph_{u}
L_phok_{u}:""")
    if dyn:
        g(f"""
  s_cmp_ge_u32 s{sTMP}, {256+DYN_S}
  s_cbranch_scc1 L_dyn_{u}""")
    g(f"  s_and_b32 s{sTMP}, s{sTMP}, 127")
    tile_off(g,sTMP,sOFF)
    if dyn: g(f"L_dyn_done_{u}:")

def dynpath_w(g,u):
    P=128-DYN_S; pw=P//4; assert pw*4==P and pw&(pw-1)==0
    lpw=pw.bit_length()-1
    g(f"L_dyn_{u}:")
    lds_wait_flag(g,CINITF,'ci'+u)
    g(f"""
  s_mov_b32 s{sDYN}, 1
  s_mov_b32 s{sCL}, 1
  s_atomic_add s{sCL}, s[{sWS}:{sWS+1}], s{sCOFF} glc
  s_waitcnt lgkmcnt(0)
L_wd_{u}:
  s_cmp_lt_u32 s{sCL}, {8*pw}
  s_cbranch_scc0 L_dyn_end_{u}
  s_lshr_b32 s{sTMP}, s{sCL}, {lpw}            ; j'
  s_lshl_b32 s{sTMP}, s{sTMP}, 7
  s_and_b32 s{sTMP+1}, s{sCL}, {pw-1}
  s_add_u32 s{sTMP}, s{sTMP}, s{sTMP+1}
  s_mul_i32 s{sTMP+1}, s{sSUB}, {pw}
  s_add_u32 s{sTMP}, s{sTMP}, s{sTMP+1}
  s_add_u32 s{sTMP}, s{sTMP}, {DYN_S}
  s_lshl_b32 s{sOFF}, s{sTMP}, 13
  s_branch L_dyn_done_{u}
L_dyn_end_{u}:""")
    if STEAL:
        g(f"""
  s_cmp_ge_u32 s{sSTL}, {STEAL}
  s_cbranch_scc1 L_dyn_fin_{u}
  s_add_u32 s{sSTL}, s{sSTL}, 1
  s_add_u32 s{sSUB}, s{sSUB}, 1
  s_and_b32 s{sSUB}, s{sSUB}, 3
  s_lshl_b32 s{sCOFF}, s{sG}, 2
  s_add_u32 s{sCOFF}, s{sCOFF}, s{sSUB}
  s_mul_i32 s{sCOFF}, s{sCOFF}, {CNT_STRIDE}
  s_add_u32 s{sCOFF}, s{sCOFF}, {WS_CNT}
  s_mov_b32 s{sCL}, 1
  s_atomic_add s{sCL}, s[{sWS}:{sWS+1}], s{sCOFF} glc
  s_waitcnt lgkmcnt(0)
  s_branch L_wd_{u}
L_dyn_fin_{u}:""")
    g(f"""
  s_mov_b32 s{sPH}, 3
  s_mov_b32 s{sK+2}, 0
  s_mov_b32 s{sV+2}, 0
  s_mov_b32 s{sOFF}, 0
  v_mov_b32 v13, {ENDF}
  v_mov_b32 v12, 1
  ds_write_b32 v13, v12
  s_branch L_dyn_done_{u}""")

def dynpath(g,u):
    if DYN_S>=128: return
    if WDYN: return dynpath_w(g,u)
    g(f"""
L_dyn_{u}:
  s_sub_u32 s{sTMP}, s{sTMP}, {256+DYN_S}
  s_lshr_b32 s{sTMP+1}, s{sTMP}, {DYN_LC}          ; chunk k
  s_and_b32 s{sTMP}, s{sTMP}, {(1<<DYN_LC)-1}
  s_lshl_b32 s{sTMP+1}, s{sTMP+1}, 2
  s_add_u32 s{sTMP+1}, s{sTMP+1}, {L_QUEUE}
  v_mov_b32 v13, s{sTMP+1}
  s_mov_b32 s{sTMP+2}, 0
L_dyn_poll_{u}:
  ds_read_b32 v12, v13
  s_waitcnt lgkmcnt(0)
  v_readfirstlane_b32 s{sTMP+1}, v12
  s_nop 0
  s_cmp_eq_u32 s{sTMP+1}, -1
  s_cbranch_scc0 L_dyn_got_{u}
""")
    spin_guard(g,sTMP+2,"L_fail")
    if G1.STAMPS: g(f"  s_add_u32 s{G1.sST+11}, s{G1.sST+11}, 1")
    g(f"""
  s_branch L_dyn_poll_{u}
L_dyn_got_{u}:
  s_cmp_eq_u32 s{sTMP+1}, -2
  s_cbranch_scc1 L_dyn_end_{u}
  s_add_u32 s{sTMP}, s{sTMP}, s{sTMP+1}
  s_lshl_b32 s{sOFF}, s{sTMP}, 13
  s_branch L_dyn_done_{u}
L_dyn_end_{u}:
  s_mov_b32 s{sPH}, 3
  s_mov_b32 s{sK+2}, 0
  s_mov_b32 s{sV+2}, 0
  s_mov_b32 s{sOFF}, 0
  s_branch L_dyn_done_{u}""")

def newph(g,u):
    g(f"""
L_newph_{u}:
  s_mov_b32 s{sPH}, s{sTMP+1}
  s_cmp_eq_u32 s{sPH}, 1
  s_cbranch_scc0 L_np2_{u}
  s_lshl_b32 s{sTMP+2}, s{sG}, 1
  s_add_u32 s{sTMP+2}, s{sTMP+2}, 1
  s_mov_b32 s{sTMP+3}, s{sTMP}""")
    set_srd_head(g,sKB,sVB,sTMP+2)
    g(f"""
  s_mov_b32 s{sTMP}, s{sTMP+3}
  s_branch L_phok_{u}
L_np2_{u}:
  s_cmp_eq_u32 s{sPH}, 2
  s_cbranch_scc0 L_np3_{u}
  s_mov_b32 s{sTMP+3}, s{sTMP}""")
    set_srd_head(g,sKA,sVA,sG)
    g(f"""
  s_mov_b32 s{sTMP}, s{sTMP+3}
  s_branch L_phok_{u}
L_np3_{u}:
  s_mov_b32 s{sPH}, 3
  s_mov_b32 s{sK+2}, 0
  s_mov_b32 s{sV+2}, 0
  s_branch L_phok_{u}""")

def body(g,o,b,u,kwait,vwait,load,src='reg',vearly=False):
    pol=o.get('pol','nt'); t=vT
    g(f"L_body_{u}:")
    if src=='lds':
        if HELPER: lds_wait_flag(g,XRDY,'x')
        else: g(f"  s_waitcnt vmcnt({kwait})")
        g(f"""
  v_lshlrev_b32 v13, 4, v{vLANE}
  v_add_u32 v13, s{sX2}, v13""")
        for j in range(8): g(f"  ds_read_b128 a[{aK[b]+4*j}:{aK[b]+4*j+3}], v13 offset:{j*1024}")
        for r in range(8): g(f"  ds_read_b128 v[{vV[b]+4*r}:{vV[b]+4*r+3}], v13 offset:{8192+r*1024}")
        g("  s_waitcnt lgkmcnt(0)")
    elif WDYN and load is not None:
        g(f"""
  s_cmp_eq_u32 s{sDYN}, 0
  s_cbranch_scc1 L_st_{u}""")
        if WJIT: g(f"  s_waitcnt vmcnt({kwait})")
        g(f"""  s_mov_b32 s{sCL}, 1
  s_atomic_add s{sCL}, s[{sWS}:{sWS+1}], s{sCOFF} glc""")
        if not WJIT: g(f"  s_waitcnt vmcnt({kwait})")
        g(f"""  s_branch L_mf_{u}
L_st_{u}:
  s_waitcnt vmcnt({kwait})""")
        claim(g)
        g(f"L_mf_{u}:")
    else:
        g(f"  s_waitcnt vmcnt({kwait})")
    if load is not None and not WDYN: claim(g)
    for j in range(8):
        c="0" if j==0 else f"v[{vS}:{vS+3}]"
        g(f"  v_mfma_f32_16x16x32_bf16 v[{vS}:{vS+3}], a[{aK[b]+4*j}:{aK[b]+4*j+3}], a[{aQ+4*j}:{aQ+4*j+3}], {c}")
    if load is not None:
        decode(g,u)
        g(f"  s_mov_b32 s{sPHB[load]}, s{sPH}")
        emit_k_loads(g,load,pol)
        if vearly: emit_v_loads(g,load,pol)
    else:
        g("  s_nop 7")
    g(f"""
  v_max3_f32 v{t}, v{vS}, v{vS+1}, v{vS+2}
  v_max_f32 v{t}, v{t}, v{vS+3}
  v_mov_b32 v{t+1}, v{t}
  s_nop 1
  v_permlane16_swap_b32 v{t}, v{t+1}
  v_max_f32 v{t}, v{t}, v{t+1}
  v_mov_b32 v{t+1}, v{t}
  s_nop 1
  v_permlane32_swap_b32 v{t}, v{t+1}
  v_max_f32 v{t}, v{t}, v{t+1}
  v_cmp_gt_f32 vcc, v{t}, v{vM}
  s_cbranch_vccnz L_rare_{u}
L_back_{u}:
  v_fma_f32 v{t+2}, v{vS}, s{sC}, -v{vMC}
  v_fma_f32 v{t+3}, v{vS+1}, s{sC}, -v{vMC}
  v_fma_f32 v{t+4}, v{vS+2}, s{sC}, -v{vMC}
  v_fma_f32 v{t+5}, v{vS+3}, s{sC}, -v{vMC}
  v_exp_f32 v{t+2}, v{t+2}
  v_exp_f32 v{t+3}, v{t+3}
  v_exp_f32 v{t+4}, v{t+4}
  v_exp_f32 v{t+5}, v{t+5}
  v_add_f32 v{t+6}, v{t+2}, v{t+3}
  v_cvt_pk_bf16_f32 v{vP}, v{t+2}, v{t+3}
  v_add_f32 v{t+7}, v{t+4}, v{t+5}
  v_cvt_pk_bf16_f32 v{vP+1}, v{t+4}, v{t+5}
  v_add_f32 v{t+6}, v{t+6}, v{t+7}
  v_mov_b32 v{vP+2}, v{vP}
  v_mov_b32 v{vP+3}, v{vP+1}
  v_add_f32 v{vL}, v{vL}, v{t+6}
  s_nop 0
  v_permlane16_swap_b32 v{vP}, v{vP+2}
  v_permlane16_swap_b32 v{vP+1}, v{vP+3}""")
    if vwait is not None: g(f"  s_waitcnt vmcnt({vwait})")
    for t2 in range(2):
        R=[vV[b]+4*(4*t2+rr) for rr in range(4)]
        for dw in range(4):
            g(f"  v_perm_b32 v{vB+4*dw}, v{R[1]+dw}, v{R[0]+dw}, s{sSLO}")
            g(f"  v_perm_b32 v{vB+4*dw+1}, v{R[3]+dw}, v{R[2]+dw}, s{sSLO}")
            g(f"  v_perm_b32 v{vB+4*dw+2}, v{R[1]+dw}, v{R[0]+dw}, s{sSHI}")
            g(f"  v_perm_b32 v{vB+4*dw+3}, v{R[3]+dw}, v{R[2]+dw}, s{sSHI}")
        for jj in range(8):
            a=vACC+4*jj
            g(f"  v_mfma_f32_4x4x4_16b_bf16 v[{a}:{a+3}], v[{vP+2*t2}:{vP+2*t2+1}], v[{vB+2*jj}:{vB+2*jj+1}], v[{a}:{a+3}]")
    if load is not None and not vearly: emit_v_loads(g,load,pol)

def rare(g,u):
    t=vT
    g(f"""
L_rare_{u}:
  v_max_f32 v{t+1}, v{t}, v{vM}
  v_sub_f32 v{t+2}, v{vM}, v{t+1}
  v_mul_f32 v{t+2}, s{sC}, v{t+2}
  v_exp_f32 v{t+2}, v{t+2}
  v_mov_b32 v{vM}, v{t+1}
  v_mul_f32 v{vMC}, s{sC}, v{t+1}
  v_mul_f32 v{vL}, v{vL}, v{t+2}
  s_nop 0
  v_mov_b32_dpp v{t+3}, v{t+2} quad_perm:[0,0,2,2] row_mask:0xf bank_mask:0xf
  v_mov_b32_dpp v{t+4}, v{t+2} quad_perm:[1,1,3,3] row_mask:0xf bank_mask:0xf
""")
    for jj in range(8):
        g(f"  v_mul_f32 v{vACC+4*jj}, v{vACC+4*jj}, v{t+3}")
        g(f"  v_mul_f32 v{vACC+4*jj+1}, v{vACC+4*jj+1}, v{t+4}")
    g(f"  s_branch L_back_{u}")

def phase_check(g,ret,deep=False):
    src = sPHB[ret] if deep else sPH
    g(f"""
  s_mov_b32 s{sTGT}, s{src}
  s_cmp_eq_u32 s{sTGT}, s{sCPH}
  s_mov_b32 s{sRET}, {ret}
  s_cbranch_scc0 L_flush""")

def reset_state(g):
    g(f"""
  v_mov_b32 v{vM}, 0xff800000
  v_mov_b32 v{vMC}, 0xff800000
  v_mov_b32 v{vL}, 0""")
    for r in range(32): g(f"  v_mov_b32 v{vACC+r}, 0")

def read_q(g):
    t=vT
    g(f"""
  v_and_b32 v{t}, 1, v{vLANE}
  s_cmp_eq_u32 s{sCPH}, 2
  s_cselect_b32 s{sTMP}, 512, 0
  v_mul_u32_u24 v{t}, s{sTMP}, v{t}
  s_lshl_b32 s{sTMP}, s{sCPH}, 9
  s_add_u32 s{sTMP}, s{sTMP}, {L_QC}
  v_add_u32 v{t}, s{sTMP}, v{t}
  v_lshrrev_b32 v{t+1}, 4, v{vLANE}
  v_lshl_add_u32 v{t}, v{t+1}, 4, v{t}
""")
    for j in range(8):
        g(f"  ds_read_b128 a[{aQ+4*j}:{aQ+4*j+3}], v{t} offset:{j*64}")
    g("  s_waitcnt lgkmcnt(0)")

def flush(g,o):
    h=G(); G1.emit_flush(h,o,0)
    txt=h.text()
    cut="  ; destination indices:"
    txt=txt[:txt.index(cut)].replace("L_flush_b0","L_flush").replace("L_nomerge_b0","L_nomerge")
    if opt(o,'bpre',False):
        hp=G(); G1._role_pre(hp,1,sW,72)
        head="L_flush:\n  s_nop 4\n"
        assert head in txt
        txt=txt.replace(head,head+f"  s_mov_b32 s{sMRG}, 0\n  s_cmp_eq_u32 s{sCPH}, 2\n  s_cbranch_scc0 L_nobpre\n"+hp.text()+"L_nobpre:\n")
    g(txt)
    t=vT; A=vB; D=vACC
    g(f"""
  s_lshl_b32 s{sTMP}, s{sCPH}, 6
  s_add_u32 s{sTMP}, s{sTMP}, {L_ST}
  v_mov_b32 v20, s{sTMP}
  s_lshl_b32 s{sTMP}, s{sCPH}, 13
  s_add_u32 s{sTMP}, s{sTMP}, {L_FL}
  v_lshlrev_b32 v21, 4, v{vLANE}
  v_add_u32 v22, s{sTMP}, v21""")
    for w in range(4): g(f"  ds_read_b128 v[{A+4*w}:{A+4*w+3}], v20 offset:{16*w}")
    for w in range(4): g(f"  ds_read_b128 v[{D+4*w}:{D+4*w+3}], v22 offset:{2048*w}")
    for w in range(4): g(f"  ds_read_b128 v[{D+16+4*w}:{D+16+4*w+3}], v22 offset:{2048*w+1024}")
    g(f"""
  s_and_b32 s{sTMP+2}, s{sG}, 7
  s_lshl_b32 s{sTMP+2}, s{sTMP+2}, 1          ; hq0
  s_lshr_b32 s{sTMP+3}, s{sG}, 3              ; b
  s_cmp_eq_u32 s{sCPH}, 2
  s_cselect_b32 s{sTMP+4}, 0, 16              ; p*16
  s_cselect_b32 s{sTMP+5}, 0, s{sCPH}
  s_add_u32 s{sTMP+2}, s{sTMP+2}, s{sTMP+4}
  s_add_u32 s{sTMP+2}, s{sTMP+2}, s{sTMP+5}   ; p*16+hq
  s_lshl_b32 s{sTMP+2}, s{sTMP+2}, 2
  s_add_u32 s{sTMP+2}, s{sTMP+2}, s{sTMP+3}   ; *4 + b
  s_lshl_b32 s{sTMP+2}, s{sTMP+2}, 3
  s_add_u32 s{sTMP+2}, s{sTMP+2}, s{sJ}
  s_lshl_b32 s{sTMP}, s{sTMP+2}, 10
  s_add_u32 s{sTMP}, s{sTMP}, {WS_PART}
  v_add_u32 v21, s{sTMP}, v21
  s_lshl_b32 s{sTMP}, s{sTMP+2}, 4
  s_add_u32 s{sTMP}, s{sTMP}, {WS_STAT}
  v_mov_b32 v23, s{sTMP}
  v_mov_b32 v{vX}, s{sTB}
  s_waitcnt lgkmcnt(8)
  v_max3_f32 v16, v{A}, v{A+4}, v{A+8}
  v_max3_f32 v17, v{A+2}, v{A+6}, v{A+10}
  v_max_f32 v16, v16, v{A+12}                 ; M0
  v_max_f32 v17, v17, v{A+14}                 ; M1""")
    for w in range(4): g(f"  v_sub_f32 v{A+4*w}, v{A+4*w}, v16\n  v_sub_f32 v{A+4*w+2}, v{A+4*w+2}, v17")
    for w in range(4): g(f"  v_exp_f32 v{A+4*w}, v{A+4*w}\n  v_exp_f32 v{A+4*w+2}, v{A+4*w+2}")
    g(f"""  s_nop 0
  v_mul_f32 v18, v{A}, v{A+1}
  v_mul_f32 v19, v{A+2}, v{A+3}""")
    for w in range(1,4): g(f"  v_fmac_f32 v18, v{A+4*w}, v{A+4*w+1}\n  v_fmac_f32 v19, v{A+4*w+2}, v{A+4*w+3}")
    g("  s_waitcnt lgkmcnt(4)")
    for k in range(4): g(f"  v_mul_f32 v{8+k}, v{A}, v{D+k}")
    for w in range(1,4):
        for k in range(4): g(f"  v_fmac_f32 v{8+k}, v{A+4*w}, v{D+4*w+k}")
    tag_embed(g,[8,9,10,11],vX,sTMP)
    g(f"""
  global_store_dwordx4 v21, v[8:11], s[{sWS}:{sWS+1}] sc1
  s_mov_b32 s{sMRG}, 4
  s_cmp_eq_u32 s{sCPH}, 2
  s_cbranch_scc0 L_m_one
  s_waitcnt lgkmcnt(0)""")
    for k in range(4): g(f"  v_mul_f32 v{12+k}, v{A+2}, v{D+16+k}")
    for w in range(1,4):
        for k in range(4): g(f"  v_fmac_f32 v{12+k}, v{A+4*w+2}, v{D+16+4*w+k}")
    tag_embed(g,[12,13,14,15],vX,sTMP)
    g(f"""
  v_add_u32 v21, 32768, v21
  global_store_dwordx4 v21, v[12:15], s[{sWS}:{sWS+1}] sc1
  v_mov_b32 v{D+4}, v17
  v_mov_b32 v{D+5}, s{sT}
  v_mov_b32 v{D+6}, v19
  v_mov_b32 v{D+7}, s{sT}
  s_mov_b64 exec, 1
  global_store_dwordx4 v23, v[{D+4}:{D+7}], s[{sWS}:{sWS+1}] offset:512 sc1
  s_mov_b64 exec, -1
L_m_one:
  v_mov_b32 v{D}, v16
  v_mov_b32 v{D+1}, s{sT}
  v_mov_b32 v{D+2}, v18
  v_mov_b32 v{D+3}, s{sT}
  s_mov_b64 exec, 1
  global_store_dwordx4 v23, v[{D}:{D+3}], s[{sWS}:{sWS+1}] sc1
  s_mov_b64 exec, -1
  s_waitcnt lgkmcnt(0)
L_nomerge:
  s_add_u32 s{sCPH}, s{sCPH}, 1
  s_cmp_eq_u32 s{sCPH}, 3
  s_cbranch_scc1 L_tail
  s_nop 0""")
    reset_state(g)
    g(f"""
  s_cmp_lt_u32 s{sCPH}, s{sTGT}
  s_cbranch_scc1 L_flush""")
    lds_wait_flag(g,QFLAG,'qf')
    read_q(g)
    g(f"""
  s_cmp_eq_u32 s{sRET}, 0
  s_cbranch_scc1 L_body_b0
  s_branch L_body_b1""")

QFLAG=L_CNT+20
QRDY=L_CNT+24
XRDY=L_CNT+28
HELPER=False
NOQ=False
def lds_wait_flag(g,addr,u,fail='L_fail'):
    g(f"""
  v_mov_b32 v13, {addr}
  s_mov_b32 s{sTMP+2}, 0
L_fw_{u}:
  ds_read_b32 v12, v13
  s_waitcnt lgkmcnt(0)
  v_readfirstlane_b32 s{sTMP}, v12
  s_nop 0
  s_cmp_eq_u32 s{sTMP}, 1
  s_cbranch_scc1 L_fwok_{u}""")
    spin_guard(g,sTMP+2,fail,limit=2000000)
    g(f"  s_branch L_fw_{u}\nL_fwok_{u}:")
def qgather2(g,o):
    NS=opt(o,'npoll',6); R0=8
    g(f"""
  s_lshl_b32 s44, s{sG}, 11           ; 2g*1024
  s_add_u32 s44, s44, {WS_QG}
  v_lshlrev_b32 v1, 4, v0
  v_add_u32 v1, s44, v1               ; A vectors (p=0)
  v_add_u32 v2, 0x10000, v1           ; B vectors (p=1)
  v_lshlrev_b32 v3, 3, v0
  v_add_u32 v3, {L_QC}, v3
  s_mov_b32 s45, 0""")
    for i in range(NS):
        g(f"  global_load_dwordx4 v[{R0+4*i}:{R0+4*i+3}], v2, s[{sWS}:{sWS+1}] sc1")
        if i<NS-1: g(f"  s_sleep {opt(o,'pollgap',2)}")
    g("L_qg_loop:")
    for i in range(NS):
        r=R0+4*i
        g(f"""
  s_waitcnt vmcnt({NS-1})
  v_xor_b32 v4, s{sT}, v{r+1}
  v_xor_b32 v5, s{sT}, v{r+3}
  v_or_b32 v4, v4, v5
  v_cmp_ne_u32 vcc, 0, v4
  s_cbranch_vccz L_qg_ok{i}
  global_load_dwordx4 v[{r}:{r+3}], v2, s[{sWS}:{sWS+1}] sc1""")
    spin_guard(g,45,"L_fail_aux")
    g("  s_branch L_qg_loop")
    for i in range(NS):
        r=R0+4*i
        g(f"""
L_qg_ok{i}:
  v_mov_b32 v{r+1}, v{r+2}
  ds_write_b64 v3, v[{r}:{r+1}]
  s_branch L_qg_first""")
    g("L_qg_first:")
    stamp(g,3)
    if HELPER: g(f"  s_waitcnt lgkmcnt(0)\n  v_mov_b32 v4, {QRDY}\n  v_mov_b32 v5, 1\n  ds_write_b32 v4, v5")
    elif not NOQ: g("  s_waitcnt lgkmcnt(0)\n  s_barrier")
    g(f"""
  s_waitcnt vmcnt(0)
  s_mov_b32 s45, 0
L_qg2_poll:
  global_load_dwordx4 v[12:15], v2, s[{sWS}:{sWS+1}] offset:1024 sc1
  global_load_dwordx4 v[16:19], v1, s[{sWS}:{sWS+1}] sc1
  global_load_dwordx4 v[20:23], v1, s[{sWS}:{sWS+1}] offset:1024 sc1
  s_waitcnt vmcnt(0)
  v_xor_b32 v13, s{sT}, v13
  v_xor_b32 v15, s{sT}, v15
  v_xor_b32 v17, s{sT}, v17
  v_xor_b32 v19, s{sT}, v19
  v_xor_b32 v21, s{sT}, v21
  v_xor_b32 v23, s{sT}, v23
  v_or3_b32 v13, v13, v15, v17
  v_or3_b32 v13, v13, v19, v21
  v_or_b32 v13, v13, v23
  v_cmp_ne_u32 vcc, 0, v13
  s_cbranch_vccz L_qg2_ok""")
    spin_guard(g,45,"L_fail_aux")
    g(f"""
  s_sleep 8
  s_branch L_qg2_poll
L_qg2_ok:
  v_mov_b32 v13, v14
  v_mov_b32 v17, v18
  v_mov_b32 v21, v22
  ds_write_b64 v3, v[12:13] offset:512
  ds_write_b64 v3, v[16:17] offset:1024
  ds_write_b64 v3, v[20:21] offset:1536
  s_waitcnt lgkmcnt(0)
  v_mov_b32 v4, {QFLAG}
  v_mov_b32 v5, 1
  ds_write_b32 v4, v5""")

def sched(g):
    C=1<<DYN_LC; cpj=(128-DYN_S)//C; assert cpj*C==128-DYN_S and cpj&(cpj-1)==0
    lcpj=cpj.bit_length()-1; nch=8*cpj
    assert nch+8+4 < 128
    sKQ=62
    g(f"""
  s_mul_i32 s{sTMP+8}, s{sG}, {CNT_STRIDE}
  s_add_u32 s{sTMP+8}, s{sTMP+8}, {WS_CNT}
  v_mov_b32 v8, s{sTMP+8}
  v_mov_b32 v9, 1
  v_mov_b32 v10, {CTR}
  s_mov_b32 s{sTMP+9}, 0
L_cinit:
  global_load_dwordx2 v[14:15], v8, s[{sWS}:{sWS+1}] sc1
  s_waitcnt vmcnt(0)
  v_readfirstlane_b32 s{sTMP}, v15
  s_nop 0
  s_cmp_eq_u32 s{sTMP}, s{sT}
  s_cbranch_scc1 L_cinit_ok""")
    spin_guard(g,sTMP+9,"L_fail_aux")
    g(f"""
  s_sleep 8
  s_branch L_cinit
L_cinit_ok:
  s_mov_b32 s{sKQ}, 0
  s_mov_b32 s{sKQ+1}, {256+DYN_S-DYN_LOOK}
L_sched:
  s_mov_b32 s{sTMP+9}, 0
L_sched_poll:
  ds_read_b32 v11, v10
  s_waitcnt lgkmcnt(0)
  v_readfirstlane_b32 s{sTMP}, v11
  s_nop 0
  s_cmp_ge_u32 s{sTMP}, s{sKQ+1}
  s_cbranch_scc1 L_sched_go""")
    spin_guard(g,sTMP+9,"L_fail_aux",limit=1000000)
    g(f"""
  s_sleep {SCHSLEEP}
  s_branch L_sched_poll
L_sched_go:""")
    if SATOM:
        g(f"""  s_mov_b32 s{sTMP}, 1
  s_atomic_add s{sTMP}, s[{sWS}:{sWS+1}], s{sTMP+8} glc
  s_waitcnt lgkmcnt(0)""")
    else:
        g(f"""  s_mov_b64 exec, 1
  global_atomic_add v11, v8, v9, s[{sWS}:{sWS+1}] sc0 sc1
  s_mov_b64 exec, -1
  s_waitcnt vmcnt(0)
  v_readfirstlane_b32 s{sTMP}, v11""")
    g(f"""
  s_lshl_b32 s{sTMP+3}, s{sKQ}, 2
  s_add_u32 s{sTMP+3}, s{sTMP+3}, {L_QUEUE}
  v_mov_b32 v12, s{sTMP+3}
  s_cmp_lt_u32 s{sTMP}, {nch}
  s_cbranch_scc0 L_sched_end
  s_lshr_b32 s{sTMP+1}, s{sTMP}, {lcpj}        ; j'
  s_lshl_b32 s{sTMP+1}, s{sTMP+1}, 7
  s_and_b32 s{sTMP+2}, s{sTMP}, {cpj-1}
  s_lshl_b32 s{sTMP+2}, s{sTMP+2}, {DYN_LC}
  s_add_u32 s{sTMP+1}, s{sTMP+1}, s{sTMP+2}
  s_add_u32 s{sTMP+1}, s{sTMP+1}, {DYN_S}
  v_mov_b32 v13, s{sTMP+1}
  ds_write_b32 v12, v13
  s_add_u32 s{sKQ}, s{sKQ}, 1
  s_add_u32 s{sKQ+1}, s{sKQ+1}, {C}
  s_branch L_sched
L_sched_end:
  v_mov_b32 v13, -2
  ds_write_b32 v12, v13
  ds_write_b32 v12, v13 offset:4
  ds_write_b32 v12, v13 offset:8
  ds_write_b32 v12, v13 offset:12
  ds_write_b32 v12, v13 offset:16
  s_mov_b32 s34, s{sKQ}""")

def tags_from_epoch(g):
    h=G(); load_tags(h,sWS,sT,sTB,sTMP); L=h.text().split('\n')
    L=[l for l in L if 's_load_dword' not in l]
    g("\n".join(L))

def aux_b(g,o):
    sL=61
    g(f"""
  v_mov_b32 v10, {CTR}
  s_mov_b32 s{sTMP+9}, 0
L_bw_poll:
  ds_read_b32 v11, v10
  s_waitcnt lgkmcnt(0)
  v_readfirstlane_b32 s{sTMP}, v11
  s_nop 0
  s_cmp_ge_u32 s{sTMP}, {256+opt(o,'bstart',40)}
  s_cbranch_scc1 L_bw_go""")
    spin_guard(g,sTMP+9,"L_fail_aux",limit=1000000)
    g("""
  s_sleep 16
  s_branch L_bw_poll
L_bw_go:""")
    abl=opt(o,'abl',9)
    if abl>=1: emit_wo_stage(g,'b',which=(1,))
    if abl<2:
        g("  s_waitcnt vmcnt(0)"); return
    g(f"  v_mov_b32 v{vLANE}, v0\n  s_mov_b32 s{sL}, 0\nL_b1:")
    emit_role(g,o,1,'Bx',wreg=sL,fail="L_fail_aux",sleep=opt(o,'bsleep',32),part=1)
    g(f"  s_add_u32 s{sL}, s{sL}, 1\n  s_cmp_lt_u32 s{sL}, 4\n  s_cbranch_scc1 L_b1\n  s_waitcnt vmcnt(0) lgkmcnt(0)\n  s_mov_b32 s{sL}, 0\nL_b2:")
    if abl<3: return
    emit_role(g,o,1,'Bx',wreg=sL,part=2)
    g(f"  s_add_u32 s{sL}, s{sL}, 1\n  s_cmp_lt_u32 s{sL}, 4\n  s_cbranch_scc1 L_b2")
    if not opt(o,'bfinlate',False): aux_bfinal(g,o)

def aux_bfinal(g,o):
    g(f"  v_mov_b32 v{vLANE}, v0")
    emit_final(g,o,'fb',False,lo=112,hi=224,loopw=61,fail="L_fail_aux",done="L_bfin_done",fb=L_FB+256,fsleep=opt(o,'bfsleep',16))
    g("L_bfin_done:")

def wo_touch(g,o):
    g(f"""
  s_load_dwordx2 s[48:49], s[0:1], 32
  s_load_dwordx2 s[52:53], s[0:1], 72
  s_lshr_b32 s44, s2, 2
  s_mul_i32 s44, s44, {64*896}
  v_lshlrev_b32 v2, 12, v0
  s_waitcnt lgkmcnt(0)
  s_and_b32 s49, s49, 0xffff
  s_mov_b32 s50, 3670016
  s_mov_b32 s51, 0x20000
  s_and_b32 s53, s53, 0xffff
  s_mov_b32 s54, 3670016
  s_mov_b32 s55, 0x20000
  s_mov_b64 exec, 0x7fff
  buffer_load_dword v3, v2, s[48:51], s44 offen nt
  buffer_load_dword v4, v2, s[52:55], s44 offen nt
  s_mov_b64 exec, -1
  s_waitcnt vmcnt(0)""")

TBAR=L_CNT+40; WOAF=L_CNT+44
def softbar(g,u):
    g(f"""
  v_mov_b32 v17, {TBAR}
  v_mov_b32 v18, 1
  s_mov_b64 exec, 1
  ds_add_u32 v17, v18
  s_mov_b64 exec, -1
  s_mov_b32 s{sTMP+2}, 0
L_sb_{u}:
  ds_read_b64 v[18:19], v17
  s_waitcnt lgkmcnt(0)
  v_readfirstlane_b32 s{sTMP}, v18
  v_readfirstlane_b32 s{sTMP+1}, v19
  s_nop 0
  s_sub_u32 s{sTMP}, s{sTMP}, 4
  s_sub_u32 s{sTMP+1}, s{sTMP+1}, 1
  s_or_b32 s{sTMP}, s{sTMP}, s{sTMP+1}
  s_cmp_eq_u32 s{sTMP}, 0
  s_cbranch_scc1 L_sbok_{u}""")
    spin_guard(g,sTMP+2,"L_fail",limit=2000000)
    g(f"  s_branch L_sb_{u}\nL_sbok_{u}:")

def lds_init(g,extra):
    if DYN_S<128:
        g(f"""
  v_lshlrev_b32 v76, 2, v0
  v_mov_b32 v77, -1
  v_add_u32 v78, {L_QUEUE}, v76
  ds_write_b32 v78, v77
  ds_write_b32 v78, v77 offset:256""")
    g(f"""
  v_lshlrev_b32 v76, 2, v0
  v_mov_b32 v77, 0
  v_add_u32 v78, {L_CNT}, v76
  s_mov_b64 exec, 0xffff
  ds_write_b32 v78, v77
  s_mov_b64 exec, -1
  s_waitcnt lgkmcnt(0)
  v_mov_b32 v77, {12 if extra else 8}
  v_mov_b32 v78, {CTR}
  ds_write_b32 v78, v77
""")

def helper_wave(g,o):
    pol=o.get('pol','nt')
    g(f"""
L_help:
  v_mov_b32 v0, v{vLANE}""")
    lds_init(g,True)
    g(f"""
  v_and_b32 v{vOK}, 15, v{vLANE}
  v_lshlrev_b32 v{vOK}, 9, v{vOK}
  v_lshrrev_b32 v{vT}, 4, v{vLANE}
  v_lshl_add_u32 v{vOK}, v{vT}, 4, v{vOK}
  v_lshrrev_b32 v{vT}, 5, v{vLANE}
  v_lshlrev_b32 v{vT}, 12, v{vT}
  v_and_b32 v{vOV}, 31, v{vLANE}
  v_lshl_add_u32 v{vOV}, v{vOV}, 4, v{vT}
  s_lshl_b32 s{sTMP+2}, s{sG}, 1""")
    set_srd_head(g,sKB,sVB,sTMP+2)
    g(f"""
  s_lshl_b32 s{sJOFF}, s{sJ}, {13+MAP}
  s_mul_i32 s{sROT}, s2, {ROT}
  s_waitcnt lgkmcnt(0)
  s_barrier
  s_sleep {opt(o,'helpdelay',16)}""")
    for w in range(4):
        g(f"  s_mov_b32 s{sTMP}, {8+w}"); tile_off(g,sTMP,sOFF)
        base=L_X2+w*16384
        for j in range(8):
            g(f"  s_mov_b32 m0, {base+j*1024-j*64}\n  s_nop 0\n  buffer_load_dwordx4 v{vOK}, s[{sK}:{sK+3}], s{sOFF} offen offset:{j*64} {pol} lds")
        for r in range(8):
            g(f"  s_mov_b32 m0, {base+8192+r*1024-r*512}\n  s_nop 0\n  buffer_load_dwordx4 v{vOV}, s[{sV}:{sV+3}], s{sOFF} offen offset:{r*512} {pol} lds")
    g(f"""
  s_waitcnt vmcnt(0)
  v_mov_b32 v4, {XRDY}
  v_mov_b32 v5, 1
  ds_write_b32 v4, v5
  s_waitcnt lgkmcnt(0)
  s_branch L_exit""")

def k_main2(o):
    g=G(); name=KN+'_kernel'
    pol=o.get('pol','nt'); pace=opt(o,'pace',32); extra=opt(o,'extra',False); vearly=opt(o,'vearly',o.get('sched','s2')=='s2')
    g("  s_cmp_ge_u32 s2, 256\n  s_cbranch_scc1 L_exit")
    emit_qproj_ptrs(g)
    if opt(o,'remap',False):
        G1.RQ=82; G1.RO=83
        g(f"""
  s_lshr_b32 s84, s2, 3               ; a
  s_and_b32 s85, s2, 7                ; x
  s_lshr_b32 s82, s84, 1
  s_and_b32 s82, s82, 7
  s_lshl_b32 s82, s82, 4              ; (a'>>1)<<4
  s_lshl_b32 s86, s85, 1
  s_or_b32 s82, s82, s86
  s_and_b32 s86, s84, 1
  s_or_b32 s82, s82, s86
  s_and_b32 s86, s2, 128
  s_or_b32 s82, s82, s86              ; q role = p<<7 | c
  s_lshr_b32 s83, s84, 2
  s_lshl_b32 s83, s83, 3
  s_add_u32 s83, s83, s85
  s_lshl_b32 s83, s83, 2
  s_and_b32 s86, s84, 3
  s_or_b32 s83, s83, s86""")
    else:
        G1.RQ=2; G1.RO=2
    load_ptrs(g)
    G1.stamp_init(g); stamp(g,0)
    g(f"  s_load_dword s{sT}, s[{sWS}:{sWS+1}], {WS_EPOCH}")
    global HELPER
    HELPER=opt(o,'helper',False)
    global NOQ
    NOQ=opt(o,'noqwait',False)
    if HELPER:
        extra=True
        g(f"  s_cmp_eq_u32 s{sW}, 5\n  s_cbranch_scc1 L_help")
    g(f"""
  s_cmp_eq_u32 s{sW}, 4
  s_cbranch_scc1 L_aux
  v_and_b32 v{vOK}, 15, v{vLANE}
  v_lshlrev_b32 v{vOK}, 9, v{vOK}
  v_lshrrev_b32 v{vT}, 4, v{vLANE}
  v_lshl_add_u32 v{vOK}, v{vT}, 4, v{vOK}        ; (l&15)*512 + (l>>4)*16
  v_lshrrev_b32 v{vT}, 5, v{vLANE}
  v_lshlrev_b32 v{vT}, 12, v{vT}
  v_and_b32 v{vOV}, 31, v{vLANE}
  v_lshl_add_u32 v{vOV}, v{vOV}, 4, v{vT}        ; (l>>5)*4096 + (l&31)*16
  s_lshl_b32 s{sTMP+2}, s{sG}, 1
""")
    set_srd_head(g,sKB,sVB,sTMP+2)
    g(f"""
  s_lshl_b32 s{sJOFF}, s{sJ}, {13+MAP}
  s_mul_i32 s{sROT}, s2, {ROT}
  s_mov_b32 s{sTMP}, s{sW}""")
    tile_off(g,sTMP,sOFF)
    g(f"""
  s_lshl_b32 s{sX2}, s{sW}, 14
  s_add_u32 s{sX2}, s{sX2}, {L_X2}
  s_barrier
""")
    def pw(n):
        if pace<n: g(f"  s_waitcnt vmcnt({pace})")
    emit_k_loads(g,0,pol); pw(8); emit_v_loads(g,0,pol)
    g(f"  s_add_u32 s{sTMP}, s{sW}, 4"); tile_off(g,sTMP,sOFF)
    pw(16); emit_k_loads(g,1,pol); pw(24); emit_v_loads(g,1,pol)
    if extra and not HELPER:
        g(f"  s_add_u32 s{sTMP}, s{sW}, 8"); tile_off(g,sTMP,sOFF)
        pw(32)
        for j in range(8):
            g(f"  s_add_u32 m0, s{sX2}, {j*1024-j*64}\n  s_nop 0\n  buffer_load_dwordx4 v{vOK}, s[{sK}:{sK+3}], s{sOFF} offen offset:{j*64} {pol} lds")
        pw(40)
        for r in range(8):
            g(f"  s_add_u32 m0, s{sX2}, {8192+r*1024-r*512}\n  s_nop 0\n  buffer_load_dwordx4 v{vOV}, s[{sV}:{sV+3}], s{sOFF} offen offset:{r*512} {pol} lds")
    g(f"""
  s_mov_b32 s{sPH}, 0
  s_mov_b32 s{sCPH}, 0
  s_mov_b32 s{sDYN}, 0
  s_mov_b32 s{sSUB}, s{sW}
  s_mov_b32 s{sSTL}, 0
  s_lshl_b32 s{sCOFF}, s{sG}, 2
  s_add_u32 s{sCOFF}, s{sCOFF}, s{sW}
  s_mul_i32 s{sCOFF}, s{sCOFF}, {CNT_STRIDE}
  s_add_u32 s{sCOFF}, s{sCOFF}, {WS_CNT}
  s_mov_b32 s{sC}, {f2h(SCALE)}
  s_mov_b32 s{sSLO}, 0x05040100
  s_mov_b32 s{sSHI}, 0x07060302
""")
    tags_from_epoch(g)
    reset_state(g)
    stamp(g,1)
    if HELPER: lds_wait_flag(g,QRDY,'q')
    elif not opt(o,'noqwait',False): g("  s_barrier")
    read_q(g)
    stamp(g,2)
    deep=o.get('sched','s2')=='s3'
    if deep:
        g(f"  s_mov_b32 s{sPHB[0]}, 0\n  s_mov_b32 s{sPHB[1]}, 0")
        body(g,o,0,'b0',24,24,0); phase_check(g,1,True)
        body(g,o,1,'b1',24,24,1); phase_check(g,0,True)
        g("  s_branch L_body_b0")
    else:
        if extra and HELPER:
            body(g,o,0,'s0',24,24,0)
            body(g,o,1,'s1',24,16,None)
            body(g,o,1,'s2',16,None,None,src='lds')
            phase_check(g,0)
            g("  s_branch L_body_b0")
        elif extra:
            body(g,o,0,'s0',40,40,0)
            body(g,o,1,'s1',40,32,None)
            body(g,o,1,'s2',16,None,None,src='lds')
            phase_check(g,0)
            g("  s_branch L_body_b0")
        else:
            body(g,o,0,'s0',24,24,0)
            body(g,o,1,'s1',24,16,None)
            phase_check(g,0)
            g("  s_branch L_body_b0")
        body(g,o,0,'b0',8,16 if vearly else 8,1,vearly=vearly); phase_check(g,1)
        body(g,o,1,'b1',8,16 if vearly else 8,0,vearly=vearly); phase_check(g,0)
        g("  s_branch L_body_b0")
    us=([] if deep else ['s0','s1']+(['s2'] if extra else []))+['b0','b1']
    for u in us: rare(g,u)
    for u in ([] if deep else ['s0'])+['b0','b1']: newph(g,u); dynpath(g,u)
    flush(g,o)
    g("L_tail:")
    stamp(g,6)
    if opt(o,'tailwait',False): g("  s_waitcnt vmcnt(0)")
    auxb=opt(o,'auxb',False) and DYN_S<128
    if WDYN and opt(o,'endb',False):
        if opt(o,'softbar',False): G1.SOFTBAR=softbar
        stamp(g,7); emit_role(g,o,0,'A',sleep=opt(o,'rsleep',1)); G1.SOFTBAR=None; stamp(g,8); emit_final(g,o,'f',True,fsleep=opt(o,'fsleep',1))
    elif auxb:
        stamp(g,7); emit_role(g,o,0,'A',sleep=opt(o,'rsleep',1)); stamp(g,8); emit_final(g,o,'f',True,lo=0,hi=112,fsleep=opt(o,'fsleep',1))
    else:
        pre=None; preb=None
        if opt(o,'bpre',False):
            preb=72
            g(f"  s_cmp_eq_u32 s{sMRG}, 4\n  s_cbranch_scc1 L_tw4\n  s_waitcnt vmcnt(0)\n  s_branch L_tw\nL_tw4:\n  s_waitcnt vmcnt(4)\nL_tw:")
        if opt(o,'apre',False):
            pre=72; G1._role_pre(g,0,sW,pre)
        emit_role(g,o,1,'B',sleep=opt(o,'rsleep',1),pre=preb); stamp(g,7); emit_role(g,o,0,'A',sleep=opt(o,'rsleep',1),pre=pre); stamp(g,8); emit_final(g,o,'f',True,fsleep=opt(o,'fsleep',1))
    g("  s_waitcnt vmcnt(0)")
    g("  s_branch L_done")
    g(f"""
L_aux:
  v_mov_b32 v0, v{vLANE}
  s_setprio 3""")
    emit_qproj_issue(g)
    if NOQ: lds_init(g,extra); g("  s_waitcnt lgkmcnt(0)")
    b0=opt(o,'b0wait',63)
    if b0<63: g(f"  s_waitcnt vmcnt({b0})")
    g("  s_barrier")
    stamp(g,8)
    tags_from_epoch(g)
    if not HELPER and not NOQ: lds_init(g,extra)
    stamp(g,1)
    emit_qproj_compute(g,'fq',sWS,sT)
    stamp(g,2)
    if opt(o,'qg2',True): qgather2(g,o)
    else:
        emit_qgather(g,'m',sWS,sT,sG,"L_fail_aux")
        stamp(g,3)
        g(f"  v_mov_b32 v4, {QFLAG}\n  v_mov_b32 v5, 1\n  ds_write_b32 v4, v5\n  s_waitcnt lgkmcnt(0)\n  s_barrier")
    if WDYN:
        g(f"""
  s_lshl_b32 s{sTMP}, s{sG}, 2
  s_mul_i32 s{sTMP}, s{sTMP}, {CNT_STRIDE}
  s_add_u32 s{sTMP}, s{sTMP}, {WS_CNT}
  v_and_b32 v72, 3, v0
  v_mul_u32_u24 v72, {CNT_STRIDE}, v72
  v_add_u32 v72, s{sTMP}, v72
  s_cmp_eq_u32 s{sJ}, 0
  s_cbranch_scc0 L_noinit
  v_mov_b32 v74, 0
  v_mov_b32 v75, s{sT}
  s_mov_b64 exec, 0xf
  global_store_dwordx2 v72, v[74:75], s[{sWS}:{sWS+1}] sc1
  s_mov_b64 exec, -1
L_noinit:
  s_mov_b32 s{sTMP+9}, 0
L_cinit:
  global_load_dwordx2 v[74:75], v72, s[{sWS}:{sWS+1}] sc1
  s_waitcnt vmcnt(0)
  v_cmp_ne_u32 vcc, s{sT}, v75
  s_cbranch_vccz L_cinit_ok""")
        spin_guard(g,sTMP+9,"L_fail_aux")
        g(f"""
  s_sleep 8
  s_branch L_cinit
L_cinit_ok:
  v_mov_b32 v4, {CINITF}
  v_mov_b32 v5, 1
  ds_write_b32 v4, v5
  v_mov_b32 v10, {ENDF}
  s_mov_b32 s{sTMP+9}, 0
L_endw:
  ds_read_b32 v11, v10
  s_waitcnt lgkmcnt(0)
  v_readfirstlane_b32 s{sTMP}, v11
  s_nop 0
  s_cmp_eq_u32 s{sTMP}, 1
  s_cbranch_scc1 L_endw_ok""")
        spin_guard(g,sTMP+9,"L_fail_aux",limit=1000000)
        g(f"""
  s_sleep {opt(o,'endsleep',4)}
  s_branch L_endw
L_endw_ok:""")
        if opt(o,'endb',False):
            sL=61
            g(f"  v_mov_b32 v{vLANE}, v0")
            for w in range(4):
                g(f"  s_mov_b32 s{sL}, {w}"); G1._role_pre(g,1,sL,72+16*w)
            emit_wo_stage(g,'m')
            if opt(o,'softbar',False):
                g(f"  v_mov_b32 v{vLANE}, v0\n  s_waitcnt vmcnt(0)\n  v_mov_b32 v4, {WOAF}\n  v_mov_b32 v5, 1\n  ds_write_b32 v4, v5")
            else:
                g(f"  v_mov_b32 v{vLANE}, v0\n  s_waitcnt vmcnt(28)")
            for w in range(4):
                g(f"  s_mov_b32 s{sL}, {w}")
                emit_role(g,o,1,f'Be{w}',wreg=sL,fail="L_fail_aux",sleep=4,part=1,pre=72+16*w)
            g(f"  s_waitcnt vmcnt(0) lgkmcnt(0)\n  s_mov_b32 s{sL}, 0\nL_be2:")
            emit_role(g,o,1,'Be',wreg=sL,part=2)
            g(f"  s_add_u32 s{sL}, s{sL}, 1\n  s_cmp_lt_u32 s{sL}, 4\n  s_cbranch_scc1 L_be2")
        else:
            emit_wo_stage(g,'m')
    elif DYN_S<128:
        g(f"""
  s_cmp_eq_u32 s{sJ}, 0
  s_cbranch_scc0 L_noinit
  s_mul_i32 s{sTMP}, s{sG}, {CNT_STRIDE}
  s_add_u32 s{sTMP}, s{sTMP}, {WS_CNT}
  v_mov_b32 v72, s{sTMP}
  v_mov_b32 v74, 0
  v_mov_b32 v75, s{sT}
  s_mov_b64 exec, 1
  global_store_dwordx2 v72, v[74:75], s[{sWS}:{sWS+1}] sc1
  s_mov_b64 exec, -1
L_noinit:""")
    wolate=opt(o,'wolate',False) and DYN_S<128
    if WDYN: pass
    elif auxb:
        aux_b(g,o)
        sched(g)
        emit_wo_stage(g,'m',which=(0,))
        if opt(o,'bfinlate',False) and opt(o,'abl',9)>=4: aux_bfinal(g,o)
    else:
        if opt(o,'wotouch',False): wo_touch(g,o)
        if not wolate: emit_wo_stage(g,'m')
        if DYN_S<128: sched(g)
        if wolate and not opt(o,'nowo',False): emit_wo_stage(g,'m')
    g(f"""
  s_waitcnt vmcnt(0) lgkmcnt(0)
  s_branch L_done
L_fail_aux:
  v_mov_b32 v24, 0xdeae
  v_mov_b32 v25, 12
  s_mov_b64 exec, 1
  global_store_dword v25, v24, s[{sDBG}:{sDBG+1}]
  s_mov_b64 exec, -1
""")
    if HELPER:
        g("  s_branch L_done")
        helper_wave(g,o)
    if opt(o,'dbgst',False):
        h=G(); fail_and_done(h,name,False); t=h.text()
        extra_code=f"""L_done:
  s_memrealtime s[80:81]
  s_waitcnt lgkmcnt(0)
  s_mov_b32 s73, s80
  s_cmp_eq_u32 s{sW}, 0
  s_cbranch_scc0 L_exit
  s_not_b32 s80, s64
  v_mov_b32 v24, 0
  v_mov_b32 v25, s80
  s_mov_b64 exec, 1
  global_atomic_umax v24, v25, s[{sDBG}:{sDBG+1}] sc1
"""
        for k,slot in ((2,1),(3,2),(4,3),(5,4),(9,5)):
            extra_code+=f"  v_mov_b32 v25, s{64+k}\n  global_atomic_umax v24, v25, s[{sDBG}:{sDBG+1}] offset:{4*slot} sc1\n"
            extra_code+=f"  s_sub_u32 s80, s{64+k}, s64\n  v_mov_b32 v26, s80\n  global_atomic_add v24, v26, s[{sDBG}:{sDBG+1}] offset:{4*(slot+7)} sc1\n"
        extra_code+="  s_waitcnt vmcnt(0)\n  s_mov_b64 exec, -1\n"
        t=t.replace("L_done:\n",extra_code)
        g(t)
    else:
        fail_and_done(g,name,True)
    lds = L_X2+65536 if extra else (G1.L_WO+32768 if G1.WAL else LDS_SIZE)
    assert not (extra and G1.WAL)
    return khead(name)+uniq(g.text(),'_m'), kd(name,NARCH,NACC), name, lds

def build2(o):
    global MAP, DYN_S, DYN_LC, DYN_LOOK, SATOM, SCHSLEEP
    SATOM=opt(o,'satom',False); SCHSLEEP=opt(o,'schsleep',2)
    global WDYN
    WDYN=opt(o,'wdyn',False)
    global WJIT, STEAL
    WJIT=opt(o,'wjit',False); STEAL=opt(o,'steal',0)
    DYN_S=opt(o,'dyns',128); DYN_LC=opt(o,'dynlc',2); DYN_LOOK=opt(o,'look',6)
    MAP=opt(o,'map',7)
    global ROT
    ROT=opt(o,'rot',0)
    G1.STAMPS=opt(o,'stamps',False); G1.TAILST=bool(o.get('tailst')); G1.WQPOL=o.get('wqpol','nt'); G1.WOPOL=o.get('wopol','nt'); G1.WQTEST=0; G1.WAL=opt(o,'wal',False); G1.VSKEW=opt(o,'vskew',0); G1.WQROT=opt(o,'wqrot',0)
    k=k_main2(o)
    src=HEADER+f"; @launch grid=(256,1,1) block=({384 if HELPER else 320},1,1) lds={k[3]}"+'\n.amdgcn_target "amdgcn-amd-amdhsa--gfx950"\n.text\n'
    src+=k[0]+'.section .rodata,"a"\n'+k[1]
    if opt(o,'meta',False):
        src+=".amdgpu_metadata\n---\namdhsa.version: [1, 2]\namdhsa.kernels:\n"
        src+=f"  - .name: {k[2]}\n    .symbol: {k[2]}.kd\n    .kernarg_segment_size: 104\n    .kernarg_segment_align: 8\n    .group_segment_fixed_size: 0\n    .private_segment_fixed_size: 0\n    .wavefront_size: 64\n    .sgpr_count: 96\n    .vgpr_count: 256\n    .max_flat_workgroup_size: 384\n    .args:\n      - {{.name: kernargs, .size: 104, .offset: 0, .value_kind: by_value}}\n"
        src+="...\n.end_amdgpu_metadata\n"
    return src
if __name__=='__main__':
    out=sys.argv[1]; o=dict(a.split('=',1) for a in sys.argv[2:])
    open(out,'w').write(build2(o))
```

```python
import sys
import gen as G1
from gen import *

L_X2=0xE200
sJOFF=31; sRET=33; sX2=34
sPHB=[35,36]; sTGT=41; sMRG=92
CTR=L_CNT+16

def stamp(g,i): G1.stamp(g,i)

def claim(g):
    g(f"""
  v_mov_b32 v13, {CTR}
  v_mov_b32 v14, 1
  s_mov_b64 exec, 1
  ds_add_rtn_u32 v12, v13, v14
  s_mov_b64 exec, -1""")

ROT=0; sROT=42
MAP=0
def tile_off(g,si,so):
    if MAP==7:
        if ROT: g(f"  s_add_u32 s{si}, s{si}, s{sROT}\n  s_and_b32 s{si}, s{si}, 127")
        g(f"  s_lshl_b32 s{si}, s{si}, 13\n  s_add_u32 s{so}, s{si}, s{sJOFF}")
    else:
        g(f"""  s_lshr_b32 s{sTMP+1}, s{si}, {MAP}
  s_lshl_b32 s{sTMP+1}, s{sTMP+1}, {16+MAP}
  s_and_b32 s{si}, s{si}, {(1<<MAP)-1}
  s_lshl_b32 s{si}, s{si}, 13
  s_add_u32 s{so}, s{si}, s{sTMP+1}
  s_add_u32 s{so}, s{so}, s{sJOFF}""")

SATOM=False; SCHSLEEP=2
WJIT=False; STEAL=0
WDYN=False; sDYN=87; sCL=88; sCOFF=89; sSUB=90; sSTL=91; sAMT=93; sPEND=94; sAMTN=95
PAIRUP=0
CINITF=L_CNT+32; ENDF=L_CNT+36
DYN_S=128; DYN_LC=2; DYN_LOOK=6
def decode(g,u):
    dyn = DYN_S<128
    if WDYN:
        g(f"  s_waitcnt lgkmcnt(0)\n  s_cmp_eq_u32 s{sDYN}, 0\n  s_cbranch_scc0 L_wd_{u}")
    g(f"""
  s_waitcnt lgkmcnt(0)
  v_readfirstlane_b32 s{sTMP}, v12
  s_nop 0
  s_lshr_b32 s{sTMP+1}, s{sTMP}, 7""")
    if dyn: g(f"  s_min_u32 s{sTMP+1}, s{sTMP+1}, 2")
    g(f"""
  s_cmp_eq_u32 s{sTMP+1}, s{sPH}
  s_cbranch_scc0 L_newph_{u}
L_phok_{u}:""")
    if dyn:
        g(f"""
  s_cmp_ge_u32 s{sTMP}, {256+DYN_S}
  s_cbranch_scc1 L_dyn_{u}""")
    g(f"  s_and_b32 s{sTMP}, s{sTMP}, 127")
    tile_off(g,sTMP,sOFF)
    if dyn: g(f"L_dyn_done_{u}:")

def dynpath_w(g,u):
    P=128-DYN_S; pw=P//4; assert pw*4==P and pw&(pw-1)==0
    lpw=pw.bit_length()-1
    g(f"L_dyn_{u}:")
    lds_wait_flag(g,CINITF,'ci'+u)
    g(f"""
  s_mov_b32 s{sDYN}, 1
  s_mov_b32 s{sCL}, {2 if PAIRUP else 1}
  s_mov_b32 s{sAMT}, {2 if PAIRUP else 1}
  s_atomic_add s{sCL}, s[{sWS}:{sWS+1}], s{sCOFF} glc
  s_waitcnt lgkmcnt(0)
L_wd_{u}:""")
    if PAIRUP:
        g(f"""
  s_add_u32 s{sTMP}, s{sCL}, 1
  s_cmp_eq_u32 s{sAMT}, 2
  s_cselect_b32 s{sPEND}, s{sTMP}, s{sPEND}
  s_cmp_lt_u32 s{sCL}, {PAIRUP}
  s_cselect_b32 s{sAMTN}, 2, 1""")
    g(f"""
  s_cmp_lt_u32 s{sCL}, {8*pw}
  s_cbranch_scc0 L_dyn_end_{u}""")
    if PAIRUP:
        g(f"""  s_lshr_b32 s{sTMP}, s{sCL}, 1
  s_and_b32 s{sTMP+1}, s{sCL}, 1
  s_mul_i32 s{sTMP+1}, s{sTMP+1}, {PAIRUP//2}
  s_add_u32 s{sTMP}, s{sTMP}, s{sTMP+1}
  s_cmp_lt_u32 s{sCL}, {PAIRUP}
  s_cselect_b32 s{sTMP+2}, s{sTMP}, s{sCL}""")
    else:
        g(f"  s_mov_b32 s{sTMP+2}, s{sCL}")
    g(f"""
  s_lshr_b32 s{sTMP}, s{sTMP+2}, {lpw}            ; j'
  s_lshl_b32 s{sTMP}, s{sTMP}, 7
  s_and_b32 s{sTMP+1}, s{sTMP+2}, {pw-1}
  s_add_u32 s{sTMP}, s{sTMP}, s{sTMP+1}
  s_mul_i32 s{sTMP+1}, s{sSUB}, {pw}
  s_add_u32 s{sTMP}, s{sTMP}, s{sTMP+1}
  s_add_u32 s{sTMP}, s{sTMP}, {DYN_S}
  s_lshl_b32 s{sOFF}, s{sTMP}, 13
  s_branch L_dyn_done_{u}
L_dyn_end_{u}:""")
    if STEAL:
        g(f"""
  s_cmp_ge_u32 s{sSTL}, {STEAL}
  s_cbranch_scc1 L_dyn_fin_{u}
  s_add_u32 s{sSTL}, s{sSTL}, 1
  s_add_u32 s{sSUB}, s{sSUB}, 1
  s_and_b32 s{sSUB}, s{sSUB}, 3
  s_lshl_b32 s{sCOFF}, s{sG}, 2
  s_add_u32 s{sCOFF}, s{sCOFF}, s{sSUB}
  s_mul_i32 s{sCOFF}, s{sCOFF}, {CNT_STRIDE}
  s_add_u32 s{sCOFF}, s{sCOFF}, {WS_CNT}
  s_mov_b32 s{sCL}, 1
  s_atomic_add s{sCL}, s[{sWS}:{sWS+1}], s{sCOFF} glc
  s_waitcnt lgkmcnt(0)
  s_branch L_wd_{u}
L_dyn_fin_{u}:""")
    g(f"""
  s_mov_b32 s{sPH}, 3
  s_mov_b32 s{sK+2}, 0
  s_mov_b32 s{sV+2}, 0
  s_mov_b32 s{sOFF}, 0
  v_mov_b32 v13, {ENDF}
  v_mov_b32 v12, 1
  s_mov_b64 exec, 1
  ds_add_u32 v13, v12
  s_mov_b64 exec, -1
  s_branch L_dyn_done_{u}""")

def dynpath(g,u):
    if DYN_S>=128: return
    if WDYN: return dynpath_w(g,u)
    g(f"""
L_dyn_{u}:
  s_sub_u32 s{sTMP}, s{sTMP}, {256+DYN_S}
  s_lshr_b32 s{sTMP+1}, s{sTMP}, {DYN_LC}          ; chunk k
  s_and_b32 s{sTMP}, s{sTMP}, {(1<<DYN_LC)-1}
  s_lshl_b32 s{sTMP+1}, s{sTMP+1}, 2
  s_add_u32 s{sTMP+1}, s{sTMP+1}, {L_QUEUE}
  v_mov_b32 v13, s{sTMP+1}
  s_mov_b32 s{sTMP+2}, 0
L_dyn_poll_{u}:
  ds_read_b32 v12, v13
  s_waitcnt lgkmcnt(0)
  v_readfirstlane_b32 s{sTMP+1}, v12
  s_nop 0
  s_cmp_eq_u32 s{sTMP+1}, -1
  s_cbranch_scc0 L_dyn_got_{u}
""")
    spin_guard(g,sTMP+2,"L_fail")
    if G1.STAMPS: g(f"  s_add_u32 s{G1.sST+11}, s{G1.sST+11}, 1")
    g(f"""
  s_branch L_dyn_poll_{u}
L_dyn_got_{u}:
  s_cmp_eq_u32 s{sTMP+1}, -2
  s_cbranch_scc1 L_dyn_end_{u}
  s_add_u32 s{sTMP}, s{sTMP}, s{sTMP+1}
  s_lshl_b32 s{sOFF}, s{sTMP}, 13
  s_branch L_dyn_done_{u}
L_dyn_end_{u}:
  s_mov_b32 s{sPH}, 3
  s_mov_b32 s{sK+2}, 0
  s_mov_b32 s{sV+2}, 0
  s_mov_b32 s{sOFF}, 0
  s_branch L_dyn_done_{u}""")

def newph(g,u):
    g(f"""
L_newph_{u}:
  s_mov_b32 s{sPH}, s{sTMP+1}
  s_cmp_eq_u32 s{sPH}, 1
  s_cbranch_scc0 L_np2_{u}
  s_lshl_b32 s{sTMP+2}, s{sG}, 1
  s_add_u32 s{sTMP+2}, s{sTMP+2}, 1
  s_mov_b32 s{sTMP+3}, s{sTMP}""")
    set_srd_head(g,sKB,sVB,sTMP+2)
    g(f"""
  s_mov_b32 s{sTMP}, s{sTMP+3}
  s_branch L_phok_{u}
L_np2_{u}:
  s_cmp_eq_u32 s{sPH}, 2
  s_cbranch_scc0 L_np3_{u}
  s_mov_b32 s{sTMP+3}, s{sTMP}""")
    set_srd_head(g,sKA,sVA,sG)
    g(f"""
  s_mov_b32 s{sTMP}, s{sTMP+3}
  s_branch L_phok_{u}
L_np3_{u}:
  s_mov_b32 s{sPH}, 3
  s_mov_b32 s{sK+2}, 0
  s_mov_b32 s{sV+2}, 0
  s_branch L_phok_{u}""")

def body(g,o,b,u,kwait,vwait,load,src='reg',vearly=False):
    pol=o.get('pol','nt'); t=vT
    g(f"L_body_{u}:")
    if src=='lds':
        if HELPER: lds_wait_flag(g,XRDY,'x')
        else: g(f"  s_waitcnt vmcnt({kwait})")
        g(f"""
  v_lshlrev_b32 v13, 4, v{vLANE}
  v_add_u32 v13, s{sX2}, v13""")
        for j in range(8): g(f"  ds_read_b128 a[{aK[b]+4*j}:{aK[b]+4*j+3}], v13 offset:{j*1024}")
        for r in range(8): g(f"  ds_read_b128 v[{vV[b]+4*r}:{vV[b]+4*r+3}], v13 offset:{8192+r*1024}")
        g("  s_waitcnt lgkmcnt(0)")
    elif WDYN and load is not None:
        g(f"""
  s_cmp_eq_u32 s{sDYN}, 0
  s_cbranch_scc1 L_st_{u}""")
        if WJIT: g(f"  s_waitcnt vmcnt({kwait})")
        if PAIRUP:
            g(f"""  s_cmp_eq_u32 s{sPEND}, -1
  s_cbranch_scc1 L_at_{u}
  s_mov_b32 s{sCL}, s{sPEND}
  s_mov_b32 s{sPEND}, -1
  s_mov_b32 s{sAMT}, 0
  s_branch L_atd_{u}
L_at_{u}:
  s_mov_b32 s{sCL}, s{sAMTN}
  s_mov_b32 s{sAMT}, s{sAMTN}
  s_atomic_add s{sCL}, s[{sWS}:{sWS+1}], s{sCOFF} glc
L_atd_{u}:""")
        else:
            g(f"""  s_mov_b32 s{sCL}, 1
  s_atomic_add s{sCL}, s[{sWS}:{sWS+1}], s{sCOFF} glc""")
        if not WJIT: g(f"  s_waitcnt vmcnt({kwait})")
        g(f"""  s_branch L_mf_{u}
L_st_{u}:
  s_waitcnt vmcnt({kwait})""")
        claim(g)
        g(f"L_mf_{u}:")
    else:
        g(f"  s_waitcnt vmcnt({kwait})")
    if load is not None and not WDYN: claim(g)
    for j in range(8):
        c="0" if j==0 else f"v[{vS}:{vS+3}]"
        g(f"  v_mfma_f32_16x16x32_bf16 v[{vS}:{vS+3}], a[{aK[b]+4*j}:{aK[b]+4*j+3}], a[{aQ+4*j}:{aQ+4*j+3}], {c}")
    if load is not None:
        decode(g,u)
        g(f"  s_mov_b32 s{sPHB[load]}, s{sPH}")
        emit_k_loads(g,load,pol)
        if vearly: emit_v_loads(g,load,pol)
    else:
        g("  s_nop 7")
    g(f"""
  v_max3_f32 v{t}, v{vS}, v{vS+1}, v{vS+2}
  v_max_f32 v{t}, v{t}, v{vS+3}
  v_mov_b32 v{t+1}, v{t}
  s_nop 1
  v_permlane16_swap_b32 v{t}, v{t+1}
  v_max_f32 v{t}, v{t}, v{t+1}
  v_mov_b32 v{t+1}, v{t}
  s_nop 1
  v_permlane32_swap_b32 v{t}, v{t+1}
  v_max_f32 v{t}, v{t}, v{t+1}
  v_cmp_gt_f32 vcc, v{t}, v{vM}
  s_cbranch_vccnz L_rare_{u}
L_back_{u}:
  v_fma_f32 v{t+2}, v{vS}, s{sC}, -v{vMC}
  v_fma_f32 v{t+3}, v{vS+1}, s{sC}, -v{vMC}
  v_fma_f32 v{t+4}, v{vS+2}, s{sC}, -v{vMC}
  v_fma_f32 v{t+5}, v{vS+3}, s{sC}, -v{vMC}
  v_exp_f32 v{t+2}, v{t+2}
  v_exp_f32 v{t+3}, v{t+3}
  v_exp_f32 v{t+4}, v{t+4}
  v_exp_f32 v{t+5}, v{t+5}
  v_add_f32 v{t+6}, v{t+2}, v{t+3}
  v_cvt_pk_bf16_f32 v{vP}, v{t+2}, v{t+3}
  v_add_f32 v{t+7}, v{t+4}, v{t+5}
  v_cvt_pk_bf16_f32 v{vP+1}, v{t+4}, v{t+5}
  v_add_f32 v{t+6}, v{t+6}, v{t+7}
  v_mov_b32 v{vP+2}, v{vP}
  v_mov_b32 v{vP+3}, v{vP+1}
  v_add_f32 v{vL}, v{vL}, v{t+6}
  s_nop 0
  v_permlane16_swap_b32 v{vP}, v{vP+2}
  v_permlane16_swap_b32 v{vP+1}, v{vP+3}""")
    if vwait is not None: g(f"  s_waitcnt vmcnt({vwait})")
    for t2 in range(2):
        R=[vV[b]+4*(4*t2+rr) for rr in range(4)]
        for dw in range(4):
            g(f"  v_perm_b32 v{vB+4*dw}, v{R[1]+dw}, v{R[0]+dw}, s{sSLO}")
            g(f"  v_perm_b32 v{vB+4*dw+1}, v{R[3]+dw}, v{R[2]+dw}, s{sSLO}")
            g(f"  v_perm_b32 v{vB+4*dw+2}, v{R[1]+dw}, v{R[0]+dw}, s{sSHI}")
            g(f"  v_perm_b32 v{vB+4*dw+3}, v{R[3]+dw}, v{R[2]+dw}, s{sSHI}")
        for jj in range(8):
            a=vACC+4*jj
            g(f"  v_mfma_f32_4x4x4_16b_bf16 v[{a}:{a+3}], v[{vP+2*t2}:{vP+2*t2+1}], v[{vB+2*jj}:{vB+2*jj+1}], v[{a}:{a+3}]")
    if load is not None and not vearly: emit_v_loads(g,load,pol)

def rare(g,u):
    t=vT
    g(f"""
L_rare_{u}:
  v_max_f32 v{t+1}, v{t}, v{vM}
  v_sub_f32 v{t+2}, v{vM}, v{t+1}
  v_mul_f32 v{t+2}, s{sC}, v{t+2}
  v_exp_f32 v{t+2}, v{t+2}
  v_mov_b32 v{vM}, v{t+1}
  v_mul_f32 v{vMC}, s{sC}, v{t+1}
  v_mul_f32 v{vL}, v{vL}, v{t+2}
  s_nop 0
  v_mov_b32_dpp v{t+3}, v{t+2} quad_perm:[0,0,2,2] row_mask:0xf bank_mask:0xf
  v_mov_b32_dpp v{t+4}, v{t+2} quad_perm:[1,1,3,3] row_mask:0xf bank_mask:0xf
""")
    for jj in range(8):
        g(f"  v_mul_f32 v{vACC+4*jj}, v{vACC+4*jj}, v{t+3}")
        g(f"  v_mul_f32 v{vACC+4*jj+1}, v{vACC+4*jj+1}, v{t+4}")
    g(f"  s_branch L_back_{u}")

def phase_check(g,ret,deep=False):
    src = sPHB[ret] if deep else sPH
    g(f"""
  s_mov_b32 s{sTGT}, s{src}
  s_cmp_eq_u32 s{sTGT}, s{sCPH}
  s_mov_b32 s{sRET}, {ret}
  s_cbranch_scc0 L_flush""")

def reset_state(g):
    g(f"""
  v_mov_b32 v{vM}, 0xff800000
  v_mov_b32 v{vMC}, 0xff800000
  v_mov_b32 v{vL}, 0""")
    for r in range(32): g(f"  v_mov_b32 v{vACC+r}, 0")

def read_q(g):
    t=vT
    g(f"""
  v_and_b32 v{t}, 1, v{vLANE}
  s_cmp_eq_u32 s{sCPH}, 2
  s_cselect_b32 s{sTMP}, 512, 0
  v_mul_u32_u24 v{t}, s{sTMP}, v{t}
  s_lshl_b32 s{sTMP}, s{sCPH}, 9
  s_add_u32 s{sTMP}, s{sTMP}, {L_QC}
  v_add_u32 v{t}, s{sTMP}, v{t}
  v_lshrrev_b32 v{t+1}, 4, v{vLANE}
  v_lshl_add_u32 v{t}, v{t+1}, 4, v{t}
""")
    for j in range(8):
        g(f"  ds_read_b128 a[{aQ+4*j}:{aQ+4*j+3}], v{t} offset:{j*64}")
    g("  s_waitcnt lgkmcnt(0)")

def flush(g,o):
    h=G(); G1.emit_flush(h,o,0)
    txt=h.text()
    cut="  ; destination indices:"
    txt=txt[:txt.index(cut)].replace("L_flush_b0","L_flush").replace("L_nomerge_b0","L_nomerge")
    if opt(o,'bpre',False):
        hp=G(); G1._role_pre(hp,1,sW,72)
        head="L_flush:\n  s_nop 4\n"
        assert head in txt
        txt=txt.replace(head,head+f"  s_mov_b32 s{sMRG}, 0\n  s_cmp_eq_u32 s{sCPH}, 2\n  s_cbranch_scc0 L_nobpre\n"+hp.text()+"L_nobpre:\n")
    g(txt)
    t=vT; A=vB; D=vACC
    g(f"""
  s_lshl_b32 s{sTMP}, s{sCPH}, 6
  s_add_u32 s{sTMP}, s{sTMP}, {L_ST}
  v_mov_b32 v20, s{sTMP}
  s_lshl_b32 s{sTMP}, s{sCPH}, 13
  s_add_u32 s{sTMP}, s{sTMP}, {L_FL}
  v_lshlrev_b32 v21, 4, v{vLANE}
  v_add_u32 v22, s{sTMP}, v21""")
    for w in range(4): g(f"  ds_read_b128 v[{A+4*w}:{A+4*w+3}], v20 offset:{16*w}")
    for w in range(4): g(f"  ds_read_b128 v[{D+4*w}:{D+4*w+3}], v22 offset:{2048*w}")
    for w in range(4): g(f"  ds_read_b128 v[{D+16+4*w}:{D+16+4*w+3}], v22 offset:{2048*w+1024}")
    g(f"""
  s_and_b32 s{sTMP+2}, s{sG}, 7
  s_lshl_b32 s{sTMP+2}, s{sTMP+2}, 1          ; hq0
  s_lshr_b32 s{sTMP+3}, s{sG}, 3              ; b
  s_cmp_eq_u32 s{sCPH}, 2
  s_cselect_b32 s{sTMP+4}, 0, 16              ; p*16
  s_cselect_b32 s{sTMP+5}, 0, s{sCPH}
  s_add_u32 s{sTMP+2}, s{sTMP+2}, s{sTMP+4}
  s_add_u32 s{sTMP+2}, s{sTMP+2}, s{sTMP+5}   ; p*16+hq
  s_lshl_b32 s{sTMP+2}, s{sTMP+2}, 2
  s_add_u32 s{sTMP+2}, s{sTMP+2}, s{sTMP+3}   ; *4 + b
  s_lshl_b32 s{sTMP+2}, s{sTMP+2}, 3
  s_add_u32 s{sTMP+2}, s{sTMP+2}, s{sJ}
  s_lshl_b32 s{sTMP}, s{sTMP+2}, 10
  s_add_u32 s{sTMP}, s{sTMP}, {WS_PART}
  v_add_u32 v21, s{sTMP}, v21
  s_lshl_b32 s{sTMP}, s{sTMP+2}, 4
  s_add_u32 s{sTMP}, s{sTMP}, {WS_STAT}
  v_mov_b32 v23, s{sTMP}
  v_mov_b32 v{vX}, s{sTB}
  s_waitcnt lgkmcnt(8)
  v_max3_f32 v16, v{A}, v{A+4}, v{A+8}
  v_max3_f32 v17, v{A+2}, v{A+6}, v{A+10}
  v_max_f32 v16, v16, v{A+12}                 ; M0
  v_max_f32 v17, v17, v{A+14}                 ; M1""")
    for w in range(4): g(f"  v_sub_f32 v{A+4*w}, v{A+4*w}, v16\n  v_sub_f32 v{A+4*w+2}, v{A+4*w+2}, v17")
    for w in range(4): g(f"  v_exp_f32 v{A+4*w}, v{A+4*w}\n  v_exp_f32 v{A+4*w+2}, v{A+4*w+2}")
    g(f"""  s_nop 0
  v_mul_f32 v18, v{A}, v{A+1}
  v_mul_f32 v19, v{A+2}, v{A+3}""")
    for w in range(1,4): g(f"  v_fmac_f32 v18, v{A+4*w}, v{A+4*w+1}\n  v_fmac_f32 v19, v{A+4*w+2}, v{A+4*w+3}")
    g("  s_waitcnt lgkmcnt(4)")
    for k in range(4): g(f"  v_mul_f32 v{8+k}, v{A}, v{D+k}")
    for w in range(1,4):
        for k in range(4): g(f"  v_fmac_f32 v{8+k}, v{A+4*w}, v{D+4*w+k}")
    tag_embed(g,[8,9,10,11],vX,sTMP)
    g(f"""
  global_store_dwordx4 v21, v[8:11], s[{sWS}:{sWS+1}] sc1
  s_mov_b32 s{sMRG}, 4
  s_cmp_eq_u32 s{sCPH}, 2
  s_cbranch_scc0 L_m_one
  s_waitcnt lgkmcnt(0)""")
    for k in range(4): g(f"  v_mul_f32 v{12+k}, v{A+2}, v{D+16+k}")
    for w in range(1,4):
        for k in range(4): g(f"  v_fmac_f32 v{12+k}, v{A+4*w+2}, v{D+16+4*w+k}")
    tag_embed(g,[12,13,14,15],vX,sTMP)
    g(f"""
  v_add_u32 v21, 32768, v21
  global_store_dwordx4 v21, v[12:15], s[{sWS}:{sWS+1}] sc1
  v_mov_b32 v{D+4}, v17
  v_mov_b32 v{D+5}, s{sT}
  v_mov_b32 v{D+6}, v19
  v_mov_b32 v{D+7}, s{sT}
  s_mov_b64 exec, 1
  global_store_dwordx4 v23, v[{D+4}:{D+7}], s[{sWS}:{sWS+1}] offset:512 sc1
  s_mov_b64 exec, -1
L_m_one:
  v_mov_b32 v{D}, v16
  v_mov_b32 v{D+1}, s{sT}
  v_mov_b32 v{D+2}, v18
  v_mov_b32 v{D+3}, s{sT}
  s_mov_b64 exec, 1
  global_store_dwordx4 v23, v[{D}:{D+3}], s[{sWS}:{sWS+1}] sc1
  s_mov_b64 exec, -1
  s_waitcnt lgkmcnt(0)
L_nomerge:
  s_add_u32 s{sCPH}, s{sCPH}, 1
  s_cmp_eq_u32 s{sCPH}, 3
  s_cbranch_scc1 L_tail
  s_nop 0""")
    reset_state(g)
    g(f"""
  s_cmp_lt_u32 s{sCPH}, s{sTGT}
  s_cbranch_scc1 L_flush""")
    lds_wait_flag(g,QFLAG,'qf')
    read_q(g)
    g(f"""
  s_cmp_eq_u32 s{sRET}, 0
  s_cbranch_scc1 L_body_b0
  s_branch L_body_b1""")

QFLAG=L_CNT+20
QRDY=L_CNT+24
XRDY=L_CNT+28
HELPER=False
NOQ=False
def lds_wait_flag(g,addr,u,fail='L_fail'):
    g(f"""
  v_mov_b32 v13, {addr}
  s_mov_b32 s{sTMP+2}, 0
L_fw_{u}:
  ds_read_b32 v12, v13
  s_waitcnt lgkmcnt(0)
  v_readfirstlane_b32 s{sTMP}, v12
  s_nop 0
  s_cmp_eq_u32 s{sTMP}, 1
  s_cbranch_scc1 L_fwok_{u}""")
    spin_guard(g,sTMP+2,fail,limit=2000000)
    g(f"  s_branch L_fw_{u}\nL_fwok_{u}:")
def qgather2(g,o):
    NS=opt(o,'npoll',6); R0=8
    g(f"""
  s_lshl_b32 s44, s{sG}, 11           ; 2g*1024
  s_add_u32 s44, s44, {WS_QG}
  v_lshlrev_b32 v1, 4, v0
  v_add_u32 v1, s44, v1               ; A vectors (p=0)
  v_add_u32 v2, 0x10000, v1           ; B vectors (p=1)
  v_lshlrev_b32 v3, 3, v0
  v_add_u32 v3, {L_QC}, v3
  s_mov_b32 s45, 0""")
    for i in range(NS):
        g(f"  global_load_dwordx4 v[{R0+4*i}:{R0+4*i+3}], v2, s[{sWS}:{sWS+1}] sc1")
        if i<NS-1: g(f"  s_sleep {opt(o,'pollgap',2)}")
    g("L_qg_loop:")
    for i in range(NS):
        r=R0+4*i
        g(f"""
  s_waitcnt vmcnt({NS-1})
  v_xor_b32 v4, s{sT}, v{r+1}
  v_xor_b32 v5, s{sT}, v{r+3}
  v_or_b32 v4, v4, v5
  v_cmp_ne_u32 vcc, 0, v4
  s_cbranch_vccz L_qg_ok{i}
  global_load_dwordx4 v[{r}:{r+3}], v2, s[{sWS}:{sWS+1}] sc1""")
    spin_guard(g,45,"L_fail_aux")
    g("  s_branch L_qg_loop")
    for i in range(NS):
        r=R0+4*i
        g(f"""
L_qg_ok{i}:
  v_mov_b32 v{r+1}, v{r+2}
  ds_write_b64 v3, v[{r}:{r+1}]
  s_branch L_qg_first""")
    g("L_qg_first:")
    stamp(g,3)
    if HELPER: g(f"  s_waitcnt lgkmcnt(0)\n  v_mov_b32 v4, {QRDY}\n  v_mov_b32 v5, 1\n  ds_write_b32 v4, v5")
    elif not NOQ: g("  s_waitcnt lgkmcnt(0)\n  s_barrier")
    g(f"""
  s_waitcnt vmcnt(0)
  s_mov_b32 s45, 0
L_qg2_poll:
  global_load_dwordx4 v[12:15], v2, s[{sWS}:{sWS+1}] offset:1024 sc1
  global_load_dwordx4 v[16:19], v1, s[{sWS}:{sWS+1}] sc1
  global_load_dwordx4 v[20:23], v1, s[{sWS}:{sWS+1}] offset:1024 sc1
  s_waitcnt vmcnt(0)
  v_xor_b32 v13, s{sT}, v13
  v_xor_b32 v15, s{sT}, v15
  v_xor_b32 v17, s{sT}, v17
  v_xor_b32 v19, s{sT}, v19
  v_xor_b32 v21, s{sT}, v21
  v_xor_b32 v23, s{sT}, v23
  v_or3_b32 v13, v13, v15, v17
  v_or3_b32 v13, v13, v19, v21
  v_or_b32 v13, v13, v23
  v_cmp_ne_u32 vcc, 0, v13
  s_cbranch_vccz L_qg2_ok""")
    spin_guard(g,45,"L_fail_aux")
    g(f"""
  s_sleep 8
  s_branch L_qg2_poll
L_qg2_ok:
  v_mov_b32 v13, v14
  v_mov_b32 v17, v18
  v_mov_b32 v21, v22
  ds_write_b64 v3, v[12:13] offset:512
  ds_write_b64 v3, v[16:17] offset:1024
  ds_write_b64 v3, v[20:21] offset:1536
  s_waitcnt lgkmcnt(0)
  v_mov_b32 v4, {QFLAG}
  v_mov_b32 v5, 1
  ds_write_b32 v4, v5""")

def sched(g):
    C=1<<DYN_LC; cpj=(128-DYN_S)//C; assert cpj*C==128-DYN_S and cpj&(cpj-1)==0
    lcpj=cpj.bit_length()-1; nch=8*cpj
    assert nch+8+4 < 128
    sKQ=62
    g(f"""
  s_mul_i32 s{sTMP+8}, s{sG}, {CNT_STRIDE}
  s_add_u32 s{sTMP+8}, s{sTMP+8}, {WS_CNT}
  v_mov_b32 v8, s{sTMP+8}
  v_mov_b32 v9, 1
  v_mov_b32 v10, {CTR}
  s_mov_b32 s{sTMP+9}, 0
L_cinit:
  global_load_dwordx2 v[14:15], v8, s[{sWS}:{sWS+1}] sc1
  s_waitcnt vmcnt(0)
  v_readfirstlane_b32 s{sTMP}, v15
  s_nop 0
  s_cmp_eq_u32 s{sTMP}, s{sT}
  s_cbranch_scc1 L_cinit_ok""")
    spin_guard(g,sTMP+9,"L_fail_aux")
    g(f"""
  s_sleep 8
  s_branch L_cinit
L_cinit_ok:
  s_mov_b32 s{sKQ}, 0
  s_mov_b32 s{sKQ+1}, {256+DYN_S-DYN_LOOK}
L_sched:
  s_mov_b32 s{sTMP+9}, 0
L_sched_poll:
  ds_read_b32 v11, v10
  s_waitcnt lgkmcnt(0)
  v_readfirstlane_b32 s{sTMP}, v11
  s_nop 0
  s_cmp_ge_u32 s{sTMP}, s{sKQ+1}
  s_cbranch_scc1 L_sched_go""")
    spin_guard(g,sTMP+9,"L_fail_aux",limit=1000000)
    g(f"""
  s_sleep {SCHSLEEP}
  s_branch L_sched_poll
L_sched_go:""")
    if SATOM:
        g(f"""  s_mov_b32 s{sTMP}, 1
  s_atomic_add s{sTMP}, s[{sWS}:{sWS+1}], s{sTMP+8} glc
  s_waitcnt lgkmcnt(0)""")
    else:
        g(f"""  s_mov_b64 exec, 1
  global_atomic_add v11, v8, v9, s[{sWS}:{sWS+1}] sc0 sc1
  s_mov_b64 exec, -1
  s_waitcnt vmcnt(0)
  v_readfirstlane_b32 s{sTMP}, v11""")
    g(f"""
  s_lshl_b32 s{sTMP+3}, s{sKQ}, 2
  s_add_u32 s{sTMP+3}, s{sTMP+3}, {L_QUEUE}
  v_mov_b32 v12, s{sTMP+3}
  s_cmp_lt_u32 s{sTMP}, {nch}
  s_cbranch_scc0 L_sched_end
  s_lshr_b32 s{sTMP+1}, s{sTMP}, {lcpj}        ; j'
  s_lshl_b32 s{sTMP+1}, s{sTMP+1}, 7
  s_and_b32 s{sTMP+2}, s{sTMP}, {cpj-1}
  s_lshl_b32 s{sTMP+2}, s{sTMP+2}, {DYN_LC}
  s_add_u32 s{sTMP+1}, s{sTMP+1}, s{sTMP+2}
  s_add_u32 s{sTMP+1}, s{sTMP+1}, {DYN_S}
  v_mov_b32 v13, s{sTMP+1}
  ds_write_b32 v12, v13
  s_add_u32 s{sKQ}, s{sKQ}, 1
  s_add_u32 s{sKQ+1}, s{sKQ+1}, {C}
  s_branch L_sched
L_sched_end:
  v_mov_b32 v13, -2
  ds_write_b32 v12, v13
  ds_write_b32 v12, v13 offset:4
  ds_write_b32 v12, v13 offset:8
  ds_write_b32 v12, v13 offset:12
  ds_write_b32 v12, v13 offset:16
  s_mov_b32 s34, s{sKQ}""")

def tags_from_epoch(g):
    h=G(); load_tags(h,sWS,sT,sTB,sTMP); L=h.text().split('\n')
    L=[l for l in L if 's_load_dword' not in l]
    g("\n".join(L))

def aux_b(g,o):
    sL=61
    g(f"""
  v_mov_b32 v10, {CTR}
  s_mov_b32 s{sTMP+9}, 0
L_bw_poll:
  ds_read_b32 v11, v10
  s_waitcnt lgkmcnt(0)
  v_readfirstlane_b32 s{sTMP}, v11
  s_nop 0
  s_cmp_ge_u32 s{sTMP}, {256+opt(o,'bstart',40)}
  s_cbranch_scc1 L_bw_go""")
    spin_guard(g,sTMP+9,"L_fail_aux",limit=1000000)
    g("""
  s_sleep 16
  s_branch L_bw_poll
L_bw_go:""")
    abl=opt(o,'abl',9)
    if abl>=1: emit_wo_stage(g,'b',which=(1,))
    if abl<2:
        g("  s_waitcnt vmcnt(0)"); return
    g(f"  v_mov_b32 v{vLANE}, v0\n  s_mov_b32 s{sL}, 0\nL_b1:")
    emit_role(g,o,1,'Bx',wreg=sL,fail="L_fail_aux",sleep=opt(o,'bsleep',32),part=1)
    g(f"  s_add_u32 s{sL}, s{sL}, 1\n  s_cmp_lt_u32 s{sL}, 4\n  s_cbranch_scc1 L_b1\n  s_waitcnt vmcnt(0) lgkmcnt(0)\n  s_mov_b32 s{sL}, 0\nL_b2:")
    if abl<3: return
    emit_role(g,o,1,'Bx',wreg=sL,part=2)
    g(f"  s_add_u32 s{sL}, s{sL}, 1\n  s_cmp_lt_u32 s{sL}, 4\n  s_cbranch_scc1 L_b2")
    if not opt(o,'bfinlate',False): aux_bfinal(g,o)

def aux_bfinal(g,o):
    g(f"  v_mov_b32 v{vLANE}, v0")
    emit_final(g,o,'fb',False,lo=112,hi=224,loopw=61,fail="L_fail_aux",done="L_bfin_done",fb=L_FB+256,fsleep=opt(o,'bfsleep',16))
    g("L_bfin_done:")

def wo_touch(g,o):
    g(f"""
  s_load_dwordx2 s[48:49], s[0:1], 32
  s_load_dwordx2 s[52:53], s[0:1], 72
  s_lshr_b32 s44, s2, 2
  s_mul_i32 s44, s44, {64*896}
  v_lshlrev_b32 v2, 12, v0
  s_waitcnt lgkmcnt(0)
  s_and_b32 s49, s49, 0xffff
  s_mov_b32 s50, 3670016
  s_mov_b32 s51, 0x20000
  s_and_b32 s53, s53, 0xffff
  s_mov_b32 s54, 3670016
  s_mov_b32 s55, 0x20000
  s_mov_b64 exec, 0x7fff
  buffer_load_dword v3, v2, s[48:51], s44 offen nt
  buffer_load_dword v4, v2, s[52:55], s44 offen nt
  s_mov_b64 exec, -1
  s_waitcnt vmcnt(0)""")

TBAR=L_CNT+40; WOAF=L_CNT+44
def softbar(g,u):
    g(f"""
  v_mov_b32 v17, {TBAR}
  v_mov_b32 v18, 1
  s_mov_b64 exec, 1
  ds_add_u32 v17, v18
  s_mov_b64 exec, -1
  s_mov_b32 s{sTMP+2}, 0
L_sb_{u}:
  ds_read_b64 v[18:19], v17
  s_waitcnt lgkmcnt(0)
  v_readfirstlane_b32 s{sTMP}, v18
  v_readfirstlane_b32 s{sTMP+1}, v19
  s_nop 0
  s_sub_u32 s{sTMP}, s{sTMP}, 4
  s_sub_u32 s{sTMP+1}, s{sTMP+1}, 1
  s_or_b32 s{sTMP}, s{sTMP}, s{sTMP+1}
  s_cmp_eq_u32 s{sTMP}, 0
  s_cbranch_scc1 L_sbok_{u}""")
    spin_guard(g,sTMP+2,"L_fail",limit=2000000)
    g(f"  s_branch L_sb_{u}\nL_sbok_{u}:")

def lds_init(g,extra):
    if DYN_S<128:
        g(f"""
  v_lshlrev_b32 v76, 2, v0
  v_mov_b32 v77, -1
  v_add_u32 v78, {L_QUEUE}, v76
  ds_write_b32 v78, v77
  ds_write_b32 v78, v77 offset:256""")
    g(f"""
  v_lshlrev_b32 v76, 2, v0
  v_mov_b32 v77, 0
  v_add_u32 v78, {L_CNT}, v76
  s_mov_b64 exec, 0xffff
  ds_write_b32 v78, v77
  s_mov_b64 exec, -1
  s_waitcnt lgkmcnt(0)
  v_mov_b32 v77, {12 if extra else 8}
  v_mov_b32 v78, {CTR}
  ds_write_b32 v78, v77
""")

def helper_wave(g,o):
    pol=o.get('pol','nt')
    g(f"""
L_help:
  v_mov_b32 v0, v{vLANE}""")
    lds_init(g,True)
    g(f"""
  v_and_b32 v{vOK}, 15, v{vLANE}
  v_lshlrev_b32 v{vOK}, 9, v{vOK}
  v_lshrrev_b32 v{vT}, 4, v{vLANE}
  v_lshl_add_u32 v{vOK}, v{vT}, 4, v{vOK}
  v_lshrrev_b32 v{vT}, 5, v{vLANE}
  v_lshlrev_b32 v{vT}, 12, v{vT}
  v_and_b32 v{vOV}, 31, v{vLANE}
  v_lshl_add_u32 v{vOV}, v{vOV}, 4, v{vT}
  s_lshl_b32 s{sTMP+2}, s{sG}, 1""")
    set_srd_head(g,sKB,sVB,sTMP+2)
    g(f"""
  s_lshl_b32 s{sJOFF}, s{sJ}, {13+MAP}
  s_mul_i32 s{sROT}, s2, {ROT}
  s_waitcnt lgkmcnt(0)
  s_barrier
  s_sleep {opt(o,'helpdelay',16)}""")
    for w in range(4):
        g(f"  s_mov_b32 s{sTMP}, {8+w}"); tile_off(g,sTMP,sOFF)
        base=L_X2+w*16384
        for j in range(8):
            g(f"  s_mov_b32 m0, {base+j*1024-j*64}\n  s_nop 0\n  buffer_load_dwordx4 v{vOK}, s[{sK}:{sK+3}], s{sOFF} offen offset:{j*64} {pol} lds")
        for r in range(8):
            g(f"  s_mov_b32 m0, {base+8192+r*1024-r*512}\n  s_nop 0\n  buffer_load_dwordx4 v{vOV}, s[{sV}:{sV+3}], s{sOFF} offen offset:{r*512} {pol} lds")
    g(f"""
  s_waitcnt vmcnt(0)
  v_mov_b32 v4, {XRDY}
  v_mov_b32 v5, 1
  ds_write_b32 v4, v5
  s_waitcnt lgkmcnt(0)
  s_branch L_exit""")

def k_main2(o):
    g=G(); name=KN+'_kernel'
    pol=o.get('pol','nt'); pace=opt(o,'pace',32); extra=opt(o,'extra',False); vearly=opt(o,'vearly',o.get('sched','s2')=='s2')
    g("  s_cmp_ge_u32 s2, 256\n  s_cbranch_scc1 L_exit")
    emit_qproj_ptrs(g)
    if opt(o,'remap',False):
        G1.RQ=82; G1.RO=83
        g(f"""
  s_lshr_b32 s84, s2, 3               ; a
  s_and_b32 s85, s2, 7                ; x
  s_lshr_b32 s82, s84, 1
  s_and_b32 s82, s82, 7
  s_lshl_b32 s82, s82, 4              ; (a'>>1)<<4
  s_lshl_b32 s86, s85, 1
  s_or_b32 s82, s82, s86
  s_and_b32 s86, s84, 1
  s_or_b32 s82, s82, s86
  s_and_b32 s86, s2, 128
  s_or_b32 s82, s82, s86              ; q role = p<<7 | c
  s_lshr_b32 s83, s84, 2
  s_lshl_b32 s83, s83, 3
  s_add_u32 s83, s83, s85
  s_lshl_b32 s83, s83, 2
  s_and_b32 s86, s84, 3
  s_or_b32 s83, s83, s86""")
    else:
        G1.RQ=2; G1.RO=2
    load_ptrs(g)
    G1.stamp_init(g); stamp(g,0)
    g(f"  s_load_dword s{sT}, s[{sWS}:{sWS+1}], {WS_EPOCH}")
    global HELPER
    HELPER=opt(o,'helper',False)
    global NOQ
    NOQ=opt(o,'noqwait',False)
    if HELPER:
        extra=True
        g(f"  s_cmp_eq_u32 s{sW}, 5\n  s_cbranch_scc1 L_help")
    g(f"""
  s_cmp_eq_u32 s{sW}, 4
  s_cbranch_scc1 L_aux
  v_and_b32 v{vOK}, 15, v{vLANE}
  v_lshlrev_b32 v{vOK}, 9, v{vOK}
  v_lshrrev_b32 v{vT}, 4, v{vLANE}
  v_lshl_add_u32 v{vOK}, v{vT}, 4, v{vOK}        ; (l&15)*512 + (l>>4)*16
  v_lshrrev_b32 v{vT}, 5, v{vLANE}
  v_lshlrev_b32 v{vT}, 12, v{vT}
  v_and_b32 v{vOV}, 31, v{vLANE}
  v_lshl_add_u32 v{vOV}, v{vOV}, 4, v{vT}        ; (l>>5)*4096 + (l&31)*16
  s_lshl_b32 s{sTMP+2}, s{sG}, 1
""")
    set_srd_head(g,sKB,sVB,sTMP+2)
    g(f"""
  s_lshl_b32 s{sJOFF}, s{sJ}, {13+MAP}
  s_mul_i32 s{sROT}, s2, {ROT}
  s_mov_b32 s{sTMP}, s{sW}""")
    tile_off(g,sTMP,sOFF)
    g(f"""
  s_lshl_b32 s{sX2}, s{sW}, 14
  s_add_u32 s{sX2}, s{sX2}, {L_X2}
  s_barrier
""")
    def pw(n):
        if pace<n: g(f"  s_waitcnt vmcnt({pace})")
    emit_k_loads(g,0,pol); pw(8); emit_v_loads(g,0,pol)
    g(f"  s_add_u32 s{sTMP}, s{sW}, 4"); tile_off(g,sTMP,sOFF)
    pw(16); emit_k_loads(g,1,pol); pw(24); emit_v_loads(g,1,pol)
    if extra and not HELPER:
        g(f"  s_add_u32 s{sTMP}, s{sW}, 8"); tile_off(g,sTMP,sOFF)
        pw(32)
        for j in range(8):
            g(f"  s_add_u32 m0, s{sX2}, {j*1024-j*64}\n  s_nop 0\n  buffer_load_dwordx4 v{vOK}, s[{sK}:{sK+3}], s{sOFF} offen offset:{j*64} {pol} lds")
        pw(40)
        for r in range(8):
            g(f"  s_add_u32 m0, s{sX2}, {8192+r*1024-r*512}\n  s_nop 0\n  buffer_load_dwordx4 v{vOV}, s[{sV}:{sV+3}], s{sOFF} offen offset:{r*512} {pol} lds")
    g(f"""
  s_mov_b32 s{sPH}, 0
  s_mov_b32 s{sCPH}, 0
  s_mov_b32 s{sDYN}, 0
  s_mov_b32 s{sSUB}, s{sW}
  s_mov_b32 s{sSTL}, 0
  s_mov_b32 s{sPEND}, -1
  s_mov_b32 s{sAMTN}, 1
  s_mov_b32 s{sAMT}, 0
  s_lshl_b32 s{sCOFF}, s{sG}, 2
  s_add_u32 s{sCOFF}, s{sCOFF}, s{sW}
  s_mul_i32 s{sCOFF}, s{sCOFF}, {CNT_STRIDE}
  s_add_u32 s{sCOFF}, s{sCOFF}, {WS_CNT}
  s_mov_b32 s{sC}, {f2h(SCALE)}
  s_mov_b32 s{sSLO}, 0x05040100
  s_mov_b32 s{sSHI}, 0x07060302
""")
    tags_from_epoch(g)
    reset_state(g)
    stamp(g,1)
    if HELPER: lds_wait_flag(g,QRDY,'q')
    elif not opt(o,'noqwait',False): g("  s_barrier")
    read_q(g)
    stamp(g,2)
    deep=o.get('sched','s2')=='s3'
    if deep:
        g(f"  s_mov_b32 s{sPHB[0]}, 0\n  s_mov_b32 s{sPHB[1]}, 0")
        body(g,o,0,'b0',24,24,0); phase_check(g,1,True)
        body(g,o,1,'b1',24,24,1); phase_check(g,0,True)
        g("  s_branch L_body_b0")
    else:
        if extra and HELPER:
            body(g,o,0,'s0',24,24,0)
            body(g,o,1,'s1',24,16,None)
            body(g,o,1,'s2',16,None,None,src='lds')
            phase_check(g,0)
            g("  s_branch L_body_b0")
        elif extra:
            body(g,o,0,'s0',40,40,0)
            body(g,o,1,'s1',40,32,None)
            body(g,o,1,'s2',16,None,None,src='lds')
            phase_check(g,0)
            g("  s_branch L_body_b0")
        else:
            body(g,o,0,'s0',24,24,0)
            body(g,o,1,'s1',24,16,None)
            phase_check(g,0)
            g("  s_branch L_body_b0")
        body(g,o,0,'b0',8,16 if vearly else 8,1,vearly=vearly); phase_check(g,1)
        body(g,o,1,'b1',8,16 if vearly else 8,0,vearly=vearly); phase_check(g,0)
        g("  s_branch L_body_b0")
    us=([] if deep else ['s0','s1']+(['s2'] if extra else []))+['b0','b1']
    for u in us: rare(g,u)
    for u in ([] if deep else ['s0'])+['b0','b1']: newph(g,u); dynpath(g,u)
    flush(g,o)
    g("L_tail:")
    stamp(g,6)
    if opt(o,'tailwait',False): g("  s_waitcnt vmcnt(0)")
    auxb=opt(o,'auxb',False) and DYN_S<128
    if WDYN and opt(o,'endb',False):
        if opt(o,'softbar',False): G1.SOFTBAR=softbar
        stamp(g,7); emit_role(g,o,0,'A',sleep=opt(o,'rsleep',1)); G1.SOFTBAR=None; stamp(g,8); emit_final(g,o,'f',True,fsleep=opt(o,'fsleep',1))
    elif auxb:
        stamp(g,7); emit_role(g,o,0,'A',sleep=opt(o,'rsleep',1)); stamp(g,8); emit_final(g,o,'f',True,lo=0,hi=112,fsleep=opt(o,'fsleep',1))
    else:
        pre=None; preb=None
        if opt(o,'bpre',False):
            preb=72
            g(f"  s_cmp_eq_u32 s{sMRG}, 4\n  s_cbranch_scc1 L_tw4\n  s_waitcnt vmcnt(0)\n  s_branch L_tw\nL_tw4:\n  s_waitcnt vmcnt(4)\nL_tw:")
        if opt(o,'apre',False):
            pre=72; G1._role_pre(g,0,sW,pre)
        emit_role(g,o,1,'B',sleep=opt(o,'rsleep',1),pre=preb); stamp(g,7); emit_role(g,o,0,'A',sleep=opt(o,'rsleep',1),pre=pre); stamp(g,8); emit_final(g,o,'f',True,fsleep=opt(o,'fsleep',1))
    g("  s_waitcnt vmcnt(0)")
    g("  s_branch L_done")
    g(f"""
L_aux:
  v_mov_b32 v0, v{vLANE}
  s_setprio 3""")
    emit_qproj_issue(g)
    if NOQ: lds_init(g,extra); g("  s_waitcnt lgkmcnt(0)")
    b0=opt(o,'b0wait',63)
    if b0<63: g(f"  s_waitcnt vmcnt({b0})")
    g("  s_barrier")
    stamp(g,8)
    tags_from_epoch(g)
    if not HELPER and not NOQ: lds_init(g,extra)
    stamp(g,1)
    emit_qproj_compute(g,'fq',sWS,sT)
    stamp(g,2)
    if opt(o,'qg2',True): qgather2(g,o)
    else:
        emit_qgather(g,'m',sWS,sT,sG,"L_fail_aux")
        stamp(g,3)
        g(f"  v_mov_b32 v4, {QFLAG}\n  v_mov_b32 v5, 1\n  ds_write_b32 v4, v5\n  s_waitcnt lgkmcnt(0)\n  s_barrier")
    if WDYN:
        g(f"""
  s_lshl_b32 s{sTMP}, s{sG}, 2
  s_mul_i32 s{sTMP}, s{sTMP}, {CNT_STRIDE}
  s_add_u32 s{sTMP}, s{sTMP}, {WS_CNT}
  v_and_b32 v72, 3, v0
  v_mul_u32_u24 v72, {CNT_STRIDE}, v72
  v_add_u32 v72, s{sTMP}, v72
  s_cmp_eq_u32 s{sJ}, 0
  s_cbranch_scc0 L_noinit
  v_mov_b32 v74, 0
  v_mov_b32 v75, s{sT}
  s_mov_b64 exec, 0xf
  global_store_dwordx2 v72, v[74:75], s[{sWS}:{sWS+1}] sc1
  s_mov_b64 exec, -1
L_noinit:
  s_mov_b32 s{sTMP+9}, 0
L_cinit:
  global_load_dwordx2 v[74:75], v72, s[{sWS}:{sWS+1}] sc1
  s_waitcnt vmcnt(0)
  v_cmp_ne_u32 vcc, s{sT}, v75
  s_cbranch_vccz L_cinit_ok""")
        spin_guard(g,sTMP+9,"L_fail_aux")
        g(f"""
  s_sleep 8
  s_branch L_cinit
L_cinit_ok:
  v_mov_b32 v4, {CINITF}
  v_mov_b32 v5, 1
  ds_write_b32 v4, v5
  v_mov_b32 v10, {ENDF}
  s_mov_b32 s{sTMP+9}, 0
L_endw:
  ds_read_b32 v11, v10
  s_waitcnt lgkmcnt(0)
  v_readfirstlane_b32 s{sTMP}, v11
  s_nop 0
  s_cmp_ge_u32 s{sTMP}, 1
  s_cbranch_scc1 L_endw_ok""")
        spin_guard(g,sTMP+9,"L_fail_aux",limit=1000000)
        g(f"""
  s_sleep {opt(o,'endsleep',4)}
  s_branch L_endw
L_endw_ok:""")
        if opt(o,'endb',False):
            sL=61
            g(f"  v_mov_b32 v{vLANE}, v0")
            for w in range(4):
                g(f"  s_mov_b32 s{sL}, {w}"); G1._role_pre(g,1,sL,72+16*w)
            emit_wo_stage(g,'m')
            if opt(o,'softbar',False):
                g(f"  v_mov_b32 v{vLANE}, v0\n  s_waitcnt vmcnt(0)\n  v_mov_b32 v4, {WOAF}\n  v_mov_b32 v5, 1\n  ds_write_b32 v4, v5")
            else:
                g(f"  v_mov_b32 v{vLANE}, v0\n  s_waitcnt vmcnt(28)")
            for w in range(4):
                g(f"  s_mov_b32 s{sL}, {w}")
                emit_role(g,o,1,f'Be{w}',wreg=sL,fail="L_fail_aux",sleep=4,part=1,pre=72+16*w)
            g(f"  s_waitcnt vmcnt(0) lgkmcnt(0)\n  s_mov_b32 s{sL}, 0\nL_be2:")
            emit_role(g,o,1,'Be',wreg=sL,part=2)
            g(f"  s_add_u32 s{sL}, s{sL}, 1\n  s_cmp_lt_u32 s{sL}, 4\n  s_cbranch_scc1 L_be2")
        elif opt(o,'wosplit',False):
            emit_wo_stage(g,'m',which=(1,))
            g(f"""
  v_mov_b32 v10, {ENDF}
  s_mov_b32 s{sTMP+9}, 0
L_endw4:
  ds_read_b32 v11, v10
  s_waitcnt lgkmcnt(0)
  v_readfirstlane_b32 s{sTMP}, v11
  s_nop 0
  s_cmp_ge_u32 s{sTMP}, {opt(o,'wosplitn',4)}
  s_cbranch_scc1 L_endw4_ok""")
            spin_guard(g,sTMP+9,"L_fail_aux",limit=1000000)
            g("  s_sleep 1\n  s_branch L_endw4\nL_endw4_ok:")
            emit_wo_stage(g,'n',which=(0,))
        else:
            emit_wo_stage(g,'m')
    elif DYN_S<128:
        g(f"""
  s_cmp_eq_u32 s{sJ}, 0
  s_cbranch_scc0 L_noinit
  s_mul_i32 s{sTMP}, s{sG}, {CNT_STRIDE}
  s_add_u32 s{sTMP}, s{sTMP}, {WS_CNT}
  v_mov_b32 v72, s{sTMP}
  v_mov_b32 v74, 0
  v_mov_b32 v75, s{sT}
  s_mov_b64 exec, 1
  global_store_dwordx2 v72, v[74:75], s[{sWS}:{sWS+1}] sc1
  s_mov_b64 exec, -1
L_noinit:""")
    wolate=opt(o,'wolate',False) and DYN_S<128
    if WDYN: pass
    elif auxb:
        aux_b(g,o)
        sched(g)
        emit_wo_stage(g,'m',which=(0,))
        if opt(o,'bfinlate',False) and opt(o,'abl',9)>=4: aux_bfinal(g,o)
    else:
        if opt(o,'wotouch',False): wo_touch(g,o)
        if not wolate: emit_wo_stage(g,'m')
        if DYN_S<128: sched(g)
        if wolate and not opt(o,'nowo',False): emit_wo_stage(g,'m')
    g(f"""
  s_waitcnt vmcnt(0) lgkmcnt(0)
  s_branch L_done
L_fail_aux:
  v_mov_b32 v24, 0xdeae
  v_mov_b32 v25, 12
  s_mov_b64 exec, 1
  global_store_dword v25, v24, s[{sDBG}:{sDBG+1}]
  s_mov_b64 exec, -1
""")
    if HELPER:
        g("  s_branch L_done")
        helper_wave(g,o)
    if opt(o,'dbgst',False):
        h=G(); fail_and_done(h,name,False); t=h.text()
        extra_code=f"""L_done:
  s_memrealtime s[80:81]
  s_waitcnt lgkmcnt(0)
  s_mov_b32 s73, s80
  s_cmp_eq_u32 s{sW}, 0
  s_cbranch_scc0 L_exit
  s_not_b32 s80, s64
  v_mov_b32 v24, 0
  v_mov_b32 v25, s80
  s_mov_b64 exec, 1
  global_atomic_umax v24, v25, s[{sDBG}:{sDBG+1}] sc1
"""
        for k,slot in ((2,1),(3,2),(4,3),(5,4),(9,5)):
            extra_code+=f"  v_mov_b32 v25, s{64+k}\n  global_atomic_umax v24, v25, s[{sDBG}:{sDBG+1}] offset:{4*slot} sc1\n"
            extra_code+=f"  s_sub_u32 s80, s{64+k}, s64\n  v_mov_b32 v26, s80\n  global_atomic_add v24, v26, s[{sDBG}:{sDBG+1}] offset:{4*(slot+7)} sc1\n"
        extra_code+="  s_waitcnt vmcnt(0)\n  s_mov_b64 exec, -1\n"
        t=t.replace("L_done:\n",extra_code)
        g(t)
    else:
        fail_and_done(g,name,True)
    lds = L_X2+65536 if extra else (G1.L_WO+32768 if G1.WAL else LDS_SIZE)
    assert not (extra and G1.WAL)
    return khead(name)+uniq(g.text(),'_m'), kd(name,NARCH,NACC), name, lds

DOC='; ---------------------------------------------------------------------------------------------------------------\n; ---------------------------------------------------------------------------------------------------------------\n'
def build2(o):
    global MAP, DYN_S, DYN_LC, DYN_LOOK, SATOM, SCHSLEEP
    SATOM=opt(o,'satom',False); SCHSLEEP=opt(o,'schsleep',2)
    global WDYN
    WDYN=opt(o,'wdyn',False)
    global WJIT, STEAL
    WJIT=opt(o,'wjit',False); STEAL=opt(o,'steal',0)
    global PAIRUP
    PAIRUP=opt(o,'pairup',0)
    assert not (PAIRUP and STEAL)
    DYN_S=opt(o,'dyns',128); DYN_LC=opt(o,'dynlc',2); DYN_LOOK=opt(o,'look',6)
    MAP=opt(o,'map',7)
    global ROT
    ROT=opt(o,'rot',0)
    G1.STAMPS=opt(o,'stamps',False); G1.TAILST=bool(o.get('tailst')); G1.WQPOL=o.get('wqpol','nt'); G1.WOPOL=o.get('wopol','nt'); G1.WQTEST=0; G1.WAL=opt(o,'wal',False); G1.VSKEW=opt(o,'vskew',0); G1.WQROT=opt(o,'wqrot',0)
    k=k_main2(o)
    src=HEADER+f"; @launch grid=(256,1,1) block=({384 if HELPER else 320},1,1) lds={k[3]}"+'\n'+DOC+'.amdgcn_target "amdgcn-amd-amdhsa--gfx950"\n.text\n'
    src+=k[0]+'.section .rodata,"a"\n'+k[1]
    if opt(o,'meta',False):
        src+=".amdgpu_metadata\n---\namdhsa.version: [1, 2]\namdhsa.kernels:\n"
        src+=f"  - .name: {k[2]}\n    .symbol: {k[2]}.kd\n    .kernarg_segment_size: 104\n    .kernarg_segment_align: 8\n    .group_segment_fixed_size: 0\n    .private_segment_fixed_size: 0\n    .wavefront_size: 64\n    .sgpr_count: 96\n    .vgpr_count: 256\n    .max_flat_workgroup_size: 384\n    .args:\n      - {{.name: kernargs, .size: 104, .offset: 0, .value_kind: by_value}}\n"
        src+="...\n.end_amdgpu_metadata\n"
    return src
if __name__=='__main__':
    out=sys.argv[1]; o=dict(a.split('=',1) for a in sys.argv[2:])
    open(out,'w').write(build2(o))
```

```python
import sys, struct, math
KN='concat_heads__gqa_block_cached__mha_block_cached__decode'
def f2h(x): return "0x%08x"%struct.unpack('<I',struct.pack('<f',x))[0]

WS_EPOCH=0x0
WS_QG=0x1000
WS_STAT=0x22000
WS_PART=0x40000
WS_Y=0x140000
WS_CNT=0x240000
CNT_STRIDE=4352
WS_STAMP=0x300000
WS_SIZE=0x400000
L_WST=0x0000
L_QC=0x7000
L_FL=0x7800
L_ST=0xD800
L_CNT=0xD900
L_QUEUE=0xDA00
L_OB=0xDC00
L_FB=0xE000
LDS_SIZE=0xE200
SCALE=math.log2(math.e)/16.0

class G:
    def __init__(s): s.L=[]
    def __call__(s,txt):
        for l in txt.strip('\n').split('\n'): s.L.append(l)
    def text(s): return "\n".join(s.L)+"\n"

def opt(o,k,d):
    v=o.get(k,d)
    return type(d)(v) if not isinstance(d,bool) else (str(v).lower() in('1','true','yes'))

def load_tags(g, sWS, sT, sTB, tmp):
    g(f"""
  s_load_dword s{sT}, s[{sWS}:{sWS+1}], {WS_EPOCH}
  s_waitcnt lgkmcnt(0)
  s_add_u32 s{sT}, s{sT}, 1
  s_and_b32 s{tmp}, s{sT}, 0xff
  s_add_u32 s{sTB}, s{tmp}, 0x35
  s_and_b32 s{sTB}, s{sTB}, 0xff
  s_lshl_b32 s{sTB}, s{sTB}, 8
  s_or_b32 s{sTB}, s{sTB}, s{tmp}
  s_add_u32 s{tmp+1}, s{tmp}, 0x6b
  s_and_b32 s{tmp+1}, s{tmp+1}, 0xff
  s_lshl_b32 s{tmp+1}, s{tmp+1}, 16
  s_or_b32 s{sTB}, s{sTB}, s{tmp+1}
  s_add_u32 s{tmp+1}, s{tmp}, 0xa1
  s_lshl_b32 s{tmp+1}, s{tmp+1}, 24
  s_or_b32 s{sTB}, s{sTB}, s{tmp+1}
""")

STAMPS=False
WAL=False; L_WO=0xE200
SOFTBAR=None
RQ=2; RO=2
TAILST=False
WQPOL='nt'
WOPOL='nt'
WQTEST=0
WQROT=0
sST=64
def stamp(g,idx,cond_phase=False):
    if not STAMPS: return
    g(f"  s_memrealtime s[80:81]\n  s_waitcnt lgkmcnt(0)\n  s_mov_b32 s{sST+idx}, s80")
def stamp_init(g):
    if not STAMPS: return
    for i in range(16): g(f"  s_mov_b32 s{sST+i}, 0")
def stamp_write(g,nwaves=5):
    if not STAMPS: return
    g(f"""
  s_getreg_b32 s{sST+15}, hwreg(HW_REG_XCC_ID)
  s_mul_i32 s80, s2, {nwaves}
  s_add_u32 s80, s80, s{sW}
  s_lshl_b32 s80, s80, 6
  s_add_u32 s80, s80, {WS_STAMP}
  v_mov_b32 v25, s80""")
    for q in range(4):
        for i in range(4): g(f"  v_mov_b32 v{28+i}, s{sST+4*q+i}")
        g(f"  s_mov_b64 exec, 1\n  global_store_dwordx4 v25, v[28:31], s[{sWS}:{sWS+1}] offset:{16*q}\n  s_mov_b64 exec, -1\n  s_nop 1")
    g("  s_waitcnt vmcnt(0)")

def spin_guard(g, sCnt, lbl_fail, limit=200000):
    g(f"""
  s_add_u32 s{sCnt}, s{sCnt}, 1
  s_cmp_gt_u32 s{sCnt}, {limit}
  s_cbranch_scc1 {lbl_fail}
""")

def emit_qproj_ptrs(g):
    g(f"""
  s_lshr_b32 s44, s2, 7
  s_mul_i32 s45, s44, 40
  s_add_u32 s46, s0, s45
  s_addc_u32 s47, s1, 0
  s_load_dwordx2 s[48:49], s[46:47], 0     ; x
  s_load_dwordx2 s[52:53], s[46:47], 24    ; wq
""")
def emit_qproj(g, u, sWS, sT, lbl):
    emit_qproj_ptrs(g); g("  s_waitcnt lgkmcnt(0)")
    emit_qproj_issue(g); emit_qproj_compute(g,u,sWS,sT)
def emit_qproj_issue(g):
    g(f"""
  v_lshrrev_b32 v1, 2, v0
  v_lshlrev_b32 v1, 13, v1            ; (l>>2)*8192
  v_and_b32 v2, 3, v0
  v_lshlrev_b32 v3, 4, v2             ; (l&3)*16
  v_add_u32 v1, v1, v3
  v_mul_u32_u24 v4, 896, v2           ; (l&3)*896
  v_lshrrev_b32 v5, 4, v0             ; g
  v_lshlrev_b32 v6, 4, v5             ; g*16
  v_add_u32 v4, v4, v6
  s_and_b32 s45, s{RQ}, 127
  s_lshl_b32 s45, s45, 6
  s_and_b32 s49, s49, 0xffff
  s_mov_b32 s50, 3584
  s_mov_b32 s51, 0x20000
  s_and_b32 s53, s53, 0xffff
  s_mov_b32 s54, 3670016
  s_mov_b32 s55, 0x20000
  s_mov_b32 m0, {L_WST}
  s_nop 0
""")
    XA=16
    if WQTEST==1:
        g("  v_lshlrev_b32 v1, 4, v0\n  s_and_b32 s45, s2, 127\n  s_mul_i32 s45, s45, 28672")
    if WQTEST==2:
        g("  v_lshrrev_b32 v1, 5, v0\n  v_lshlrev_b32 v1, 13, v1\n  v_and_b32 v7, 31, v0\n  v_lshl_add_u32 v1, v7, 4, v1\n  s_and_b32 s45, s2, 7\n  s_mul_i32 s45, s45, 458752\n  s_lshr_b32 s44, s2, 3\n  s_and_b32 s44, s44, 15\n  s_lshl_b32 s44, s44, 9\n  s_add_u32 s45, s45, s44")
    for s_ in range(14):
        g(f"  buffer_load_dwordx4 v[{XA+4*s_}:{XA+4*s_+3}], v4, s[48:51], 0 offen offset:{s_*64}")
    if WQROT:
        g(f"""  s_mul_i32 s56, s2, {WQROT}
  s_mul_hi_u32 s57, s56, 0x9249250
  s_mul_i32 s57, s57, 28
  s_sub_u32 s56, s56, s57
  s_cmp_ge_u32 s56, 28
  s_cselect_b32 s57, 28, 0
  s_sub_u32 s56, s56, s57""")
        for ld in range(28):
            g(f"""  s_lshl_b32 s57, s56, 17
  s_add_u32 s57, s57, s45
  s_lshl_b32 s58, s56, 10
  s_add_u32 m0, s58, {L_WST}
  s_add_u32 s56, s56, 1
  buffer_load_dwordx4 v1, s[52:55], s57 offen {WQPOL} lds
  s_cmp_eq_u32 s56, 28
  s_cselect_b32 s56, 0, s56""")
    else:
      for ld in range(28):
        g(f"  buffer_load_dwordx4 v1, s[52:55], s45 offen {WQPOL} lds")
        if ld<27:
            g(f"  s_add_u32 s45, s45, {[16*8192,1024,2*8192][WQTEST]}\n  s_add_u32 m0, m0, 1024\n  s_nop 0")
    stamp(g,7)
def emit_qproj_compute(g,u,sWS,sT):
    XA=16
    g(f"""
  v_lshrrev_b32 v6, 2, v0
  v_and_b32 v6, 3, v6
  v_lshl_add_u32 v6, v5, 3, v6        ; 8g + r
  v_lshlrev_b32 v6, 6, v6
  v_lshl_add_u32 v6, v2, 3, v6
  v_add_u32 v6, {L_WST}, v6
  s_waitcnt vmcnt(0)
""")
    stamp(g,4)
    TB=72
    first=True
    for batch in range(2):
        for ss in range(7):
            s=batch*7+ss
            for cb in range(2):
                r=TB+8*ss+4*cb
                g(f"  ds_read_b64_tr_b16 v[{r}:{r+1}], v6 offset:{s*2048+cb*32}")
                g(f"  ds_read_b64_tr_b16 v[{r+2}:{r+3}], v6 offset:{s*2048+cb*32+256}")
        g("  s_waitcnt lgkmcnt(0)")
        for ss in range(7):
            s=batch*7+ss
            for cb in range(2):
                r=TB+8*ss+4*cb; d=8+4*cb
                c = "0" if s==0 else f"v[{d}:{d+3}]"
                g(f"  v_mfma_f32_16x16x32_bf16 v[{d}:{d+3}], v[{XA+4*s}:{XA+4*s+3}], v[{r}:{r+3}], {c}")
    g(f"""
  s_nop 7
  v_cmp_eq_u32 vcc, 1, v5
  v_cmp_eq_u32 s[56:57], 2, v5
  v_cmp_eq_u32 s[58:59], 3, v5
  s_nop 1
  v_cndmask_b32 v8, v8, v9, vcc
  v_cndmask_b32 v12, v12, v13, vcc
  v_cndmask_b32 v8, v8, v10, s[56:57]
  v_cndmask_b32 v12, v12, v14, s[56:57]
  v_cndmask_b32 v8, v8, v11, s[58:59]
  v_cndmask_b32 v12, v12, v15, s[58:59]
  v_and_b32 v7, 1, v0                 ; parity
  v_cmp_eq_u32 vcc, 0, v7
  v_mov_b32 v9, 0
  v_mov_b32 v13, 0
  s_nop 1
  v_mov_b32_dpp v9, v8 row_shl:1 row_mask:0xf bank_mask:0xf     ; val0[n+1]
  v_mov_b32_dpp v13, v12 row_shr:1 row_mask:0xf bank_mask:0xf   ; val1[n-1]
  s_nop 1
  v_cndmask_b32 v10, v13, v8, vcc
  v_cndmask_b32 v11, v12, v9, vcc
  v_cvt_pk_bf16_f32 v10, v10, v11
  v_mov_b32 v11, s{sT}
  s_lshr_b32 s44, s{RQ}, 7
  s_lshl_b32 s44, s44, 16             ; p*4*16*1024
  s_lshr_b32 s45, s{RQ}, 3
  s_and_b32 s45, s45, 15
  s_lshl_b32 s45, s45, 10             ; hq*1024
  s_add_u32 s44, s44, s45
  s_and_b32 s45, s{RQ}, 7
  s_lshl_b32 s45, s45, 7              ; ds*16*8
  s_add_u32 s44, s44, s45
  s_add_u32 s44, s44, {WS_QG}
  v_lshlrev_b32 v12, 14, v5           ; b*16*1024
  v_lshlrev_b32 v13, 6, v7            ; cb*8*8
  v_add_u32 v12, v12, v13
  v_and_b32 v13, 15, v0
  v_lshrrev_b32 v13, 1, v13
  v_lshl_add_u32 v12, v13, 3, v12
  v_add_u32 v12, s44, v12
  global_store_dwordx2 v12, v[10:11], s[{sWS}:{sWS+1}] sc1
""")

def emit_qgather(g, u, sWS, sT, sG, lblfail):
    g(f"""
  s_lshl_b32 s44, s{sG}, 11           ; 2g*1024
  s_add_u32 s44, s44, {WS_QG}
  v_lshlrev_b32 v1, 4, v0
  v_add_u32 v1, s44, v1               ; A vectors (p=0)
  v_add_u32 v2, 0x10000, v1           ; B vectors (p=1)
  s_mov_b32 s45, 0
L_qg_poll_{u}:
  global_load_dwordx4 v[8:11], v2, s[{sWS}:{sWS+1}] sc1
  global_load_dwordx4 v[12:15], v2, s[{sWS}:{sWS+1}] offset:1024 sc1
  global_load_dwordx4 v[16:19], v1, s[{sWS}:{sWS+1}] sc1
  global_load_dwordx4 v[20:23], v1, s[{sWS}:{sWS+1}] offset:1024 sc1
  s_waitcnt vmcnt(0)
""")
    if STAMPS:
        g(f"  s_add_u32 s{sST+5}, s{sST+5}, 1\n  s_cmp_eq_u32 s{sST+5}, 1\n  s_cbranch_scc0 L_qst_{u}")
        stamp(g,6)
        g(f"L_qst_{u}:")
    g(f"""
  v_xor_b32 v9, s{sT}, v9
  v_xor_b32 v11, s{sT}, v11
  v_xor_b32 v13, s{sT}, v13
  v_xor_b32 v15, s{sT}, v15
  v_xor_b32 v17, s{sT}, v17
  v_xor_b32 v19, s{sT}, v19
  v_xor_b32 v21, s{sT}, v21
  v_xor_b32 v23, s{sT}, v23
  v_or3_b32 v9, v9, v11, v13
  v_or3_b32 v15, v15, v17, v19
  v_or3_b32 v9, v9, v21, v23
  v_or_b32 v9, v9, v15
  v_cmp_ne_u32 vcc, 0, v9
  s_cbranch_vccz L_qg_ok_{u}
""")
    spin_guard(g,45,lblfail)
    g(f"""
  s_sleep 2
  s_branch L_qg_poll_{u}
L_qg_ok_{u}:
  v_lshlrev_b32 v3, 3, v0
  v_add_u32 v3, {L_QC}, v3
  v_mov_b32 v9, v10
  v_mov_b32 v13, v14
  v_mov_b32 v17, v18
  v_mov_b32 v21, v22
  ds_write_b64 v3, v[8:9]
  ds_write_b64 v3, v[12:13] offset:512
  ds_write_b64 v3, v[16:17] offset:1024
  ds_write_b64 v3, v[20:21] offset:1536
""")

def emit_wo_stage_al(g,u,which):
    g(f"""
  s_load_dwordx2 s[48:49], s[0:1], 32
  s_load_dwordx2 s[52:53], s[0:1], 72
  s_lshr_b32 s44, s{RO}, 2               ; h*4+dq
  s_mul_i32 s44, s44, {64*896}
  s_and_b32 s45, s{RO}, 3
  s_lshl_b32 s46, s45, 8
  s_add_u32 s44, s44, s46
  v_lshrrev_b32 v2, 4, v0
  v_mul_u32_u24 v2, 896, v2
  v_and_b32 v3, 15, v0
  v_lshl_add_u32 v4, v3, 4, v2        ; (l>>4)*896 + (l&15)*16
  s_cmp_eq_u32 s45, 3
  s_cselect_b32 s46, 8, 16
  v_cmp_le_u32 vcc, s46, v3
  v_mov_b32 v5, 0x7ffffff0
  s_nop 0
  v_cndmask_b32 v4, v4, v5, vcc
  s_waitcnt lgkmcnt(0)
  s_and_b32 s49, s49, 0xffff
  s_mov_b32 s50, 3670016
  s_mov_b32 s51, 0x20000
  s_and_b32 s53, s53, 0xffff
  s_mov_b32 s54, 3670016
  s_mov_b32 s55, 0x20000
""")
    for ld in range(16):
        if 0 in which: g(f"  s_mov_b32 m0, {L_WO+ld*1024}\n  s_nop 0\n  buffer_load_dwordx4 v4, s[48:51], s44 offen {WOPOL} lds")
        if 1 in which: g(f"  s_mov_b32 m0, {L_WO+16384+ld*1024}\n  s_nop 0\n  buffer_load_dwordx4 v4, s[52:55], s44 offen {WOPOL} lds")
        if ld<15: g(f"  s_add_u32 s44, s44, {4*896}")

def emit_wo_stage(g, u, which=(0,1)):
    if WAL: return emit_wo_stage_al(g,u,which)
    g(f"""
  s_load_dwordx2 s[48:49], s[0:1], 32
  s_load_dwordx2 s[52:53], s[0:1], 72
  s_lshr_b32 s44, s{RO}, 2               ; h*4+dq
  s_mul_i32 s44, s44, {64*896}
  s_and_b32 s45, s{RO}, 3
  s_mul_i32 s45, s45, 224
  s_add_u32 s44, s44, s45
  ; per lane: c = lane ; row = c/14, chunk = c%14
  v_mul_u32_u24 v2, 4682, v0          ; c*4682 >> 16 = c/14 for c<64
  v_lshrrev_b32 v2, 16, v2            ; row
  v_mul_u32_u24 v3, 14, v2
  v_sub_u32 v3, v0, v3                ; chunk
  s_waitcnt lgkmcnt(0)
  s_and_b32 s49, s49, 0xffff
  s_mov_b32 s50, 3670016
  s_mov_b32 s51, 0x20000
  s_and_b32 s53, s53, 0xffff
  s_mov_b32 s54, 3670016
  s_mov_b32 s55, 0x20000
""")
    for ld in range(14):
        g(f"""
  v_mul_u32_u24 v4, 896, v2
  v_lshl_add_u32 v4, v3, 4, v4""")
        if 0 in which: g(f"""  s_mov_b32 m0, {L_WST+ld*1024}
  s_nop 0
  buffer_load_dwordx4 v4, s[48:51], s44 offen {WOPOL} lds""")
        if 1 in which: g(f"""  s_mov_b32 m0, {L_WST+14336+ld*1024}
  s_nop 0
  buffer_load_dwordx4 v4, s[52:55], s44 offen {WOPOL} lds""")
        if ld<13:
            g(f"""
  v_add_u32 v3, 8, v3
  v_add_u32 v2, 4, v2
  v_cmp_le_u32 vcc, 14, v3
  v_subrev_u32 v5, 14, v3
  v_add_u32 v6, 1, v2
  v_cndmask_b32 v3, v3, v5, vcc
  v_cndmask_b32 v2, v2, v6, vcc""")

sW=3; SW_=3; sG=4; sJ=5; sT=6; sTB=7
sK=8
sV=12
sKA=16; sVA=18; sKB=20; sVB=22; sWS=24; sDBG=26; sOUT=28
sOFF=30; sCNT=31; sPH=32; sNXT=33; sKN=34; sTRIG=35; sSKIP=36; sCPH=37
sC=38; sSLO=39; sSHI=40
sTMP=44
sERR=60
vOK=1; vOV=2; vM=3; vMC=4; vL=5; vLANE=6; vX=7
vS=8; vT=12; vP=20; vB=24; vACC=40; vV=[72,104]
NARCH=136
aK=[0,32]; aQ=64
NACC=96

def chunk_table(o):
    tab=o.get('tab','dyn')
    if tab=='static': return 32, []
    if tab=='dyn': return 12, [(8,8),(8,5),(8,3),(8,2),(16,1)]
    a,b=tab.split(':'); lst=[tuple(int(x) for x in t.split('x')) for t in b.split(',')] if b else []
    return int(a), lst

def emit_k_loads(g,buf,pol):
    for j in range(8):
        r=aK[buf]+4*j
        g(f"  buffer_load_dwordx4 a[{r}:{r+3}], v{vOK}, s[{sK}:{sK+3}], s{sOFF} offen offset:{j*64} {pol}")
VSKEW=0
def emit_v_loads(g,buf,pol):
    if VSKEW:
        g(f"  s_add_u32 s84, s{sOFF}, {VSKEW*8192}\n  s_and_b32 s84, s84, 0xfffff\n  s_and_b32 s85, s{sOFF}, 0xfff00000\n  s_or_b32 s84, s84, s85")
        for r8 in range(8):
            r=vV[buf]+4*r8
            g(f"  buffer_load_dwordx4 v[{r}:{r+3}], v{vOV}, s[{sV}:{sV+3}], s84 offen offset:{r8*512} {pol}")
        return
    for r8 in range(8):
        r=vV[buf]+4*r8
        g(f"  buffer_load_dwordx4 v[{r}:{r+3}], v{vOV}, s[{sV}:{sV+3}], s{sOFF} offen offset:{r8*512} {pol}")

def set_srd_head(g, sKp, sVp, sIdx):
    g(f"""
  s_lshl_b32 s{sTMP}, s{sIdx}, 23
  s_lshr_b32 s{sTMP+1}, s{sIdx}, 9
  s_add_u32 s{sK}, s{sKp}, s{sTMP}
  s_addc_u32 s{sK+1}, s{sKp+1}, s{sTMP+1}
  s_and_b32 s{sK+1}, s{sK+1}, 0xffff
  s_add_u32 s{sV}, s{sVp}, s{sTMP}
  s_addc_u32 s{sV+1}, s{sVp+1}, s{sTMP+1}
  s_and_b32 s{sV+1}, s{sV+1}, 0xffff
  s_mov_b32 s{sK+2}, 0x800000
  s_mov_b32 s{sV+2}, 0x800000
  s_mov_b32 s{sK+3}, 0x20000
  s_mov_b32 s{sV+3}, 0x20000
""")

def emit_advance(g,o,u):
    size0,tab=chunk_table(o)
    g(f"""
  s_cmp_eq_u32 s{sPH}, 2
  s_cbranch_scc1 L_adv_dyn_{u}
  s_add_u32 s{sPH}, s{sPH}, 1
  s_mov_b32 s{sNXT}, 1
  s_cmp_eq_u32 s{sPH}, 2
  s_cbranch_scc1 L_adv_p2_{u}
  s_lshl_b32 s{sTMP+2}, s{sG}, 1
  s_add_u32 s{sTMP+2}, s{sTMP+2}, 1
""")
    set_srd_head(g,sKB,sVB,sTMP+2)
    g(f"""
  s_lshl_b32 s{sOFF}, s{sJ}, 20
  s_lshl_b32 s{sTMP}, s{sW}, 18
  s_add_u32 s{sOFF}, s{sOFF}, s{sTMP}
  s_mov_b32 s{sCNT}, 32
  s_branch L_adv_done_{u}
L_adv_p2_{u}:
""")
    set_srd_head(g,sKA,sVA,sG)
    g(f"""
  ; first chunk static: start unit = j*size0, per wave size0 tiles
  s_mul_i32 s{sOFF}, s{sJ}, {size0*64*512}
  s_mul_i32 s{sTMP}, s{sW}, {size0*16*512}
  s_add_u32 s{sOFF}, s{sOFF}, s{sTMP}
  s_mov_b32 s{sCNT}, {size0}
  s_mov_b32 s{sKN}, 1
  s_mov_b32 s{sTRIG}, 3
  s_branch L_adv_done_{u}
L_adv_dyn_{u}:
  s_lshl_b32 s{sTMP}, s{sKN}, 2
  s_add_u32 s{sTMP}, s{sTMP}, {L_QUEUE}
  v_mov_b32 v{vX}, s{sTMP}
  s_mov_b32 s{sTMP+2}, 0
L_adv_poll_{u}:
  ds_read_b32 v{vT}, v{vX}
  s_waitcnt lgkmcnt(0)
  v_readfirstlane_b32 s{sTMP+1}, v{vT}
  s_nop 0
  s_cmp_eq_u32 s{sTMP+1}, -1
  s_cbranch_scc0 L_adv_got_{u}
""")
    spin_guard(g,sTMP+2,"L_fail")
    if STAMPS: g(f"  s_add_u32 s{sST+11}, s{sST+11}, 1")
    g(f"""
  s_sleep 1
  s_branch L_adv_poll_{u}
L_adv_got_{u}:
  s_add_u32 s{sKN}, s{sKN}, 1
  s_cmp_eq_u32 s{sTMP+1}, -2
  s_cbranch_scc1 L_adv_end_{u}
  s_and_b32 s{sCNT}, s{sTMP+1}, 0xff
  s_lshr_b32 s{sOFF}, s{sTMP+1}, 8
  s_lshl_b32 s{sOFF}, s{sOFF}, 15
  s_mul_i32 s{sTMP}, s{sW}, s{sCNT}
  s_lshl_b32 s{sTMP}, s{sTMP}, 13
  s_add_u32 s{sOFF}, s{sOFF}, s{sTMP}
  s_branch L_adv_done_{u}
L_adv_end_{u}:
  s_mov_b32 s{sNXT}, 2
  s_mov_b32 s{sK+2}, 0
  s_mov_b32 s{sV+2}, 0
  s_mov_b32 s{sCNT}, 0x10000
  s_mov_b32 s{sTRIG}, 0
  s_mov_b32 s{sOFF}, 0
L_adv_done_{u}:
""")

def emit_body(g,o,b):
    pol=o.get('pol','nt'); vearly=opt(o,'vearly',False)
    nb=b^1; u=f"b{b}"
    g(f"L_body_{u}:")
    g(f"  s_waitcnt vmcnt(8)")
    for j in range(8):
        c="0" if j==0 else f"v[{vS}:{vS+3}]"
        g(f"  v_mfma_f32_16x16x32_bf16 v[{vS}:{vS+3}], a[{aK[b]+4*j}:{aK[b]+4*j+3}], a[{aQ+4*j}:{aQ+4*j+3}], {c}")
    g(f"""
  s_cmp_eq_u32 s{sSKIP}, 0
  s_cbranch_scc0 L_nokld_{u}
  s_cmp_eq_u32 s{sCNT}, 0
  s_cbranch_scc0 L_kld_{u}""")
    emit_advance(g,o,u)
    g(f"L_kld_{u}:")
    emit_k_loads(g,nb,pol)
    if vearly: emit_v_loads(g,nb,pol)
    g(f"L_nokld_{u}:")
    t=vT
    g(f"""
  s_nop 5
  v_max3_f32 v{t}, v{vS}, v{vS+1}, v{vS+2}
  v_max_f32 v{t}, v{t}, v{vS+3}
  v_mov_b32 v{t+1}, v{t}
  s_nop 1
  v_permlane16_swap_b32 v{t}, v{t+1}
  v_max_f32 v{t}, v{t}, v{t+1}
  v_mov_b32 v{t+1}, v{t}
  s_nop 1
  v_permlane32_swap_b32 v{t}, v{t+1}
  v_max_f32 v{t}, v{t}, v{t+1}
  v_cmp_gt_f32 vcc, v{t}, v{vM}
  s_cbranch_vccnz L_rare_{u}
L_back_{u}:
  v_fma_f32 v{t+2}, v{vS}, s{sC}, -v{vMC}
  v_fma_f32 v{t+3}, v{vS+1}, s{sC}, -v{vMC}
  v_fma_f32 v{t+4}, v{vS+2}, s{sC}, -v{vMC}
  v_fma_f32 v{t+5}, v{vS+3}, s{sC}, -v{vMC}
  v_exp_f32 v{t+2}, v{t+2}
  v_exp_f32 v{t+3}, v{t+3}
  v_exp_f32 v{t+4}, v{t+4}
  v_exp_f32 v{t+5}, v{t+5}
  v_add_f32 v{t+6}, v{t+2}, v{t+3}
  v_cvt_pk_bf16_f32 v{vP}, v{t+2}, v{t+3}
  v_add_f32 v{t+7}, v{t+4}, v{t+5}
  v_cvt_pk_bf16_f32 v{vP+1}, v{t+4}, v{t+5}
  v_add_f32 v{t+6}, v{t+6}, v{t+7}
  v_mov_b32 v{vP+2}, v{vP}
  v_mov_b32 v{vP+3}, v{vP+1}
  v_add_f32 v{vL}, v{vL}, v{t+6}
  s_nop 0
  v_permlane16_swap_b32 v{vP}, v{vP+2}
  v_permlane16_swap_b32 v{vP+1}, v{vP+3}
  s_waitcnt vmcnt({16 if vearly else 8})
""")
    for t2 in range(2):
        R=[vV[b]+4*(4*t2+rr) for rr in range(4)]
        for dw in range(4):
            g(f"  v_perm_b32 v{vB+4*dw}, v{R[1]+dw}, v{R[0]+dw}, s{sSLO}")
            g(f"  v_perm_b32 v{vB+4*dw+1}, v{R[3]+dw}, v{R[2]+dw}, s{sSLO}")
            g(f"  v_perm_b32 v{vB+4*dw+2}, v{R[1]+dw}, v{R[0]+dw}, s{sSHI}")
            g(f"  v_perm_b32 v{vB+4*dw+3}, v{R[3]+dw}, v{R[2]+dw}, s{sSHI}")
        for jj in range(8):
            a=vACC+4*jj
            g(f"  v_mfma_f32_4x4x4_16b_bf16 v[{a}:{a+3}], v[{vP+2*t2}:{vP+2*t2+1}], v[{vB+2*jj}:{vB+2*jj+1}], v[{a}:{a+3}]")
    g(f"""
  s_cmp_eq_u32 s{sSKIP}, 0
  s_cbranch_scc0 L_novld_{u}""")
    if not vearly: emit_v_loads(g,nb,pol)
    g(f"""
  s_add_u32 s{sOFF}, s{sOFF}, 8192
  s_sub_u32 s{sCNT}, s{sCNT}, 1
  s_cmp_lt_u32 s{sCNT}, s{sTRIG}
  s_cbranch_scc0 L_novld_{u}
  v_mov_b32 v{vX}, {L_CNT+12}
  v_mov_b32 v{vT}, s{sKN}
  ds_max_u32 v{vX}, v{vT}
L_novld_{u}:
  s_mov_b32 s{sSKIP}, 0
  s_cmp_eq_u32 s{sNXT}, 0
  s_cbranch_scc0 L_flush_{u}
""")
    if b==1: g("  s_branch L_body_b0")

def emit_rare(g,b):
    u=f"b{b}"; t=vT
    g(f"""
L_rare_{u}:
  v_max_f32 v{t+1}, v{t}, v{vM}
  v_sub_f32 v{t+2}, v{vM}, v{t+1}
  v_mul_f32 v{t+2}, s{sC}, v{t+2}
  v_exp_f32 v{t+2}, v{t+2}
  v_mov_b32 v{vM}, v{t+1}
  v_mul_f32 v{vMC}, s{sC}, v{t+1}
  v_mul_f32 v{vL}, v{vL}, v{t+2}
  s_nop 0
  v_mov_b32_dpp v{t+3}, v{t+2} quad_perm:[0,0,2,2] row_mask:0xf bank_mask:0xf
  v_mov_b32_dpp v{t+4}, v{t+2} quad_perm:[1,1,3,3] row_mask:0xf bank_mask:0xf
""")
    for jj in range(8):
        g(f"  v_mul_f32 v{vACC+4*jj}, v{vACC+4*jj}, v{t+3}")
        g(f"  v_mul_f32 v{vACC+4*jj+1}, v{vACC+4*jj+1}, v{t+4}")
    g(f"  s_branch L_back_{u}")

def tag_embed(g, regs, vTagv, sSel):
    for k,r in enumerate(regs):
        g(f"  s_mov_b32 s{sSel}, {hex(0x07060500|k)}\n  v_perm_b32 v{r}, v{r}, v{vTagv}, s{sSel}")

def emit_flush(g,o,b):
    u=f"b{b}"; t=vT
    g(f"""
L_flush_{u}:
  s_nop 4""")
    if STAMPS:
        g(f"  s_memrealtime s[80:81]\n  s_waitcnt lgkmcnt(0)\n  s_cmp_eq_u32 s{sCPH}, 0\n  s_cselect_b32 s{sST+3}, s80, s{sST+3}\n  s_cmp_eq_u32 s{sCPH}, 1\n  s_cselect_b32 s{sST+4}, s80, s{sST+4}\n  s_cmp_eq_u32 s{sCPH}, 2\n  s_cselect_b32 s{sST+5}, s80, s{sST+5}")
    for jj in range(8):
        a=vACC+4*jj
        g(f"  v_permlane32_swap_b32 v{a}, v{a+1}")
    for jj in range(8):
        a=vACC+4*jj
        g(f"  v_add_f32 v{vB+jj}, v{a}, v{a+1}")
    g(f"""
  v_mov_b32 v{t}, v{vL}
  s_nop 1
  v_permlane16_swap_b32 v{vL}, v{t}
  v_add_f32 v{vL}, v{vL}, v{t}
  v_mov_b32 v{t}, v{vL}
  s_nop 1
  v_permlane32_swap_b32 v{vL}, v{t}
  v_add_f32 v{vL}, v{vL}, v{t}
  s_lshl_b32 s{sTMP}, s{sCPH}, 13
  s_lshl_b32 s{sTMP+1}, s{sW}, 11
  s_add_u32 s{sTMP}, s{sTMP}, s{sTMP+1}
  s_add_u32 s{sTMP}, s{sTMP}, {L_FL}
  v_lshlrev_b32 v{t}, 5, v{vLANE}
  v_add_u32 v{t}, s{sTMP}, v{t}
  ds_write_b128 v{t}, v[{vB}:{vB+3}]
  ds_write_b128 v{t}, v[{vB+4}:{vB+7}] offset:16
  s_lshl_b32 s{sTMP}, s{sCPH}, 6
  s_lshl_b32 s{sTMP+1}, s{sW}, 4
  s_add_u32 s{sTMP}, s{sTMP}, s{sTMP+1}
  s_add_u32 s{sTMP}, s{sTMP}, {L_ST}
  v_and_b32 v{t+1}, 1, v{vLANE}
  v_lshlrev_b32 v{t+1}, 3, v{t+1}
  v_add_u32 v{t+1}, s{sTMP}, v{t+1}
  v_mov_b32 v{t+2}, v{vMC}
  v_mov_b32 v{t+3}, v{vL}
  ds_write_b64 v{t+1}, v[{t+2}:{t+3}]
  s_waitcnt lgkmcnt(0)
  s_lshl_b32 s{sTMP}, s{sCPH}, 2
  s_add_u32 s{sTMP}, s{sTMP}, {L_CNT}
  v_mov_b32 v{t}, s{sTMP}
  v_mov_b32 v{t+1}, 1
  s_mov_b64 exec, 1
  ds_add_rtn_u32 v{t+2}, v{t}, v{t+1}
  s_mov_b64 exec, -1
  s_waitcnt lgkmcnt(0)
  v_readfirstlane_b32 s{sTMP}, v{t+2}
  s_nop 0
  s_cmp_eq_u32 s{sTMP}, 3
  s_cbranch_scc0 L_nomerge_{u}
""")
    g(f"""
  s_and_b32 s{sTMP+2}, s{sG}, 7
  s_lshl_b32 s{sTMP+2}, s{sTMP+2}, 1          ; hq0
  s_lshr_b32 s{sTMP+3}, s{sG}, 3              ; b
  s_cmp_eq_u32 s{sCPH}, 2
  s_cselect_b32 s{sTMP+4}, 0, 16              ; p*16
  s_cselect_b32 s{sTMP+5}, 0, s{sCPH}
  s_cselect_b32 s{sTMP+6}, 2, 1
  s_add_u32 s{sTMP+2}, s{sTMP+2}, s{sTMP+4}
  s_add_u32 s{sTMP+2}, s{sTMP+2}, s{sTMP+5}   ; p*16+hq
  s_lshl_b32 s{sTMP+2}, s{sTMP+2}, 2
  s_add_u32 s{sTMP+2}, s{sTMP+2}, s{sTMP+3}   ; *4 + b
  s_lshl_b32 s{sTMP+2}, s{sTMP+2}, 3
  s_add_u32 s{sTMP+2}, s{sTMP+2}, s{sJ}
  s_mov_b32 s{sTMP+7}, 0                      ; hh
  v_mov_b32 v{vX}, s{sTB}
L_merge_{u}:
  s_lshl_b32 s{sTMP}, s{sCPH}, 6
  s_lshl_b32 s{sTMP+1}, s{sTMP+7}, 3
  s_add_u32 s{sTMP}, s{sTMP}, s{sTMP+1}
  s_add_u32 s{sTMP}, s{sTMP}, {L_ST}
  v_mov_b32 v{t}, s{sTMP}
  ds_read_b64 v[{vB}:{vB+1}], v{t}
  ds_read_b64 v[{vB+2}:{vB+3}], v{t} offset:16
  ds_read_b64 v[{vB+4}:{vB+5}], v{t} offset:32
  ds_read_b64 v[{vB+6}:{vB+7}], v{t} offset:48
  s_lshl_b32 s{sTMP}, s{sCPH}, 13
  s_lshl_b32 s{sTMP+1}, s{sTMP+7}, 10
  s_add_u32 s{sTMP}, s{sTMP}, s{sTMP+1}
  s_add_u32 s{sTMP}, s{sTMP}, {L_FL}
  v_lshlrev_b32 v{t+1}, 4, v{vLANE}
  v_add_u32 v{t+1}, s{sTMP}, v{t+1}
  ds_read_b128 v[{vACC}:{vACC+3}], v{t+1}
  ds_read_b128 v[{vACC+4}:{vACC+7}], v{t+1} offset:2048
  ds_read_b128 v[{vACC+8}:{vACC+11}], v{t+1} offset:4096
  ds_read_b128 v[{vACC+12}:{vACC+15}], v{t+1} offset:6144
  s_waitcnt lgkmcnt(0)
  v_max3_f32 v{t+2}, v{vB}, v{vB+2}, v{vB+4}
  v_max_f32 v{t+2}, v{t+2}, v{vB+6}           ; M
  v_sub_f32 v{vB}, v{vB}, v{t+2}
  v_sub_f32 v{vB+2}, v{vB+2}, v{t+2}
  v_sub_f32 v{vB+4}, v{vB+4}, v{t+2}
  v_sub_f32 v{vB+6}, v{vB+6}, v{t+2}
  v_exp_f32 v{vB}, v{vB}
  v_exp_f32 v{vB+2}, v{vB+2}
  v_exp_f32 v{vB+4}, v{vB+4}
  v_exp_f32 v{vB+6}, v{vB+6}
  s_nop 0
  v_mul_f32 v{t+3}, v{vB}, v{vB+1}
  v_fmac_f32 v{t+3}, v{vB+2}, v{vB+3}
  v_fmac_f32 v{t+3}, v{vB+4}, v{vB+5}
  v_fmac_f32 v{t+3}, v{vB+6}, v{vB+7}         ; L
""")
    for k in range(4):
        g(f"""  v_mul_f32 v{vB+8+k}, v{vB}, v{vACC+k}
  v_fmac_f32 v{vB+8+k}, v{vB+2}, v{vACC+4+k}
  v_fmac_f32 v{vB+8+k}, v{vB+4}, v{vACC+8+k}
  v_fmac_f32 v{vB+8+k}, v{vB+6}, v{vACC+12+k}""")
    tag_embed(g,[vB+8,vB+9,vB+10,vB+11],vX,sTMP)
    g(f"""
  s_lshl_b32 s{sTMP}, s{sTMP+2}, 10
  s_add_u32 s{sTMP}, s{sTMP}, {WS_PART}
  v_lshlrev_b32 v{t}, 4, v{vLANE}
  v_add_u32 v{t}, s{sTMP}, v{t}
  global_store_dwordx4 v{t}, v[{vB+8}:{vB+11}], s[{sWS}:{sWS+1}] sc1
  v_mov_b32 v{vB+12}, v{t+2}
  v_mov_b32 v{vB+13}, s{sT}
  v_mov_b32 v{vB+14}, v{t+3}
  v_mov_b32 v{vB+15}, s{sT}
  s_lshl_b32 s{sTMP}, s{sTMP+2}, 4
  s_add_u32 s{sTMP}, s{sTMP}, {WS_STAT}
  v_mov_b32 v{t}, s{sTMP}
  s_mov_b64 exec, 1
  global_store_dwordx4 v{t}, v[{vB+12}:{vB+15}], s[{sWS}:{sWS+1}] sc1
  s_mov_b64 exec, -1
  s_add_u32 s{sTMP+7}, s{sTMP+7}, 1
  s_add_u32 s{sTMP+2}, s{sTMP+2}, 32
  s_cmp_lt_u32 s{sTMP+7}, s{sTMP+6}
  s_cbranch_scc1 L_merge_{u}
L_nomerge_{u}:
  s_cmp_eq_u32 s{sNXT}, 2
  s_cbranch_scc1 L_tail
  s_add_u32 s{sCPH}, s{sCPH}, 1
  s_mov_b32 s{sNXT}, 0
""")
    emit_reset_and_q(g)
    g(f"  s_branch L_body_b{b^1}")

def emit_reset_and_q(g):
    t=vT
    g(f"""
  v_and_b32 v{t}, 1, v{vLANE}
  s_cmp_eq_u32 s{sCPH}, 2
  s_cselect_b32 s{sTMP}, 512, 0
  v_mul_u32_u24 v{t}, s{sTMP}, v{t}
  s_lshl_b32 s{sTMP}, s{sCPH}, 9
  s_add_u32 s{sTMP}, s{sTMP}, {L_QC}
  v_add_u32 v{t}, s{sTMP}, v{t}
  v_lshrrev_b32 v{t+1}, 4, v{vLANE}
  v_lshl_add_u32 v{t}, v{t+1}, 4, v{t}
""")
    for j in range(8):
        g(f"  ds_read_b128 a[{aQ+4*j}:{aQ+4*j+3}], v{t} offset:{j*64}")
    g(f"""
  v_mov_b32 v{vM}, 0xff800000
  v_mov_b32 v{vMC}, 0xff800000
  v_mov_b32 v{vL}, 0""")
    for r in range(32): g(f"  v_mov_b32 v{vACC+r}, 0")
    g("  s_waitcnt lgkmcnt(0)")

def emit_role(g,o,p,u,wreg=None,fail='L_fail',sleep=1,part=0,pre=None):
    t=vT; D0=24; D1=28; S0=32; S1=36
    sW=wreg if wreg is not None else SW_
    if part in (0,1): _role_p1(g,o,p,u,sW,fail,sleep,pre)
    if part==0:
        if o.get('tailst') and p==0: stamp(g,11)
        if SOFTBAR is not None: SOFTBAR(g,u)
        else: g("  s_barrier")
        if o.get('tailst') and p==0: stamp(g,12)
    if part in (0,2): _role_p2(g,o,p,u,sW)

def _role_addr(g,p,sW):
    t=vT
    g(f"""
  s_lshr_b32 s{sTMP}, s{RO}, 4                   ; h
  s_add_u32 s{sTMP}, s{sTMP}, {p*16}
  s_lshl_b32 s{sTMP}, s{sTMP}, 2
  s_add_u32 s{sTMP}, s{sTMP}, s{sW}           ; (p*16+h)*4 + b
  s_lshl_b32 s{sTMP}, s{sTMP}, 3
  s_lshl_b32 s{sTMP+1}, s{sTMP}, 4
  s_add_u32 s{sTMP+1}, s{sTMP+1}, {WS_STAT}
  s_lshl_b32 s{sTMP+2}, s{sTMP}, 10
  s_add_u32 s{sTMP+2}, s{sTMP+2}, {WS_PART}
  s_lshr_b32 s{sTMP+3}, s{RO}, 2
  s_and_b32 s{sTMP+3}, s{sTMP+3}, 3           ; dq
  s_lshl_b32 s{sTMP+3}, s{sTMP+3}, 8
  s_add_u32 s{sTMP+2}, s{sTMP+2}, s{sTMP+3}
  v_lshrrev_b32 v{t}, 4, v{vLANE}             ; grp
  v_and_b32 v{t+1}, 15, v{vLANE}
  v_lshlrev_b32 v{t+2}, 4, v{t}
  v_add_u32 v{t+2}, s{sTMP+1}, v{t+2}
  v_lshlrev_b32 v{t+3}, 10, v{t}
  v_lshl_add_u32 v{t+3}, v{t+1}, 4, v{t+3}
  v_add_u32 v{t+3}, s{sTMP+2}, v{t+3}
  v_add_u32 v{t+4}, 4096, v{t+3}              ; j=grp+4
  s_mov_b32 s{sTMP+4}, 0
  s_mov_b32 s{sTMP+5}, 0x0c0c0400
  s_mov_b32 s{sTMP+6}, 0x04000c0c
""")

def _role_pre(g,p,sW,R):
    t=vT
    _role_addr(g,p,sW)
    g(f"""
  global_load_dwordx4 v[{R+8}:{R+11}], v{t+2}, s[{sWS}:{sWS+1}] sc1
  global_load_dwordx4 v[{R+12}:{R+15}], v{t+2}, s[{sWS}:{sWS+1}] offset:64 sc1
  global_load_dwordx4 v[{R}:{R+3}], v{t+3}, s[{sWS}:{sWS+1}] sc1
  global_load_dwordx4 v[{R+4}:{R+7}], v{t+4}, s[{sWS}:{sWS+1}] sc1""")

def _role_p1(g,o,p,u,sW,fail,sleep,pre=None):
    t=vT; D0=24; D1=28; S0=32; S1=36
    _role_addr(g,p,sW)
    if pre is not None:
        for k in range(16): g(f"  v_mov_b32 v{24+k}, v{pre+k}")
        g(f"  s_branch L_role_chk_{u}")
    g(f"""
L_role_poll_{u}:
  global_load_dwordx4 v[{S0}:{S0+3}], v{t+2}, s[{sWS}:{sWS+1}] sc1
  global_load_dwordx4 v[{S1}:{S1+3}], v{t+2}, s[{sWS}:{sWS+1}] offset:64 sc1
  global_load_dwordx4 v[{D0}:{D0+3}], v{t+3}, s[{sWS}:{sWS+1}] sc1
  global_load_dwordx4 v[{D1}:{D1+3}], v{t+4}, s[{sWS}:{sWS+1}] sc1
  s_waitcnt vmcnt(0)
L_role_chk_{u}:
  v_perm_b32 v{t+5}, v{D0+1}, v{D0}, s{sTMP+5}      ; [b0(D0), b0(D0+1), 0, 0]
  v_perm_b32 v{t+6}, v{D0+3}, v{D0+2}, s{sTMP+6}    ; [0,0,b0(D0+2), b0(D0+3)]
  v_or_b32 v{t+5}, v{t+5}, v{t+6}
  v_perm_b32 v{t+6}, v{D1+1}, v{D1}, s{sTMP+5}
  v_perm_b32 v{t+7}, v{D1+3}, v{D1+2}, s{sTMP+6}
  v_or_b32 v{t+6}, v{t+6}, v{t+7}
  v_xor_b32 v{t+5}, s{sTB}, v{t+5}
  v_xor_b32 v{t+6}, s{sTB}, v{t+6}
  v_or_b32 v{t+5}, v{t+5}, v{t+6}
  v_xor_b32 v{t+6}, s{sT}, v{S0+1}
  v_xor_b32 v{t+7}, s{sT}, v{S1+1}
  v_or3_b32 v{t+5}, v{t+5}, v{t+6}, v{t+7}
  v_xor_b32 v{t+6}, s{sT}, v{S0+3}
  v_xor_b32 v{t+7}, s{sT}, v{S1+3}
  v_or3_b32 v{t+5}, v{t+5}, v{t+6}, v{t+7}
  v_cmp_ne_u32 vcc, 0, v{t+5}
  s_cbranch_vccz L_role_ok_{u}
""")
    spin_guard(g,sTMP+4,fail)
    g(f"""
  s_sleep {sleep}
  s_branch L_role_poll_{u}
L_role_ok_{u}:""")
    if o.get('tailst') and p==0: stamp(g,10)
    g(f"""
  v_max_f32 v{t+5}, v{S0}, v{S1}
  v_mov_b32 v{t+6}, v{t+5}
  s_nop 1
  v_permlane16_swap_b32 v{t+5}, v{t+6}
  v_max_f32 v{t+5}, v{t+5}, v{t+6}
  v_mov_b32 v{t+6}, v{t+5}
  s_nop 1
  v_permlane32_swap_b32 v{t+5}, v{t+6}
  v_max_f32 v{t+5}, v{t+5}, v{t+6}            ; M
  v_sub_f32 v{S0}, v{S0}, v{t+5}
  v_sub_f32 v{S1}, v{S1}, v{t+5}
  v_exp_f32 v{S0}, v{S0}
  v_exp_f32 v{S1}, v{S1}
  s_nop 0
  v_mul_f32 v{t+5}, v{S0}, v{S0+2}
  v_fmac_f32 v{t+5}, v{S1}, v{S1+2}           ; partial L
""")
    for k in range(4):
        g(f"  v_mul_f32 v{D0+k}, v{S0}, v{D0+k}\n  v_fmac_f32 v{D0+k}, v{S1}, v{D1+k}")
    vals=[D0,D0+1,D0+2,D0+3,t+5]
    tmp=[D1,D1+1,D1+2,D1+3,t+6]
    for sw in ('v_permlane16_swap_b32','v_permlane32_swap_b32'):
        for v,w_ in zip(vals,tmp): g(f"  v_mov_b32 v{w_}, v{v}")
        g("  s_nop 1")
        for v,w_ in zip(vals,tmp): g(f"  {sw} v{v}, v{w_}")
        for v,w_ in zip(vals,tmp): g(f"  v_add_f32 v{v}, v{v}, v{w_}")
    g(f"""
  v_rcp_f32 v{t+5}, v{t+5}
  s_nop 0
  v_mul_f32 v{D0}, v{D0}, v{t+5}
  v_mul_f32 v{D0+1}, v{D0+1}, v{t+5}
  v_mul_f32 v{D0+2}, v{D0+2}, v{t+5}
  v_mul_f32 v{D0+3}, v{D0+3}, v{t+5}
  v_cvt_pk_bf16_f32 v{D0}, v{D0}, v{D0+1}
  v_cvt_pk_bf16_f32 v{D0+1}, v{D0+2}, v{D0+3}
  s_lshl_b32 s{sTMP}, s{sW}, 7
  s_add_u32 s{sTMP}, s{sTMP}, {L_OB+p*512}
  v_lshlrev_b32 v{t+1}, 3, v{t+1}
  v_add_u32 v{t+1}, s{sTMP}, v{t+1}
  ds_write_b64 v{t+1}, v[{D0}:{D0+1}]
  s_waitcnt lgkmcnt(0)""")

def _role_p2(g,o,p,u,sW):
    t=vT
    PITCH=256 if WAL else 224; WBASE=(L_WO+p*16384) if WAL else (L_WST+p*14336); YC=128 if WAL else 112
    g(f"""
  v_lshrrev_b32 v{t}, 4, v{vLANE}             ; grp
  v_and_b32 v{t+1}, 3, v{vLANE}
  v_lshlrev_b32 v{t+2}, 7, v{t+1}
  v_lshl_add_u32 v{t+2}, v{t}, 4, v{t+2}
  v_add_u32 v{t+2}, {L_OB+p*512}, v{t+2}
  ds_read_b128 v[40:43], v{t+2}
  ds_read_b128 v[44:47], v{t+2} offset:64
  v_lshrrev_b32 v{t+3}, 2, v{vLANE}
  v_and_b32 v{t+3}, 3, v{t+3}
  v_lshl_add_u32 v{t+3}, v{t}, 3, v{t+3}
  v_mul_u32_u24 v{t+3}, {PITCH}, v{t+3}
  v_lshl_add_u32 v{t+3}, v{t+1}, 3, v{t+3}
  s_lshl_b32 s{sTMP}, s{sW}, 6
  s_add_u32 s{sTMP}, s{sTMP}, {WBASE}
  v_add_u32 v{t+3}, s{sTMP}, v{t+3}
""")
    TBq=48
    for c in range(2):
        for s in range(2):
            r=TBq+8*c+4*s
            g(f"  ds_read_b64_tr_b16 v[{r}:{r+1}], v{t+3} offset:{c*32+s*32*PITCH}")
            g(f"  ds_read_b64_tr_b16 v[{r+2}:{r+3}], v{t+3} offset:{c*32+s*32*PITCH+4*PITCH}")
    g("  s_waitcnt lgkmcnt(0)")
    for c in range(2):
        d=64+4*c
        g(f"  v_mfma_f32_16x16x32_bf16 v[{d}:{d+3}], v[40:43], v[{TBq+8*c}:{TBq+8*c+3}], 0")
    for c in range(2):
        d=64+4*c
        g(f"  v_mfma_f32_16x16x32_bf16 v[{d}:{d+3}], v[44:47], v[{TBq+8*c+4}:{TBq+8*c+7}], v[{d}:{d+3}]")
    g(f"""
  v_and_b32 v{t+4}, 1, v{t}
  v_cmp_eq_u32 vcc, 1, v{t+4}
  s_nop 6
  v_cndmask_b32 v64, v64, v68, vcc
  v_cndmask_b32 v65, v65, v69, vcc
  v_cndmask_b32 v66, v66, v70, vcc
  v_cndmask_b32 v67, v67, v71, vcc
  v_mov_b32 v{vX}, s{sTB}
""")
    tag_embed(g,[64,65,66,67],vX,sTMP)
    g(f"""
  s_and_b32 s{sTMP}, s{RO}, 3
  s_add_u32 s{sTMP}, s{sTMP}, {p*4}
  s_lshl_b32 s{sTMP}, s{sTMP}, 6
  s_lshr_b32 s{sTMP+1}, s{RO}, 2
  s_add_u32 s{sTMP}, s{sTMP}, s{sTMP+1}
  s_mul_i32 s{sTMP}, s{sTMP}, {YC*16}
  s_lshl_b32 s{sTMP+1}, s{sW}, 9              ; 2w*16*16
  s_add_u32 s{sTMP}, s{sTMP}, s{sTMP+1}
  s_add_u32 s{sTMP}, s{sTMP}, {WS_Y}
  v_and_b32 v{t+5}, 15, v{vLANE}
  v_lshlrev_b32 v{t+5}, 4, v{t+5}
  v_lshl_add_u32 v{t+5}, v{t+4}, 8, v{t+5}    ; + (g&1)*256
  v_add_u32 v{t+5}, s{sTMP}, v{t+5}
""")
    if WAL:
        g(f"""  ; valid lanes: l<32 ; last quarter has only 4 column blocks (waves 0,1)
  s_and_b32 s{sTMP+2}, s{RO}, 3
  s_cmp_eq_u32 s{sTMP+2}, 3
  s_cselect_b32 s{sTMP+3}, 2, 4
  s_cmp_lt_u32 s{sW}, s{sTMP+3}
  s_cselect_b32 s{sTMP+2}, -1, 0
  s_cbranch_scc0 L_noy_{u}""")
    else:
        g(f"""  ; valid lanes: l<32 and cb<7  (w==3 -> only l<16)
  s_cmp_eq_u32 s{sW}, 3
  s_cselect_b32 s{sTMP+2}, 0xffff, -1""")
    g(f"""
  s_mov_b32 s{sTMP+3}, 0
  s_mov_b64 exec, s[{sTMP+2}:{sTMP+3}]
  global_store_dwordx4 v{t+5}, v[64:67], s[{sWS}:{sWS+1}] sc1
  s_mov_b64 exec, -1
""")
    if WAL: g(f"L_noy_{u}:")

def emit_final(g,o,u,update_epoch,lo=0,hi=224,loopw=None,fail='L_fail',done='L_done',fb=None,fsleep=1):
    t=vT
    FB=fb if fb is not None else L_FB
    sW=loopw if loopw is not None else SW_
    if lo>0: g(f"  s_cmp_lt_u32 s2, {lo}\n  s_cbranch_scc1 {done}")
    g(f"""
  ; ---- finalizer f=s2<224 : p=f/112, r=f%112, cq=r/28, cc=(r%28)*4
  s_cmp_ge_u32 s2, {hi}
  s_cbranch_scc1 {done}
  s_cmp_ge_u32 s2, 112
  s_cselect_b32 s{sTMP}, 1, 0                 ; p
  s_mul_i32 s{sTMP+1}, s{sTMP}, 112
  s_sub_u32 s{sTMP+1}, s2, s{sTMP+1}          ; r
""")
    if WAL:
        g(f"""  s_lshr_b32 s{sTMP+2}, s{sTMP+1}, 5          ; cq = r/32
  s_and_b32 s{sTMP+3}, s{sTMP+1}, 31
  s_lshl_b32 s{sTMP+3}, s{sTMP+3}, 2          ; cc""")
    else:
        g(f"""  s_mul_i32 s{sTMP+2}, s{sTMP+1}, 2341
  s_lshr_b32 s{sTMP+2}, s{sTMP+2}, 16         ; cq = r/28
  s_mul_i32 s{sTMP+3}, s{sTMP+2}, 28
  s_sub_u32 s{sTMP+3}, s{sTMP+1}, s{sTMP+3}
  s_lshl_b32 s{sTMP+3}, s{sTMP+3}, 2          ; cc""")
    YP=2048 if WAL else 1792; YC=128 if WAL else 112
    if loopw is not None: g(f"  s_mov_b32 s{loopw}, 0\nL_finw_{u}:")
    g(f"""
  s_lshl_b32 s{sTMP+4}, s{sTMP}, 2
  s_add_u32 s{sTMP+4}, s{sTMP+4}, s{sTMP+2}
  s_lshl_b32 s{sTMP+4}, s{sTMP+4}, 6
  s_lshl_b32 s{sTMP+5}, s{sW}, 4
  s_add_u32 s{sTMP+4}, s{sTMP+4}, s{sTMP+5}
  s_mul_i32 s{sTMP+4}, s{sTMP+4}, {YP}
  s_lshl_b32 s{sTMP+5}, s{sTMP+3}, 4
  s_add_u32 s{sTMP+4}, s{sTMP+4}, s{sTMP+5}
  s_add_u32 s{sTMP+4}, s{sTMP+4}, {WS_Y}
  v_lshrrev_b32 v{t}, 2, v{vLANE}
  v_mul_u32_u24 v{t}, {YP}, v{t}
  v_and_b32 v{t+1}, 3, v{vLANE}
  v_lshl_add_u32 v{t}, v{t+1}, 4, v{t}
  v_add_u32 v{t}, s{sTMP+4}, v{t}
  s_mov_b32 s{sTMP+7}, 0
  s_mov_b32 s{sTMP+5}, 0x0c0c0400
  s_mov_b32 s{sTMP+6}, 0x04000c0c
""")
    NP=int(o.get('finpipe',1))
    if NP<=1:
        g(f"""
L_fin_poll_{u}:
  global_load_dwordx4 v[24:27], v{t}, s[{sWS}:{sWS+1}] sc1
  s_waitcnt vmcnt(0)
  v_perm_b32 v{t+2}, v25, v24, s{sTMP+5}
  v_perm_b32 v{t+3}, v27, v26, s{sTMP+6}
  v_or_b32 v{t+2}, v{t+2}, v{t+3}
  v_cmp_ne_u32 vcc, s{sTB}, v{t+2}
  s_cbranch_vccz L_fin_ok_{u}
""")
        spin_guard(g,sTMP+7,fail)
        g(f"""
  s_sleep {fsleep}
  s_branch L_fin_poll_{u}
L_fin_ok_{u}:
""")
    else:
        R=[32+4*i for i in range(NP)]
        for i,r in enumerate(R):
            g(f"  global_load_dwordx4 v[{r}:{r+3}], v{t}, s[{sWS}:{sWS+1}] sc1")
            if i<NP-1: g(f"  s_sleep {int(o.get('fingap',3))}")
        g(f"L_fin_poll_{u}:")
        for i,r in enumerate(R):
            g(f"""
  s_waitcnt vmcnt({NP-1})
  v_perm_b32 v{t+2}, v{r+1}, v{r}, s{sTMP+5}
  v_perm_b32 v{t+3}, v{r+3}, v{r+2}, s{sTMP+6}
  v_or_b32 v{t+2}, v{t+2}, v{t+3}
  v_cmp_ne_u32 vcc, s{sTB}, v{t+2}
  s_cbranch_vccz L_fin_got{i}_{u}
  global_load_dwordx4 v[{r}:{r+3}], v{t}, s[{sWS}:{sWS+1}] sc1""")
        spin_guard(g,sTMP+7,fail)
        g(f"  s_branch L_fin_poll_{u}")
        for i,r in enumerate(R):
            g(f"L_fin_got{i}_{u}:")
            for k in range(4): g(f"  v_mov_b32 v{24+k}, v{r+k}")
            g(f"  s_branch L_fin_ok_{u}")
        g(f"L_fin_ok_{u}:\n  s_nop 1")
    if o.get('tailst'): stamp(g,13)
    for rr in (4,8):
        for k in range(4): g(f"  v_add_f32_dpp v{28+k}, v{24+k}, v{24+k} row_ror:{rr} row_mask:0xf bank_mask:0xf")
        for k in range(4): g(f"  v_mov_b32 v{24+k}, v{28+k}")
        g("  s_nop 1")
    for sw in ('v_permlane16_swap_b32','v_permlane32_swap_b32'):
        for k in range(4): g(f"  v_mov_b32 v{28+k}, v{24+k}")
        g("  s_nop 1")
        for k in range(4): g(f"  {sw} v{24+k}, v{28+k}")
        for k in range(4): g(f"  v_add_f32 v{24+k}, v{24+k}, v{28+k}")
    g(f"""
  s_lshl_b32 s{sTMP+4}, s{sW}, 6
  s_add_u32 s{sTMP+4}, s{sTMP+4}, {FB}
  v_lshlrev_b32 v{t+2}, 4, v{t+1}
  v_add_u32 v{t+2}, s{sTMP+4}, v{t+2}
  ds_write_b128 v{t+2}, v[24:27]
  s_waitcnt lgkmcnt(0)""")
    if loopw is not None:
        g(f"  s_add_u32 s{loopw}, s{loopw}, 1\n  s_cmp_lt_u32 s{loopw}, 4\n  s_cbranch_scc1 L_finw_{u}")
    else:
        g(f"  s_barrier\n  s_cmp_eq_u32 s{sW}, 0\n  s_cbranch_scc0 {done}")
    g(f"""
  v_lshrrev_b32 v{t+3}, 2, v{vLANE}
  v_and_b32 v{t+3}, 3, v{t+3}                 ; b
  v_lshlrev_b32 v{t+4}, 4, v{t+1}
  v_lshl_add_u32 v{t+4}, v{t+3}, 2, v{t+4}
  v_add_u32 v{t+4}, {FB}, v{t+4}
  ds_read_b32 v24, v{t+4}
  ds_read_b32 v25, v{t+4} offset:64
  ds_read_b32 v26, v{t+4} offset:128
  ds_read_b32 v27, v{t+4} offset:192
  s_waitcnt lgkmcnt(0)
  v_add_f32 v24, v24, v25
  v_add_f32 v26, v26, v27
  v_add_f32 v24, v24, v26
  v_cvt_pk_bf16_f32 v24, v24, v24
  s_mul_i32 s{sTMP+4}, s{sTMP}, 448
  s_mul_i32 s{sTMP+5}, s{sTMP+2}, {YC}
  s_add_u32 s{sTMP+4}, s{sTMP+4}, s{sTMP+5}
  s_add_u32 s{sTMP+4}, s{sTMP+4}, s{sTMP+3}
  s_lshl_b32 s{sTMP+4}, s{sTMP+4}, 1
  v_mul_u32_u24 v{t+4}, 1792, v{t+3}
  v_lshl_add_u32 v{t+4}, v{t+1}, 1, v{t+4}
  v_add_u32 v{t+4}, s{sTMP+4}, v{t+4}
  s_mov_b64 exec, 0xffff
  global_store_short v{t+4}, v24, s[{sOUT}:{sOUT+1}] {o.get('outpol','')}
  s_mov_b64 exec, -1
""")
    if update_epoch:
        g(f"""
  s_cmp_eq_u32 s2, 0
  s_cbranch_scc0 {done}
  v_mov_b32 v24, s{sT}
  v_mov_b32 v25, {WS_EPOCH}
  s_mov_b64 exec, 1
  global_store_dword v25, v24, s[{sWS}:{sWS+1}] sc1
  s_mov_b64 exec, -1
""")

def kd(name,nv,nacc,nsg=96):
    acc=(nv+3)//4*4
    return f""".p2align 6
.amdhsa_kernel {name}
  .amdhsa_next_free_vgpr {acc+nacc if nacc else nv}
  .amdhsa_next_free_sgpr {nsg}
  .amdhsa_accum_offset {acc}
  .amdhsa_group_segment_fixed_size 0
  .amdhsa_kernarg_size 104
  .amdhsa_user_sgpr_count 2
  .amdhsa_user_sgpr_kernarg_segment_ptr 1
  .amdhsa_system_sgpr_workgroup_id_x 1
  .amdhsa_float_denorm_mode_32 3
.end_amdhsa_kernel
"""
def khead(name): return f".globl {name}\n.p2align 8\n.type {name},@function\n{name}:\n"

def load_ptrs(g):
    g(f"""
  s_load_dwordx2 s[{sKA}:{sKA+1}], s[0:1], 8
  s_load_dwordx2 s[{sVA}:{sVA+1}], s[0:1], 16
  s_load_dwordx2 s[{sKB}:{sKB+1}], s[0:1], 48
  s_load_dwordx2 s[{sVB}:{sVB+1}], s[0:1], 56
  s_load_dwordx2 s[{sOUT}:{sOUT+1}], s[0:1], 80
  s_load_dwordx2 s[{sDBG}:{sDBG+1}], s[0:1], 88
  s_load_dwordx2 s[{sWS}:{sWS+1}], s[0:1], 96
  v_lshrrev_b32 v1, 6, v0
  v_and_b32 v{vLANE}, 63, v0
  s_nop 0
  v_readfirstlane_b32 s{sW}, v1
  s_lshr_b32 s{sG}, s2, 3
  s_and_b32 s{sJ}, s2, 7
  s_waitcnt lgkmcnt(0)
""")

def fail_and_done(g,name,stamps=False):
    if stamps and STAMPS:
        g(f"""
  s_branch L_done
L_fail:
  v_mov_b32 v24, 0xdead
  v_mov_b32 v25, 4
  s_mov_b64 exec, 1
  global_store_dword v25, v24, s[{sDBG}:{sDBG+1}]
  s_mov_b64 exec, -1
  s_endpgm
L_done:""")
        stamp(g,9)
        if not TAILST: g(f"  s_mov_b32 s{sST+10}, s{sKN}")
        stamp_write(g)
        g("L_exit:\n  s_endpgm")
        return
    g(f"""
  s_branch L_done
L_fail:
  v_mov_b32 v24, 0xdead
  v_mov_b32 v25, 4
  s_mov_b64 exec, 1
  global_store_dword v25, v24, s[{sDBG}:{sDBG+1}]
  s_mov_b64 exec, -1
L_done:
L_exit:
  s_endpgm
""")

def uniq(txt,sfx):
    import re
    return re.sub(r'\b(L_[A-Za-z0-9_]+)',lambda m:m.group(1)+sfx,txt)

def k_qproj(o):
    g=G(); name='qproj_kernel'
    g("  s_cmp_ge_u32 s2, 256\n  s_cbranch_scc1 L_exit")
    load_ptrs(g); g(f"  v_mov_b32 v0, v{vLANE}")
    load_tags(g,sWS,sT,sTB,sTMP)
    emit_qproj(g,'k1',sWS,sT,'q')
    g("  s_waitcnt vmcnt(0)")
    fail_and_done(g,name)
    return khead(name)+uniq(g.text(),'_k1'), kd(name,128,0), name

def k_main(o):
    g=G(); name=KN+'_kernel' if opt(o,'single',False) else 'main_kernel'
    fuseq=opt(o,'fuseq',False); fuset=opt(o,'fuset',False); pol=o.get('pol','nt')
    size0,tab=chunk_table(o)
    g("  s_cmp_ge_u32 s2, 256\n  s_cbranch_scc1 L_exit")
    early=opt(o,'early',True) and fuseq
    pace=opt(o,'pace',8)
    if early: emit_qproj_ptrs(g)
    load_ptrs(g)
    stamp_init(g); stamp(g,0)
    g(f"""
  s_cmp_eq_u32 s{sW}, 4
  s_cbranch_scc1 L_aux
  v_and_b32 v{vOK}, 15, v{vLANE}
  v_lshlrev_b32 v{vOK}, 9, v{vOK}
  v_lshrrev_b32 v{vT}, 4, v{vLANE}
  v_lshl_add_u32 v{vOK}, v{vT}, 4, v{vOK}        ; (l&15)*512 + (l>>4)*16
  v_lshrrev_b32 v{vT}, 5, v{vLANE}
  v_lshlrev_b32 v{vT}, 12, v{vT}
  v_and_b32 v{vOV}, 31, v{vLANE}
  v_lshl_add_u32 v{vOV}, v{vOV}, 4, v{vT}        ; (l>>5)*4096 + (l&31)*16
  s_lshl_b32 s{sTMP+2}, s{sG}, 1
""")
    set_srd_head(g,sKB,sVB,sTMP+2)
    g(f"""
  s_lshl_b32 s{sOFF}, s{sJ}, 20
  s_lshl_b32 s{sTMP}, s{sW}, 18
  s_add_u32 s{sOFF}, s{sOFF}, s{sTMP}
""")
    if early: g("  s_barrier")
    emit_k_loads(g,0,pol)
    if pace<8: g(f"  s_waitcnt vmcnt({pace})")
    emit_v_loads(g,0,pol)
    g(f"  s_add_u32 s{sOFF}, s{sOFF}, 8192")
    if pace<16: g(f"  s_waitcnt vmcnt({pace})")
    emit_k_loads(g,1,pol)
    if pace<24: g(f"  s_waitcnt vmcnt({pace})")
    emit_v_loads(g,1,pol)
    g(f"""
  s_add_u32 s{sOFF}, s{sOFF}, 8192
  s_mov_b32 s{sCNT}, 30
  s_mov_b32 s{sPH}, 0
  s_mov_b32 s{sCPH}, 0
  s_mov_b32 s{sNXT}, 0
  s_mov_b32 s{sKN}, 0
  s_mov_b32 s{sTRIG}, 0
  s_mov_b32 s{sSKIP}, 1
  s_mov_b32 s{sC}, {f2h(SCALE)}
  s_mov_b32 s{sSLO}, 0x05040100
  s_mov_b32 s{sSHI}, 0x07060302
""")
    load_tags(g,sWS,sT,sTB,sTMP)
    stamp(g,1)
    g("  s_barrier")
    emit_reset_and_q(g)
    stamp(g,2)
    emit_body(g,o,0); emit_body(g,o,1)
    emit_rare(g,0); emit_rare(g,1)
    emit_flush(g,o,0); emit_flush(g,o,1)
    g("L_tail:")
    stamp(g,6)
    if fuset:
        g("  s_waitcnt vmcnt(0)")
        emit_role(g,o,1,'B'); stamp(g,7); emit_role(g,o,0,'A'); stamp(g,8); emit_final(g,o,'f',True)
        g("  s_waitcnt vmcnt(0)")
    else:
        g("  s_waitcnt vmcnt(0)")
    g("  s_branch L_done")
    g(f"""
L_aux:
  v_mov_b32 v0, v{vLANE}
""")
    if opt(o,'prio',True): g("  s_setprio 3")
    if early:
        emit_qproj_issue(g)
        b0=opt(o,'b0wait',63)
        if b0<63: g(f"  s_waitcnt vmcnt({b0})")
        g("  s_barrier")
        stamp(g,8)
    load_tags(g,sWS,sT,sTB,sTMP)
    usecnt = sum(c for c,_ in tab)>0 and not opt(o,'rr',False)
    if usecnt: g(f"""
  s_cmp_eq_u32 s{sJ}, 0
  s_cbranch_scc0 L_noinit
  s_mul_i32 s{sTMP}, s{sG}, {CNT_STRIDE}
  s_add_u32 s{sTMP}, s{sTMP}, {WS_CNT}
  v_mov_b32 v72, s{sTMP}
  v_mov_b32 v74, 0
  v_mov_b32 v75, s{sT}
  s_mov_b64 exec, 1
  global_store_dwordx2 v72, v[74:75], s[{sWS}:{sWS+1}] sc1
  s_mov_b64 exec, -1
L_noinit:
""")
    g(f"""
  v_lshlrev_b32 v76, 2, v0
  v_mov_b32 v77, 0
  v_add_u32 v78, {L_CNT}, v76
  s_mov_b64 exec, 0xffff
  ds_write_b32 v78, v77
  s_mov_b64 exec, -1
  v_mov_b32 v77, -1
  v_add_u32 v78, {L_QUEUE}, v76
  ds_write_b32 v78, v77
  ds_write_b32 v78, v77 offset:256
""")
    stamp(g,1)
    if fuseq:
        if early: emit_qproj_compute(g,'fq',sWS,sT)
        else: emit_qproj(g,'fq',sWS,sT,'q')
    stamp(g,2)
    emit_qgather(g,'m',sWS,sT,sG,"L_fail_aux")
    stamp(g,3)
    g("  s_waitcnt lgkmcnt(0)\n  s_barrier")
    if fuset: emit_wo_stage(g,'m')
    g(f"""
  s_mov_b32 s{sKN}, 1
  s_mul_i32 s{sTMP+8}, s{sG}, {CNT_STRIDE}
  s_add_u32 s{sTMP+8}, s{sTMP+8}, {WS_CNT}
  v_mov_b32 v8, s{sTMP+8}
  v_mov_b32 v9, 1
  v_mov_b32 v10, {L_CNT+12}
""")
    if usecnt:
      g(f"""
  s_mov_b32 s{sTMP+9}, 0
L_cinit:
  global_load_dwordx2 v[14:15], v8, s[{sWS}:{sWS+1}] sc1
  s_waitcnt vmcnt(0)
  v_readfirstlane_b32 s{sTMP}, v15
  s_nop 0
  s_cmp_eq_u32 s{sTMP}, s{sT}
  s_cbranch_scc1 L_cinit_ok
""")
      spin_guard(g,sTMP+9,"L_fail_aux")
      g(f"""
  s_sleep 8
  s_branch L_cinit
L_cinit_ok:
""")
    g(f"""
L_sched:
  s_mov_b32 s{sTMP+9}, 0
L_sched_poll:
  ds_read_b32 v11, v10
  s_waitcnt lgkmcnt(0)
  v_readfirstlane_b32 s{sTMP}, v11
  s_nop 0
  s_cmp_ge_u32 s{sTMP}, s{sKN}
  s_cbranch_scc1 L_sched_go
""")
    spin_guard(g,sTMP+9,"L_fail_aux",limit=1000000)
    g(f"""
  s_sleep 4
  s_branch L_sched_poll
L_sched_go:
""")
    ndyn=sum(c for c,_ in tab)
    if ndyn==0:
        g(f"  s_mov_b32 s{sTMP+1}, -2")
    else:
        if opt(o,'rr',False):
            g(f"  s_sub_u32 s{sTMP}, s{sKN}, 1\n  s_lshl_b32 s{sTMP}, s{sTMP}, 3\n  s_add_u32 s{sTMP}, s{sTMP}, s{sJ}\n  s_mov_b32 s{sTMP+1}, -2")
        else:
            g(f"""
  s_mov_b64 exec, 1
  global_atomic_add v11, v8, v9, s[{sWS}:{sWS+1}] sc0 sc1
  s_mov_b64 exec, -1
  s_waitcnt vmcnt(0)
  v_readfirstlane_b32 s{sTMP}, v11
  s_mov_b32 s{sTMP+1}, -2
""")
        cbase=0; ubase=8*size0
        for n,(cnt,sz) in enumerate(tab):
            g(f"""
  s_cmp_lt_u32 s{sTMP}, {cbase+cnt}
  s_cbranch_scc0 L_tab_{n}
  s_sub_u32 s{sTMP+2}, s{sTMP}, {cbase}
  s_mul_i32 s{sTMP+2}, s{sTMP+2}, {sz}
  s_add_u32 s{sTMP+2}, s{sTMP+2}, {ubase}
  s_lshl_b32 s{sTMP+2}, s{sTMP+2}, 8
  s_or_b32 s{sTMP+1}, s{sTMP+2}, {sz}
  s_branch L_tab_done
L_tab_{n}:""")
            cbase+=cnt; ubase+=cnt*sz
        assert ubase==256,(ubase)
        g("L_tab_done:")
    g(f"""
  s_lshl_b32 s{sTMP+2}, s{sKN}, 2
  s_add_u32 s{sTMP+2}, s{sTMP+2}, {L_QUEUE}
  v_mov_b32 v12, s{sTMP+2}
  v_mov_b32 v13, s{sTMP+1}
  ds_write_b32 v12, v13
  s_add_u32 s{sKN}, s{sKN}, 1
  s_cmp_eq_u32 s{sTMP+1}, -2
  s_cbranch_scc0 L_sched
  s_waitcnt vmcnt(0) lgkmcnt(0)
  s_branch L_done
L_fail_aux:
  v_mov_b32 v24, 0xdeae
  v_mov_b32 v25, 12
  s_mov_b64 exec, 1
  global_store_dword v25, v24, s[{sDBG}:{sDBG+1}]
  s_mov_b64 exec, -1
""")
    fail_and_done(g,name,True)
    return khead(name)+uniq(g.text(),'_m'), kd(name,NARCH,NACC), name

def k_role(o):
    g=G(); name='role_kernel'
    g("  s_cmp_ge_u32 s2, 256\n  s_cbranch_scc1 L_exit")
    load_ptrs(g)
    load_tags(g,sWS,sT,sTB,sTMP)
    g(f"  s_cmp_eq_u32 s{sW}, 0\n  s_cbranch_scc0 L_nostage\n  v_mov_b32 v0, v{vLANE}")
    emit_wo_stage(g,'r')
    g(f"  v_mov_b32 v{vLANE}, v0\n  s_waitcnt vmcnt(0)\nL_nostage:\n  s_barrier")
    emit_role(g,o,1,'B'); emit_role(g,o,0,'A')
    g("  s_waitcnt vmcnt(0)")
    fail_and_done(g,name)
    return khead(name)+uniq(g.text(),'_k3'), kd(name,NARCH,0), name

def k_final(o):
    g=G(); name='final_kernel'
    g("  s_cmp_ge_u32 s2, 256\n  s_cbranch_scc1 L_exit")
    load_ptrs(g)
    load_tags(g,sWS,sT,sTB,sTMP)
    emit_final(g,o,'f',False)
    g("  s_waitcnt vmcnt(0)")
    fail_and_done(g,name)
    return khead(name)+uniq(g.text(),'_k4'), kd(name,NARCH,0), name

HEADER=open('cdna_kernels/'+KN+'.s.ref').read().split('; Override launch geometry')[0]

def build(o):
    global STAMPS
    STAMPS=opt(o,'stamps',False)
    global WQPOL
    WQPOL=o.get('wqpol','nt')
    global WQTEST
    WQTEST=opt(o,'wqtest',0)
    fuseq=opt(o,'fuseq',False); fuset=opt(o,'fuset',False)
    single=fuseq and fuset
    o['single']=single
    ks=[]; launch=[]
    if not fuseq:
        ks.append(k_qproj(o)); launch.append(f"; @launch kernel=qproj_kernel grid=(256,1,1) block=(64,1,1) lds={LDS_SIZE}")
    m=k_main(o); ks.append(m)
    if single: launch.append(f"; @launch grid=(256,1,1) block=(320,1,1) lds={LDS_SIZE}")
    else: launch.append(f"; @launch kernel={m[2]} grid=(256,1,1) block=(320,1,1) lds={LDS_SIZE}")
    if not fuset:
        ks.append(k_role(o)); launch.append(f"; @launch kernel=role_kernel grid=(256,1,1) block=(256,1,1) lds={LDS_SIZE}")
        ks.append(k_final(o)); launch.append(f"; @launch kernel=final_kernel grid=(256,1,1) block=(256,1,1) lds={LDS_SIZE}")
    src=HEADER+"\n".join(launch)+'\n.amdgcn_target "amdgcn-amd-amdhsa--gfx950"\n.text\n'
    src+="".join(k[0] for k in ks)
    src+='.section .rodata,"a"\n'+"".join(k[1] for k in ks)
    if opt(o,'meta',False):
        src+=".amdgpu_metadata\n---\namdhsa.version: [1, 2]\namdhsa.kernels:\n"
        for k in ks:
            src+=f"  - .name: {k[2]}\n    .symbol: {k[2]}.kd\n    .kernarg_segment_size: 104\n    .kernarg_segment_align: 8\n    .group_segment_fixed_size: 0\n    .private_segment_fixed_size: 0\n    .wavefront_size: 64\n    .sgpr_count: 96\n    .vgpr_count: 256\n    .max_flat_workgroup_size: 320\n    .args:\n      - {{.name: kernargs, .size: 104, .offset: 0, .value_kind: by_value}}\n"
        src+="...\n.end_amdgpu_metadata\n"
    return src,launch

if __name__=='__main__':
    out=sys.argv[1]; o=dict(a.split('=',1) for a in sys.argv[2:])
    src,launch=build(o)
    open(out,'w').write(src)
    print("\n".join(launch))
```
